```python
import torch

def _softmax(x, axis=-1):
    return torch.softmax(x, dim=axis)
def _gelu(x):
    return torch.nn.functional.gelu(x, approximate="tanh")
def _silu(x):
    return torch.nn.functional.silu(x)
def _sigmoid(x):
    return torch.sigmoid(x)
def _layernorm(x, axis=-1, eps=1e-5):
    m = x.mean(dim=axis, keepdim=True)
    v = x.var(dim=axis, keepdim=True, unbiased=False)
    return (x - m) / torch.sqrt(v + eps)
def _scatter_add(tgt, idx, src, axis=0):
    return tgt.clone().index_add_(axis, idx, src)
def _segment_sum(src, seg, n):
    out = torch.zeros((n,) + src.shape[1:], dtype=src.dtype)
    return out.index_add_(0, seg, src)
def _pad(x, pw):
    flat = tuple(v for pair in reversed(pw) for v in pair)
    return torch.nn.functional.pad(x, flat)

kernel_name = 'gather_scatter__hybrid_graph_tf_graphgps__graph'

def setup_inputs():

    _w = (lambda a: (lambda t: t.to(torch.bfloat16) if t.is_floating_point() else t)(torch.as_tensor(a)))
    N, deg, D = 12500, 32, 128
    E = N * deg
    src = (lambda lo, hi, *s: torch.randint(lo, hi, s))(0, N, E).to(torch.int64)
    dst = (lambda lo, hi, *s: torch.randint(lo, hi, s))(0, N, E).to(torch.int64)
    deg_cnt = torch.bincount(dst, minlength=N).to(float) + 1.0
    sc = 1.0 / float(D) ** 0.5
    return {
        "x": _w((lambda *s: torch.randn(*s, dtype=torch.bfloat16) * 0.05)(N, D)),
        "src": _w(src),
        "dst": _w(dst),
        "deg_inv": _w((1.0 / deg_cnt).to(float)),
        "w_msg": _w((lambda *s: torch.randn(*s, dtype=torch.bfloat16) * 0.4)(D, D) * sc),
        "wq": _w((lambda *s: torch.randn(*s, dtype=torch.bfloat16) * 1.6)(D, D) * sc),
        "wk": _w((lambda *s: torch.randn(*s, dtype=torch.bfloat16) * 1.6)(D, D) * sc),
        "wv": _w((lambda *s: torch.randn(*s, dtype=torch.bfloat16) * 0.2)(D, D) * sc),
        "w_out": _w((lambda *s: torch.randn(*s, dtype=torch.bfloat16) * 0.2)(D, D) * sc),
    }

def reference(x, src, dst, deg_inv, w_msg, wq, wk, wv, w_out):
    N, D = x.shape[0], x.shape[1]
    h = _layernorm(x, axis=-1)
    m_e = torch.einsum('nd,de->ne', h, w_msg)
    h_local = _segment_sum(m_e[src], dst, N) * deg_inv[:, None]
    q = torch.einsum('nd,de->ne', h, wq)
    k = torch.einsum('nd,de->ne', h, wk)
    v = torch.einsum('nd,de->ne', h, wv)
    logits = torch.einsum('id,jd->ij', q, k) / (float(D) ** 0.5)
    attn = _softmax(logits, axis=-1)
    h_global = torch.einsum('ij,jd->id', attn, v)
    y = torch.einsum('nd,de->ne', h_local + h_global, w_out)
    return x + y
```

```python
class Asm:
    def __init__(self):
        self.lines = []
    def __call__(self, s):
        for l in s.strip('\n').split('\n'):
            self.lines.append('    ' + l.strip())
    def label(self, name):
        self.lines.append(name + ':')
    def raw(self, s):
        self.lines.append(s)
    def comment(self, s):
        self.lines.append('    ; ' + s)
    def text(self):
        return '\n'.join(self.lines) + '\n'

def vr(b, n=1):
    return f'v{b}' if n == 1 else f'v[{b}:{b+n-1}]'
def ar(b, n=1):
    return f'a{b}' if n == 1 else f'a[{b}:{b+n-1}]'
def sr(b, n=1):
    return f's{b}' if n == 1 else f's[{b}:{b+n-1}]'
```

```python
from asmlib import *
from layout import *
import math, struct

def f32bits(x): return struct.unpack('<I', struct.pack('<f', x))[0]
BETA = (2/math.sqrt(128))/(2-2/math.sqrt(128))
CSC = math.log2(math.e)/math.sqrt(128)
NLN = 196

def srd(A, s, base, off, size):
    A(f's_add_u32 s{s}, s{base}, {off}')
    A(f's_addc_u32 s{s+1}, s{base+1}, 0')
    A(f's_mov_b32 s{s+2}, {size}')
    A(f's_mov_b32 s{s+3}, 0x20000')

def red_g(A, v, t):
    A(f'v_mov_b32 {vr(t)}, {vr(v)}')
    A('s_nop 1')
    A(f'v_permlane16_swap_b32 {vr(v)}, {vr(t)}')
    A(f'v_add_f32 {vr(v)}, {vr(v)}, {vr(t)}')
    A(f'v_mov_b32 {vr(t)}, {vr(v)}')
    A('s_nop 1')
    A(f'v_permlane32_swap_b32 {vr(v)}, {vr(t)}')
    A(f'v_add_f32 {vr(v)}, {vr(v)}, {vr(t)}')

def bcast_g3(A, dst, src, t):
    A(f'v_mov_b32 {vr(t)}, {vr(src)}')
    A(f'v_mov_b32 {vr(dst)}, {vr(src)}')
    A('s_nop 1')
    A(f'v_permlane16_swap_b32 {vr(t)}, {vr(dst)}')
    A(f'v_mov_b32 {vr(t)}, {vr(dst)}')
    A('s_nop 1')
    A(f'v_permlane32_swap_b32 {vr(t)}, {vr(dst)}')

def wave_scan_incl(A, v):
    for sh in (1, 2, 4, 8):
        A('s_nop 1')
        A(f'v_add_u32_dpp {vr(v)}, {vr(v)}, {vr(v)} row_shr:{sh} row_mask:0xf bank_mask:0xf')
    A('s_nop 1')
    A(f'v_add_u32_dpp {vr(v)}, {vr(v)}, {vr(v)} row_bcast:15 row_mask:0xa bank_mask:0xf')
    A('s_nop 1')
    A(f'v_add_u32_dpp {vr(v)}, {vr(v)}, {vr(v)} row_bcast:31 row_mask:0xc bank_mask:0xf')

def gen_k1(A, name='prep_kernel'):
    A.raw(f'.globl {name}\n.p2align 8\n.type {name},@function')
    A.label(name)
    A(f'''
    s_cmp_ge_u32 s2, {NLN+NCH}
    s_cbranch_scc1 L1_done
    s_load_dwordx2 s[4:5], s[0:1], 88
    s_cmp_ge_u32 s2, {NLN}
    s_cbranch_scc1 L1_bin
    s_load_dwordx2 s[6:7], s[0:1], 0
    s_load_dwordx4 s[24:27], s[0:1], 40
    v_lshrrev_b32 v1, 6, v0
    v_and_b32 v0, 63, v0
    s_nop 0
    v_readfirstlane_b32 s3, v1
    ''')
    A('''
    v_and_b32 v2, 15, v0
    v_lshrrev_b32 v3, 4, v0
    s_lshl_b32 s28, s2, 2
    s_add_u32 s28, s28, s3          ; qtile16
    s_lshl_b32 s29, s28, 12
    v_lshlrev_b32 v4, 8, v2
    v_lshl_add_u32 v4, v3, 4, v4    ; i*256 + g*16
    s_waitcnt lgkmcnt(0)
    ''')
    srd(A, 8, 6, 0, N*256)
    srd(A, 12, 24, 0, 32768)
    srd(A, 16, 26, 0, 32768)
    X = 8
    for s in range(4):
        A(f'buffer_load_dwordx4 {vr(X+4*s,4)}, v4, s[8:11], s29 offen offset:{64*s}')
    A('''
    v_lshlrev_b32 v5, 1, v3
    v_xor_b32 v5, v5, v2
    v_lshlrev_b32 v5, 4, v5
    v_lshl_add_u32 v5, v3, 8, v5    ; g*256 + ((p^(g<<1))<<4)
    v_xor_b32 v6, 0x80, v5
    s_lshl_b32 s30, s3, 13          ; w*8192
    s_add_u32 s31, s30, 4096
    ''')
    for mat in range(2):
        for half in range(2):
            A(f's_add_u32 s32, s{30+half}, {mat*32768}')
            A('s_mov_b32 m0, s32')
            A('s_nop 0')
            for ii in range(4):
                v = 'v5' if (ii >> 1) == 0 else 'v6'
                A(f'buffer_load_dwordx4 {v}, s[{12+4*mat}:{15+4*mat}], s{30+half} offen offset:{ii*1024} lds')
    srd(A, 20, 4, WS_H1, N*256)
    srd(A, 36, 4, WS_QF, 784*4096)
    srd(A, 40, 4, WS_BND, NPAD*4)
    F = 32
    A('s_waitcnt vmcnt(16)')
    for k in range(16):
        A(f'v_lshlrev_b32 {vr(F+2*k)}, 16, {vr(X+k)}')
        A(f'v_and_b32 {vr(F+2*k+1)}, 0xffff0000, {vr(X+k)}')
    S, T = 24, 25
    A(f'v_add_f32 {vr(S)}, {vr(F)}, {vr(F+1)}')
    A(f'v_add_f32 {vr(26)}, {vr(F+2)}, {vr(F+3)}')
    for k in range(4, 32, 2):
        A(f'v_add_f32 {vr(S)}, {vr(S)}, {vr(F+k)}')
        A(f'v_add_f32 {vr(26)}, {vr(26)}, {vr(F+k+1)}')
    A(f'v_add_f32 {vr(S)}, {vr(S)}, {vr(26)}')
    red_g(A, S, T)
    A(f'v_mul_f32 {vr(S)}, {hex(f32bits(1/128))}, {vr(S)}')
    for k in range(32):
        A(f'v_sub_f32 {vr(F+k)}, {vr(F+k)}, {vr(S)}')
    A(f'v_mul_f32 {vr(S)}, {vr(F)}, {vr(F)}')
    A(f'v_mul_f32 {vr(26)}, {vr(F+1)}, {vr(F+1)}')
    for k in range(2, 32, 2):
        A(f'v_fmac_f32 {vr(S)}, {vr(F+k)}, {vr(F+k)}')
        A(f'v_fmac_f32 {vr(26)}, {vr(F+k+1)}, {vr(F+k+1)}')
    A(f'v_add_f32 {vr(S)}, {vr(S)}, {vr(26)}')
    red_g(A, S, T)
    A(f'v_mov_b32 {vr(T)}, {hex(f32bits(1e-5))}')
    A(f'v_fmac_f32 {vr(T)}, {hex(f32bits(1/128))}, {vr(S)}')
    A(f'v_rsq_f32 {vr(S)}, {vr(T)}')
    A('s_nop 0')
    for k in range(32):
        A(f'v_mul_f32 {vr(F+k)}, {vr(F+k)}, {vr(S)}')
    HB = 8
    for k in range(16):
        A(f'v_cvt_pk_bf16_f32 {vr(HB+k)}, {vr(F+2*k)}, {vr(F+2*k+1)}')
    bcast_g3(A, S, F+31, T)
    A(f'v_mul_f32 {vr(S)}, {hex(f32bits(BETA))}, {vr(S)}')
    for k in range(32):
        A(f'v_add_f32 {vr(F+k)}, {vr(F+k)}, {vr(S)}')
    A(f'v_cmp_eq_u32 vcc, 3, v3')
    A('s_nop 1')
    A(f'v_cndmask_b32 {vr(F+31)}, {vr(F+31)}, 1.0, vcc')
    H = 64
    for k in range(16):
        A(f'v_cvt_pk_bf16_f32 {vr(H+k)}, {vr(F+2*k)}, {vr(F+2*k+1)}')
    A('''
    v_and_b32 v26, 7, v2
    v_lshlrev_b32 v26, 1, v26
    v_xor_b32 v26, v26, v3
    v_lshlrev_b32 v27, 8, v2
    ''')
    for s in range(4):
        A(f'v_xor_b32 v28, {4*s}, v26')
        A(f'v_lshl_add_u32 {vr(80+s)}, v28, 4, v27')
        A(f'buffer_store_dwordx4 {vr(H+4*s,4)}, {vr(80+s)}, s[20:23], s29 offen')
    A('''
    v_bfe_u32 v26, v0, 2, 2         ; r
    v_and_b32 v27, 1, v3
    v_lshl_add_u32 v27, v27, 2, v26
    v_lshlrev_b32 v27, 1, v27       ; f
    v_and_b32 v28, 3, v0            ; c
    v_xor_b32 v27, v27, v28         ; c ^ f
    v_lshl_add_u32 v26, v3, 3, v26  ; 8g + r
    v_lshlrev_b32 v26, 8, v26
    ''')
    TA = 84
    for w in range(4):
        A(f'v_xor_b32 v28, {4*w}, v27')
        A(f'v_lshl_add_u32 {vr(TA+w)}, v28, 4, v26')
    A('''
    v_lshrrev_b32 v26, 2, v2
    v_lshlrev_b32 v26, 3, v26
    v_and_b32 v28, 3, v2
    v_add_u32 v26, v26, v28
    v_lshlrev_b32 v26, 8, v26       ; (8*(rho/4)+rho%4)*256
    v_and_b32 v27, 7, v2
    v_lshlrev_b32 v27, 1, v27
    v_xor_b32 v27, v27, v3
    ''')
    TB = 88
    for w in range(4):
        A(f'v_xor_b32 v28, {4*w}, v27')
        A(f'v_lshl_add_u32 {vr(TB+w)}, v28, 4, v26')
    A('s_waitcnt vmcnt(4)')
    A('s_barrier')
    AC = 96
    AF = 128
    def g1_reads(et):
        for s in range(4):
            for x in range(2):
                A(f'ds_read_b64_tr_b16 {vr(AF+16*et+4*s+2*x,2)}, {vr(TA+et//2)} offset:{s*8192+x*1024+8*(et%2)}')
    g1_reads(0); g1_reads(1)
    for et in range(8):
        A(f's_waitcnt lgkmcnt({8 if et < 7 else 0})')
        if et + 2 < 8:
            pass
        for s in range(4):
            c = '0' if s == 0 else vr(AC+4*et, 4)
            A(f'v_mfma_f32_16x16x32_bf16 {vr(AC+4*et,4)}, {vr(AF+16*et+4*s,4)}, {vr(HB+4*s,4)}, {c}')
        if et + 2 < 8:
            g1_reads(et + 2)
    def g2_reads(dt):
        for w in range(4):
            A(f'ds_read_b128 {vr(AF+16*dt+4*w,4)}, {vr(TB+w)} offset:{32768+(dt//2)*8192+(dt%2)*1024}')
    g2_reads(0); g2_reads(1); g2_reads(2)
    QB = 64
    A('s_waitcnt vmcnt(0)')
    for w in range(4):
        for h in range(2):
            b = AC + 4 * (2 * w + h)
            A(f'v_cvt_pk_bf16_f32 {vr(QB+4*w+2*h)}, {vr(b)}, {vr(b+1)}')
            A(f'v_cvt_pk_bf16_f32 {vr(QB+4*w+2*h+1)}, {vr(b+2)}, {vr(b+3)}')
    TC = 32
    A('s_nop 1')
    for dt in range(8):
        rem = min(2, 7 - dt)
        A(f's_waitcnt lgkmcnt({4*rem})')
        for w in range(4):
            c = '0' if w == 0 else vr(TC+4*dt, 4)
            A(f'v_mfma_f32_16x16x32_bf16 {vr(TC+4*dt,4)}, {vr(AF+16*dt+4*w,4)}, {vr(QB+4*w,4)}, {c}')
        if dt + 3 < 8:
            g2_reads(dt + 3)
    A('s_nop 7')
    A(f'v_add_f32 {vr(S)}, {vr(TC)}, {vr(TC+1)}')
    A(f'v_add_f32 {vr(26)}, {vr(TC+2)}, {vr(TC+3)}')
    for k in range(4, 32, 2):
        A(f'v_add_f32 {vr(S)}, {vr(S)}, {vr(TC+k)}')
        A(f'v_add_f32 {vr(26)}, {vr(26)}, {vr(TC+k+1)}')
    A(f'v_add_f32 {vr(S)}, {vr(S)}, {vr(26)}')
    red_g(A, S, T)
    bcast_g3(A, 26, TC+31, T)
    A(f'v_mul_f32 {vr(S)}, {hex(f32bits(1/math.sqrt(128)))}, {vr(S)}')
    A(f'v_sub_f32 {vr(S)}, {vr(26)}, {vr(S)}')
    A(f'v_mul_f32 {vr(S)}, {hex(f32bits(BETA*CSC))}, {vr(S)}')
    A(f's_mov_b32 s33, {hex(f32bits(CSC))}')
    for k in range(32):
        A(f'v_fma_f32 {vr(TC+k)}, {vr(TC+k)}, s33, {vr(S)}')
    A(f'v_cndmask_b32 {vr(TC+31)}, {vr(TC+31)}, 0, vcc')
    A(f'v_lshlrev_b32 v27, 4, v0')
    for w in range(4):
        for i in range(4):
            A(f'v_cvt_pk_bf16_f32 {vr(8+4*w+i)}, {vr(TC+8*w+2*i)}, {vr(TC+8*w+2*i+1)}')
        A(f'buffer_store_dwordx4 {vr(8+4*w,4)}, v27, s[36:39], s29 offen offset:{w*1024}')
    A(f'v_mul_f32 {vr(S)}, {vr(TC)}, {vr(TC)}')
    A(f'v_mul_f32 {vr(26)}, {vr(TC+1)}, {vr(TC+1)}')
    for k in range(2, 32, 2):
        A(f'v_fmac_f32 {vr(S)}, {vr(TC+k)}, {vr(TC+k)}')
        A(f'v_fmac_f32 {vr(26)}, {vr(TC+k+1)}, {vr(TC+k+1)}')
    A(f'v_add_f32 {vr(S)}, {vr(S)}, {vr(26)}')
    red_g(A, S, T)
    A('''
    s_lshl_b32 s33, s28, 6
    v_lshlrev_b32 v27, 2, v2
    s_mov_b64 exec, 0xffff
    ''')
    A(f'buffer_store_dword {vr(S)}, v27, s[40:43], s33 offen')
    A('s_endpgm')

    A.label('L1_bin')
    A(f'''
    s_load_dwordx4 s[24:27], s[0:1], 8
    s_sub_u32 s28, s2, {NLN}        ; chunk
    s_lshl_b32 s29, s28, 14
    v_lshlrev_b32 v1, 4, v0         ; t*16
    v_mov_b32 v2, 0
    v_mov_b32 v3, 0
    v_mov_b32 v4, 0
    v_mov_b32 v5, 0
    ds_write_b128 v1, v[2:5]
    s_waitcnt lgkmcnt(0)
    ''')
    srd(A, 8, 24, 0, E*4)
    srd(A, 12, 26, 0, E*4)
    D, SR, RK = 8, 24, 40
    A('s_add_u32 s30, s29, 4096\ns_add_u32 s31, s29, 8192\ns_add_u32 s32, s29, 12288')
    for k in range(4):
        A(f'buffer_load_dwordx4 {vr(D+4*k,4)}, v1, s[12:15], s{29+k} offen')
    for k in range(4):
        A(f'buffer_load_dwordx4 {vr(SR+4*k,4)}, v1, s[8:11], s{29+k} offen')
    srd(A, 16, 4, WS_TAB, NCH*NBIN*4)
    srd(A, 20, 4, WS_EDGE, NCH*CH*4)
    for k in range(4):
        A(f'v_add_u32 v2, s{29+k}, v1')
        A(f'v_cmp_gt_u32 s[{40+2*k}:{41+2*k}], {hex(E*4) if False else "s34"}, v2' if False else f'v_cmp_gt_u32 vcc, {E*4}, v2')
        A(f's_mov_b64 s[{40+2*k}:{41+2*k}], vcc')
    A('v_mov_b32 v6, 1')
    A('s_barrier')
    BA = 56
    for k in range(4):
        A(f's_waitcnt vmcnt({7-k})')
        A(f's_mov_b64 exec, s[{40+2*k}:{41+2*k}]')
        for j in range(4):
            n = 4 * k + j
            A(f'v_lshrrev_b32 {vr(BA+n)}, 4, {vr(D+n)}')
            A(f'v_lshlrev_b32 {vr(BA+n)}, 2, {vr(BA+n)}')
            A(f'ds_add_rtn_u32 {vr(RK+n)}, {vr(BA+n)}, v6')
    A('s_mov_b64 exec, -1')
    A('s_waitcnt vmcnt(0)')
    for n in range(16):
        A(f'v_and_b32 v2, 7, {vr(SR+n)}')
        A(f'v_lshlrev_b32 {vr(SR+n)}, 8, {vr(SR+n)}')
        A(f'v_lshl_or_b32 {vr(SR+n)}, v2, 5, {vr(SR+n)}')
        A(f'v_and_or_b32 {vr(SR+n)}, {vr(D+n)}, 15, {vr(SR+n)}')
    A('s_waitcnt lgkmcnt(0)')
    A('s_barrier')
    A('''
    ds_read_b128 v[8:11], v1
    s_waitcnt lgkmcnt(0)
    v_add_u32 v12, v8, v9
    v_add_u32 v13, v12, v10
    v_add_u32 v14, v13, v11
    v_mov_b32 v15, v14
    ''')
    wave_scan_incl(A, 15)
    A('''
    v_lshrrev_b32 v16, 6, v0
    v_lshlrev_b32 v17, 2, v16
    v_and_b32 v18, 63, v0
    v_cmp_eq_u32 vcc, 63, v18
    s_and_saveexec_b64 s[36:37], vcc
    ds_write_b32 v17, v15 offset:4096
    s_mov_b64 exec, s[36:37]
    s_waitcnt lgkmcnt(0)
    s_barrier
    v_mov_b32 v17, 0
    ds_read_b128 v[20:23], v17 offset:4096
    v_sub_u32 v15, v15, v14
    s_waitcnt lgkmcnt(0)
    v_cmp_lt_u32 vcc, 0, v16
    s_nop 1
    v_cndmask_b32 v20, 0, v20, vcc
    v_cmp_lt_u32 vcc, 1, v16
    s_nop 1
    v_cndmask_b32 v21, 0, v21, vcc
    v_cmp_lt_u32 vcc, 2, v16
    s_nop 1
    v_cndmask_b32 v22, 0, v22, vcc
    v_add3_u32 v15, v15, v20, v21
    v_add_u32 v2, v15, v22          ; start0
    v_add_u32 v3, v2, v8
    v_add_u32 v4, v2, v12
    v_add_u32 v5, v2, v13
    ds_write_b128 v1, v[2:5]
    v_lshl_or_b32 v20, v8, 16, v2
    v_lshl_or_b32 v21, v9, 16, v3
    v_lshl_or_b32 v22, v10, 16, v4
    v_lshl_or_b32 v23, v11, 16, v5
    ''')
    A(f's_mul_i32 s33, s28, {NBIN*4}')
    A(f'v_cmp_gt_u32 vcc, {NBIN//4}, v0')
    A('s_and_saveexec_b64 s[36:37], vcc')
    A('buffer_store_dwordx4 v[20:23], v1, s[16:19], s33 offen')
    A('s_mov_b64 exec, s[36:37]')
    A('s_waitcnt lgkmcnt(0)')
    A('s_barrier')
    for k in range(4):
        A(f's_mov_b64 exec, s[{40+2*k}:{41+2*k}]')
        for j in range(4):
            n = 4 * k + j
            A(f'ds_read_b32 {vr(BA+n)}, {vr(BA+n)}')
    for k in range(4):
        A(f's_mov_b64 exec, s[{40+2*k}:{41+2*k}]')
        if k == 0: A('s_waitcnt lgkmcnt(0)')
        for j in range(4):
            n = 4 * k + j
            A(f'v_add_lshl_u32 {vr(BA+n)}, {vr(BA+n)}, {vr(RK+n)}, 2')
            A(f'ds_write_b32 {vr(BA+n)}, {vr(SR+n)} offset:8192')
    A('s_mov_b64 exec, -1')
    A('s_waitcnt lgkmcnt(0)')
    A('s_barrier')
    for k in range(4):
        A(f'ds_read_b128 {vr(8+4*k,4)}, v1 offset:{8192+4096*k}')
    for k in range(4):
        A(f's_waitcnt lgkmcnt({3-k})')
        A(f'buffer_store_dwordx4 {vr(8+4*k,4)}, v1, s[20:23], s{29+k} offen')
    A.label('L1_done')
    A('s_endpgm')
```

```python
from asmlib import *
from layout import *

OA, OB = 0, 64
SB = [[128, 144], [160, 176]]
KADDR = 192
VADDR = 200
VDMA = 208
VT = 209
QA, QB = 0, 32
KF = 64
VF = 96
NT = 79

def slot(j): return (j + 2) % 8

def mfma_qk(buf, n):
    t, x = n // 2, n % 2
    s = SB[buf][x]
    q = (QA if x == 0 else QB) + 4 * t
    c = '0' if t == 0 else vr(s, 16)
    return f'v_mfma_f32_32x32x16_bf16 {vr(s,16)}, {ar(KF+4*t,4)}, {ar(q,4)}, {c}'

def mfma_pv(buf, n):
    t, dt, x = n // 8, (n % 8) // 2, n % 2
    o = (OA if x == 0 else OB) + 16 * dt
    p = SB[buf][x] + 8 * t
    return f'v_mfma_f32_32x32x16_bf16 {vr(o,16)}, {ar(VF+4*(t*4+dt),4)}, {vr(p,4)}, {vr(o,16)}'

def k_read(j, t):
    return f'ds_read_b128 {ar(KF+4*t,4)}, {vr(KADDR+t)} offset:{slot(j)*8192}'

def v_read(j, n):
    f, x = n // 2, n % 2
    t, dt = f // 4, f % 4
    return f'ds_read_b64_tr_b16 {ar(VF+4*f+2*x,2)}, {vr(VADDR+dt*2+x)} offset:{slot(j)*8192+t*4096}'

def exp_list(buf):
    ex = []
    cv = {}
    for t in range(2):
        for x in range(2):
            b = SB[buf][x] + 8 * t
            for r in range(8):
                ex.append(f'v_exp_f32 {vr(b+r)}, {vr(b+r)}')
                if r % 2 == 1:
                    cv[len(ex) - 1] = f'v_cvt_pk_bf16_f32 {vr(b+r//2)}, {vr(b+r-1)}, {vr(b+r)}'
    return ex, cv

def dma(k):
    return f'buffer_load_dwordx4 {vr(VDMA)}, s[8:11], s27 offen offset:{k*1024} lds'

def default_plan():
    plan = [[] for _ in range(32)]
    E0 = 19
    for G in range(32):
        idx = (G - E0) % 32
        plan[G].append(('e', idx))
    for idx in range(1, 32, 2):
        G = (E0 + idx + 1) % 32
        plan[G].append(('c', idx))
    for n in range(16):
        plan[n * 12 // 16].append(('v', n))
    for t in range(8):
        plan[16 + t].append(('k', t))
    for k in range(4):
        plan[25 + k * 2 - 1].append(('d', k))
    return plan, E0

def gen_k2(A, plan=None, E0=None, name='attn_kernel', stamp=False, no_exp=False, no_lds=False, no_dma=False, no_qk=False, no_pv=False, fixedP=False, custom_iter=None):
    if plan is None:
        plan, E0 = default_plan()
    A.raw(f'.globl {name}\n.p2align 8\n.type {name},@function')
    A.label(name)
    A(f'''
    s_cmp_ge_u32 s2, {NWG2}
    s_cbranch_scc1 L2_done
    s_load_dwordx2 s[4:5], s[0:1], 88
    {'s_memtime s[44:45]' if stamp else ''}
    {'s_memrealtime s[46:47]' if stamp else ''}
    v_lshrrev_b32 v1, 6, v0
    v_and_b32 v0, 63, v0
    s_mov_b32 s3, 0x33333334
    v_readfirstlane_b32 s26, v1
    s_mul_hi_u32 s24, s2, s3
    s_mul_i32 s3, s24, 5
    s_sub_u32 s25, s2, s3
    s_lshl_b32 s33, s26, 12
    v_lshlrev_b32 {vr(VDMA)}, 4, v0
    v_add_u32 {vr(VDMA)}, s33, {vr(VDMA)}
    s_mul_i32 s27, s25, {NT*8192}
    s_add_u32 s28, s33, 0
    s_add_u32 s29, s33, 16384
    s_add_u32 s30, s33, 32768
    s_add_u32 s31, s33, 49152
    s_waitcnt lgkmcnt(0)
    s_add_u32 s8, s4, {WS_H1}
    s_addc_u32 s9, s5, 0
    s_mov_b32 s10, {N*256}
    s_mov_b32 s11, 0x20000
    s_add_u32 s12, s4, {WS_QF}
    s_addc_u32 s13, s5, 0
    s_mov_b32 s14, {392*8192}
    s_mov_b32 s15, 0x20000
    s_add_u32 s16, s4, {WS_OP}
    s_addc_u32 s17, s5, 0
    s_mov_b32 s18, {5*392*8192}
    s_mov_b32 s19, 0x20000
    s_add_u32 s20, s4, {WS_BND}
    s_addc_u32 s21, s5, 0
    s_mov_b32 s22, {WS_W23-WS_BND}
    s_mov_b32 s23, 0x20000
    ''')
    A('s_mov_b32 m0, s29')
    A('s_nop 0')
    for k in range(4): A(dma(k))
    A('s_add_u32 s27, s27, 16384')
    A(f'''
    s_lshl_b32 s34, s24, 3
    s_lshl_b32 s35, s26, 1
    s_add_u32 s34, s34, s35
    s_lshl_b32 s35, s34, 13
    v_lshlrev_b32 {vr(VT)}, 4, v0
    s_add_u32 s36, s35, 4096
    s_add_u32 s37, s35, 8192
    s_add_u32 s38, s35, 12288
    ''')
    for x in range(2):
        for t in range(8):
            so = [35, 36, 37, 38][x * 2 + t // 4]
            A(f'buffer_load_dwordx4 {ar((QA if x==0 else QB)+4*t,4)}, {vr(VT)}, s[12:15], s{so} offen offset:{(t%4)*1024}')
    A(f's_lshl_b32 s39, s24, 10')
    A(f'buffer_load_dwordx4 {vr(VT+3,4)}, {vr(VT)}, s[20:23], s39 offen')
    for pr in (30, 31):
        A(f's_mov_b32 m0, s{pr}')
        A('s_nop 0')
        for k in range(4): A(dma(k))
        A('s_add_u32 s27, s27, 16384')
    T0, T1, T2, T3 = VT+8, VT+9, VT+10, VT+11
    A(f'''
    v_and_b32 {vr(T0)}, 3, v0
    v_lshlrev_b32 {vr(T0)}, 2, {vr(T0)}
    v_bfe_u32 {vr(T1)}, v0, 2, 2
    v_or_b32 {vr(T0)}, {vr(T0)}, {vr(T1)}
    v_lshrrev_b32 {vr(T1)}, 5, v0
    v_xor_b32 {vr(T0)}, {vr(T0)}, {vr(T1)}
    v_and_b32 {vr(T1)}, 31, v0
    v_lshlrev_b32 {vr(T1)}, 8, {vr(T1)}
    ''')
    for t in range(8):
        A(f'v_xor_b32 {vr(T2)}, {2*t}, {vr(T0)}')
        A(f'v_lshl_add_u32 {vr(KADDR+t)}, {vr(T2)}, 4, {vr(T1)}')
    A(f'''
    v_bfe_u32 {vr(T0)}, v0, 2, 2
    v_lshrrev_b32 {vr(T1)}, 5, v0
    v_bfe_u32 {vr(T2)}, v0, 4, 1
    v_lshlrev_b32 {vr(T2)}, 1, {vr(T2)}
    v_bfe_u32 {vr(T3)}, v0, 1, 1
    v_or_b32 {vr(T2)}, {vr(T2)}, {vr(T3)}
    v_xor_b32 {vr(T2)}, {vr(T2)}, {vr(T1)}
    v_lshl_add_u32 {vr(T1)}, {vr(T1)}, 2, {vr(T0)}
    v_lshlrev_b32 {vr(T1)}, 8, {vr(T1)}
    v_and_b32 {vr(T3)}, 1, v0
    v_lshl_add_u32 {vr(T1)}, {vr(T3)}, 3, {vr(T1)}
    ''')
    for dt in range(4):
        for x in range(2):
            A(f'v_xor_b32 {vr(T3)}, {dt}, {vr(T0)}')
            A(f'v_lshlrev_b32 {vr(T3)}, 2, {vr(T3)}')
            A(f'v_xor_b32 {vr(VT+12)}, {2*x}, {vr(T2)}')
            A(f'v_add_u32 {vr(T3)}, {vr(T3)}, {vr(VT+12)}')
            A(f'v_lshl_add_u32 {vr(VADDR+dt*2+x)}, {vr(T3)}, 4, {vr(T1)}')
            if x == 1:
                A(f'v_add_u32 {vr(VADDR+dt*2+x)}, 2048, {vr(VADDR+dt*2+x)}')
    A(f'v_mov_b32 {vr(VT+1)}, v0')
    A('v_mov_b32 v250, 0')
    for r in range(128):
        A(f'v_mov_b32 {vr(r)}, 0')
    A('s_waitcnt vmcnt(8)')
    A('s_barrier')
    for t in range(8): A(k_read(0, t))
    for n in range(16):
        if n % 2 == 0:
            A(f's_waitcnt lgkmcnt({7 - n//2})' if n//2 < 7 else 's_waitcnt lgkmcnt(0)')
        A(mfma_qk(0, n))
    for t in range(8): A(k_read(1, t))
    A('s_nop 7')
    ex, cv = exp_list(0)
    npre = 32 - E0
    pre_c = [s[1] for G in range(E0, 32) for s in plan[G] if s[0] == 'c' and s[1] < npre]
    pre_e = [s[1] for G in range(E0, 32) for s in plan[G] if s[0] == 'e' and s[1] < npre]
    for idx in sorted(pre_e):
        A(ex[idx])
    A('s_nop 0')
    for idx in sorted(pre_c):
        A(cv[idx])
    if fixedP:
        for idx in range(32):
            if idx not in pre_e: A(ex[idx])
        A('s_nop 1')
        for idx in range(1, 32, 2):
            if idx not in pre_c: A(cv[idx])
        A('s_nop 1')
        for i in range(16):
            A(f'v_mov_b32 {vr(224+i)}, {vr(SB[0][(i//4)%2] + 8*(i//8) + (i%4))}')
        for i in range(32):
            A(f'v_accvgpr_write_b32 {ar(128+i%16+16*(i//16))}, {vr(224+i%16)}')
    if no_lds:
        for n in range(16): A(v_read(0, n))
    A('s_mov_b32 s32, 9')
    if stamp: A('s_memtime s[48:49]\ns_memrealtime s[56:57]')
    A('s_waitcnt lgkmcnt(0)')
    A('s_branch L2_body2')
    A.raw('.p2align 6')
    A.label('L2_loop')

    def emit_iter(i, last=False):
        if custom_iter is not None:
            if not last: custom_iter(A, i)
            return
        bufN = (i + 1) % 2
        bufC = i % 2
        exC, cvC = exp_list(bufC)
        exN, cvN = exp_list(bufN)
        for G in range(32):
            if G < 16:
                if not last and not no_qk: A(mfma_qk(bufN, G))
            else:
                if G == 16:
                    if i % 2 == 0 and not last:
                        A('s_waitcnt vmcnt(4) lgkmcnt(0)')
                        A('s_barrier')
                    else:
                        A('s_waitcnt lgkmcnt(0)')
                if not no_pv:
                    m = mfma_pv(bufC, G - 16)
                    if fixedP:
                        n_ = G - 16
                        t_, x_ = n_ // 8, n_ % 2
                        p_ = SB[bufC][x_] + 8 * t_
                        m = m.replace(vr(p_, 4), vr(224 + 4 * (t_ * 2 + x_), 4))
                    A(m)
            for s in plan[G]:
                if no_exp and s[0] in 'ec': continue
                if no_lds and s[0] in 'vk': continue
                if no_dma and s[0] == 'd': continue
                isnext = (G >= E0 and s[1] < 32 - E0) if s[0] in 'ec' else False
                if s[0] == 'e':
                    if isnext:
                        if not last: A(exN[s[1]])
                    else: A(exC[s[1]])
                elif s[0] == 'c':
                    if isnext:
                        if not last: A(cvN[s[1]])
                    else:
                        if last: A('s_nop 0')
                        A(cvC[s[1]])
                        if last: A('s_nop 1')
                elif s[0] == 'v':
                    A(v_read(i, s[1]))
                elif s[0] == 'k':
                    if not last: A(k_read(i + 2, s[1]))
                elif s[0] == 'd':
                    if i % 2 == 0 and not last:
                        if s[1] == 0:
                            A(f's_mov_b32 m0, s{28 + slot(i+6)//2}')
                            A('s_nop 0')
                        A(dma(s[1]))
                        if s[1] == 3:
                            A('s_add_u32 s27, s27, 16384')
        if not last:
            A('s_waitcnt lgkmcnt(0)')

    for p in range(8):
        i = (p - 2) % 8
        if p == 2:
            A.label('L2_body2')
        emit_iter(i)
    if stamp == 2:
        A('s_memrealtime s[60:61]')
        A('s_waitcnt lgkmcnt(0)')
        A('v_mov_b32 v251, s60')
        A(f'v_cmp_eq_u32 vcc, s32, {vr(VT+1)}')
        A('s_nop 1')
        A('v_cndmask_b32 v250, v250, v251, vcc')
    A('s_sub_u32 s32, s32, 1')
    A('s_cmp_ge_i32 s32, 0')
    A('s_cbranch_scc1 L2_loop')
    if stamp: A('s_memtime s[50:51]\ns_memrealtime s[58:59]')
    emit_iter(78 % 8, last=True)
    A('s_nop 15')
    A('s_nop 3')
    LN = VT + 1
    A(f'''
    v_and_b32 {vr(VT+2)}, 31, {vr(LN)}
    v_lshlrev_b32 {vr(VT+2)}, 2, {vr(VT+2)}
    s_mul_i32 s40, s25, {NPAD*4}
    s_lshl_b32 s41, s34, 7
    s_add_u32 s40, s40, s41
    s_add_u32 s40, s40, {WS_L-WS_BND}
    s_add_u32 s41, s40, {WS_M-WS_L}
    v_mov_b32 {vr(VT+3)}, 0
    s_mov_b32 exec_lo, 0
    ''')
    A(f'buffer_store_dword {vr(OA+63)}, {vr(VT+2)}, s[20:23], s40 offen')
    A(f'buffer_store_dword {vr(OB+63)}, {vr(VT+2)}, s[20:23], s40 offen offset:128')
    A(f'buffer_store_dword {vr(VT+3)}, {vr(VT+2)}, s[20:23], s41 offen')
    A(f'buffer_store_dword {vr(VT+3)}, {vr(VT+2)}, s[20:23], s41 offen offset:128')
    A('s_mov_b32 exec_lo, -1')
    A(f'''
    s_mul_i32 s40, s25, {392*8192}
    s_add_u32 s40, s40, s35
    s_add_u32 s41, s40, 4096
    s_add_u32 s42, s40, 8192
    s_add_u32 s43, s40, 12288
    v_lshlrev_b32 {vr(VT+2)}, 4, {vr(LN)}
    ''')
    for x in range(2):
        for kk in range(8):
            b = (OA if x == 0 else OB) + 8 * kk
            d = 128 + 4 * (x * 8 + kk)
            for i in range(4):
                A(f'v_cvt_pk_bf16_f32 {vr(d+i)}, {vr(b+2*i)}, {vr(b+2*i+1)}')
            so = 40 + x * 2 + kk // 4
            A(f'buffer_store_dwordx4 {vr(d,4)}, {vr(VT+2)}, s[16:19], s{so} offen offset:{(kk%4)*1024}')
    if stamp:
        A('s_waitcnt vmcnt(0)')
        A('s_memtime s[52:53]')
        A('s_memrealtime s[54:55]')
        A('s_waitcnt lgkmcnt(0)')
        for i in range(16):
            A(f'v_mov_b32 {vr(i)}, s{44+i}')
        A(f's_lshl_b32 s40, s2, 2')
        A(f's_add_u32 s40, s40, s26')
        A(f's_lshl_b32 s40, s40, 6')
        A(f's_add_u32 s40, s40, {WS_STAMP-WS_BND}')
        if stamp == 2:
            A(f'v_lshlrev_b32 v20, 2, {vr(VT+1)}')
            A(f's_lshl_b32 s41, s2, 2')
            A(f's_add_u32 s41, s41, s26')
            A(f's_lshl_b32 s41, s41, 8')
            A(f's_add_u32 s41, s41, {WS_STAMP-WS_BND+0x40000}')
            A(f's_mov_b32 s22, 0x7fffffff')
            A(f'buffer_store_dword v250, v20, s[20:23], s41 offen')
        A(f'v_mov_b32 v20, 0')
        A(f's_mov_b64 exec, 1')
        A(f's_mov_b32 s22, 0x7fffffff')
        A(f'buffer_store_dwordx4 v[0:3], v20, s[20:23], s40 offen')
        A(f'buffer_store_dwordx4 v[4:7], v20, s[20:23], s40 offen offset:16')
        A(f'buffer_store_dwordx4 v[8:11], v20, s[20:23], s40 offen offset:32')
        A(f'buffer_store_dwordx4 v[12:15], v20, s[20:23], s40 offen offset:48')
    A.label('L2_done')
    A('s_endpgm')

def desc(name, vgpr, accum, sgpr=64):
    return f'''.p2align 6
.amdhsa_kernel {name}
  .amdhsa_next_free_vgpr {vgpr}
  .amdhsa_next_free_sgpr {sgpr}
  .amdhsa_accum_offset {accum}
  .amdhsa_group_segment_fixed_size 0
  .amdhsa_kernarg_size 96
  .amdhsa_user_sgpr_count 2
  .amdhsa_user_sgpr_kernarg_segment_ptr 1
  .amdhsa_system_sgpr_workgroup_id_x 1
.end_amdhsa_kernel
'''
```

```python
from asmlib import *
from layout import *
import re

PB = [128, 160]
SB = 192
KADDR = 208
VADDR = 212
VDMA = 220
VT = 222
LANE = 221
QF = 0
KF = 64
VF = 96
NIT = 40
OFFS = 1

FAKE_B128 = False
def slot(j): return (j + OFFS) % 4
def O(dt, q): return 4 * (dt * 4 + q)

class Op:
    def __init__(self, text, kind, rd=(), wr=(), tag=None):
        self.text, self.kind, self.rd, self.wr, self.tag = text, kind, set(rd), set(wr), tag

def regs(kind, b, n): return [(kind, b + i) for i in range(n)]

def op_qk(n, s):
    kt, q = n // 4, n % 4
    d = SB + 4 * (n % 4)
    a = KF + 16 * (kt % 2) + 4 * s
    b = QF + 4 * (q * 4 + s)
    c = '0' if s == 0 else vr(d, 4)
    return Op(f'v_mfma_f32_16x16x32_bf16 {vr(d,4)}, {ar(a,4)}, {ar(b,4)}, {c}', 'mfma',
              rd=regs('a', a, 4) + regs('a', b, 4), wr=regs('v', d, 4))

def op_pv(pb, dt, q, u):
    o = O(dt, q)
    a = VF + 8 * (dt % 4) + 4 * u
    p = PB[pb] + 4 * (u * 4 + q)
    return Op(f'v_mfma_f32_16x16x32_bf16 {vr(o,4)}, {ar(a,4)}, {vr(p,4)}, {vr(o,4)}', 'mfma',
              rd=regs('a', a, 4) + regs('v', p, 4), wr=regs('v', o, 4))

def op_kread(j, kt, s):
    a = KF + 16 * (kt % 2) + 4 * s
    return Op(f'ds_read_b128 {ar(a,4)}, {vr(KADDR+s)} offset:{slot(j)*16384+kt*4096}', 'lds', wr=regs('a', a, 4), tag=slot(j))

def op_vread(j, dt, u, x):
    a = VF + 8 * (dt % 4) + 4 * u + 2 * x
    if FAKE_B128:
        if x == 1: return Op('; none', 'none')
        return Op(f'ds_read_b128 {ar(a,4)}, {vr(KADDR+dt%4)} offset:{slot(j)*16384+u*8192+(dt//4)*4096}', 'lds', wr=regs('a', a, 4), tag=slot(j))
    return Op(f'ds_read_b64_tr_b16 {ar(a,2)}, {vr(VADDR+dt)} offset:{slot(j)*16384+u*8192+x*4096}', 'lds', wr=regs('a', a, 2), tag=slot(j))

def op_exp(n, r):
    d = SB + 4 * (n % 4) + r
    return Op(f'v_exp_f32 {vr(d)}, {vr(d)}', 'trans', rd=[('v', d)], wr=[('v', d)])

def op_cvt(pb, n, half):
    kt, q = n // 4, n % 4
    s = SB + 4 * (n % 4) + 2 * half
    d = PB[pb] + 4 * ((kt // 2) * 4 + q) + 2 * (kt % 2) + half
    return Op(f'v_cvt_pk_bf16_f32 {vr(d)}, {vr(s)}, {vr(s+1)}', 'valu', rd=[('v', s), ('v', s + 1)], wr=[('v', d)])

def op_dma(k):
    return Op(f'buffer_load_dwordx4 {vr(VDMA)}, s[8:11], s27 offen offset:{k*1024} lds', 'vmem')

def op_s(text): return Op(text, 'salu')

DEFAULT = dict(
    slots=[['e0'], ['e1'], ['e2'], ['e3'], ['c0', 'c1'], ['v', 'v'], ['k'], []],
    bar_group=12, bar_slot=5,
    dma=[(12, 7), (13, 7), (14, 7), (15, 7)],
)

def build_iter(i, cfg, do_qk=True, do_pv=True, do_next=True, flags=()):
    ops = []
    pbN, pbC = (i + 1) % 2, i % 2
    slots = cfg['slots']
    for n in range(16):
        dt = n // 2
        q0 = 2 * (n % 2)
        mf = [op_qk(n, s) for s in range(4)] + [op_pv(pbC, dt, q0, 0), op_pv(pbC, dt, q0, 1), op_pv(pbC, dt, q0 + 1, 0), op_pv(pbC, dt, q0 + 1, 1)]
        dtn = dt + 2
        jv = i if dtn < 8 else i + 1
        vq = [op_vread(jv, dtn % 8, (n % 2), x) for x in range(2)]
        kt = n // 4
        ktn = kt + 1
        jk = i + 1 if ktn < 4 else i + 2
        kq = [op_kread(jk, ktn % 4, n % 4)]
        for m in range(8):
            isqk = m < 4
            if (isqk and do_qk) or (not isqk and do_pv):
                ops.append(mf[m])
            for f in slots[m]:
                if f[0] == 'e' or f[0] == 'c':
                    if 'noexp' in flags: continue
                    if n == 0:
                        ops.append(op_exp(15, int(f[1])) if f[0] == 'e' else op_cvt(pbC, 15, int(f[1])))
                    elif do_qk:
                        ops.append(op_exp(n - 1, int(f[1])) if f[0] == 'e' else op_cvt(pbN, n - 1, int(f[1])))
                elif f == 'v':
                    o = vq.pop(0)
                    if 'nolds' in flags: continue
                    if dtn < 8 or do_next: ops.append(o)
                elif f == 'k':
                    o = kq.pop(0)
                    if 'nolds' in flags: continue
                    if do_qk and (ktn < 4 or do_next): ops.append(o)
            if do_next and n == cfg['bar_group'] and m == cfg['bar_slot']:
                ops.append(Op('BARRIER', 'bar', tag=slot(i)))
            for k, (g, sl) in enumerate(cfg['dma']):
                if g == n and sl == m and 'nodma' not in flags:
                    late = g < cfg['bar_group']
                    if late and 'first' in flags: continue
                    if not late and not do_next: continue
                    if late and not do_qk: continue
                    if k == 0:
                        tile = (i + 4) if not late else (i + 3)
                        ops.append(op_s(f's_mov_b32 m0, s{28 + slot(tile)}'))
                        ops.append(op_s('s_nop 0'))
                    ops.append(op_dma(k))
                    if k == 3:
                        ops.append(op_s('s_add_u32 s27, s27, 16384'))
    return ops

def finalize(A, ops, pending_in, vm_wait):
    pend = list(pending_in)
    out = []
    for o in ops:
        if o.kind == 'bar':
            need = -1
            for idx, (w, tg) in enumerate(pend):
                if tg == o.tag: need = idx
            if need >= 0:
                cnt = len(pend) - 1 - need
                out.append(Op(f's_waitcnt vmcnt({vm_wait}) lgkmcnt({min(cnt,15)})', 'salu'))
                pend = pend[need + 1:]
            else:
                out.append(Op(f's_waitcnt vmcnt({vm_wait})', 'salu'))
            out.append(Op('s_barrier', 'salu'))
            continue
        if o.kind == 'mfma':
            need = -1
            for idx, (w, tg) in enumerate(pend):
                if w & o.rd: need = idx
            if need >= 0:
                cnt = len(pend) - 1 - need
                out.append(Op(f's_waitcnt lgkmcnt({min(cnt,15)})', 'salu'))
                pend = pend[need + 1:]
        if o.kind == 'lds':
            pend.append((frozenset(o.wr), o.tag))
        out.append(o)
    return out, pend

def check_hazards(ops):
    pos = 0
    last_mfma_w = {}; last_valu_w = {}; last_trans_w = {}
    for o in ops:
        if o.kind in ('valu', 'trans'):
            for r in o.rd | o.wr:
                if r in last_mfma_w and pos - last_mfma_w[r] - 1 < 8:
                    raise Exception(f'hazard mfma->valu {o.text} dist {pos-last_mfma_w[r]-1}')
            if o.kind == 'valu':
                for r in o.rd:
                    if r in last_trans_w and pos - last_trans_w[r] - 1 < 1:
                        raise Exception(f'hazard trans->valu {o.text}')
        if o.kind == 'mfma':
            for r in o.rd | o.wr:
                if r in last_valu_w and pos - last_valu_w[r] - 1 < 2:
                    raise Exception(f'hazard valu->mfma {o.text}')
            for r in o.rd:
                if r in last_mfma_w and pos - last_mfma_w[r] - 1 < 8:
                    raise Exception(f'hazard mfma->mfma ab {o.text}')
            for r in o.wr: last_mfma_w[r] = pos
        if o.kind in ('valu', 'trans'):
            for r in o.wr:
                last_valu_w[r] = pos
                if o.kind == 'trans': last_trans_w[r] = pos
                else: last_trans_w.pop(r, None)
        m = re.match(r's_nop (\d+)', o.text)
        pos += (int(m.group(1)) + 1) if m else 1

def gen_k2(A, cfg=None, name='attn_kernel', stamp=0, flags=()):
    cfg = cfg or DEFAULT
    A.raw(f'.globl {name}\n.p2align 8\n.type {name},@function')
    A.label(name)
    A(f'''
    s_cmp_ge_u32 s2, {NWG2}
    s_cbranch_scc1 L2_aux
    {'s_and_b32 s3, s2, 4' if 'xcdhalf' in flags else ''}
    {'s_and_b32 s3, s2, 8' if 'cuhalf' in flags else ''}
    {'s_cbranch_scc1 L2_done' if ('cuhalf' in flags or 'xcdhalf' in flags) else ''}
    s_load_dwordx2 s[4:5], s[0:1], 88
    {'s_memtime s[44:45]' if stamp else ''}
    {'s_memrealtime s[46:47]' if stamp else ''}
    v_lshrrev_b32 v1, 6, v0
    v_and_b32 v0, 63, v0
    s_mov_b32 s3, 0x33333334
    v_readfirstlane_b32 s26, v1
    s_mul_hi_u32 s24, s2, s3
    s_mul_i32 s3, s24, 5
    s_sub_u32 s25, s2, s3
    s_lshl_b32 s33, s26, 12
    v_lshlrev_b32 {vr(VDMA)}, 4, v0
    v_add_u32 {vr(VDMA)}, s33, {vr(VDMA)}
    s_mul_i32 s27, s25, {NIT*16384}
    s_add_u32 s28, s33, 0
    s_add_u32 s29, s33, 16384
    s_add_u32 s30, s33, 32768
    s_add_u32 s31, s33, 49152
    s_waitcnt lgkmcnt(0)
    s_add_u32 s8, s4, {WS_H1}
    s_addc_u32 s9, s5, 0
    s_mov_b32 s10, {N*256}
    s_mov_b32 s11, 0x20000
    s_add_u32 s12, s4, {WS_QF}
    s_addc_u32 s13, s5, 0
    s_mov_b32 s14, {392*8192}
    s_mov_b32 s15, 0x20000
    s_add_u32 s16, s4, {WS_OP}
    s_addc_u32 s17, s5, 0
    s_mov_b32 s18, {5*392*8192}
    s_mov_b32 s19, 0x20000
    s_add_u32 s20, s4, {WS_BND}
    s_addc_u32 s21, s5, 0
    s_mov_b32 s22, {WS_W23-WS_BND}
    s_mov_b32 s23, 0x20000
    ''')
    def dma_tile(j):
        A(f's_mov_b32 m0, s{28+slot(j)}')
        A('s_nop 0')
        for k in range(4): A(op_dma(k).text)
        A('s_add_u32 s27, s27, 16384')
    dma_tile(0)
    A(f'''
    s_lshl_b32 s34, s24, 4
    s_lshl_b32 s35, s26, 2
    s_add_u32 s34, s34, s35
    s_lshl_b32 s35, s34, 12
    v_lshlrev_b32 {vr(VT)}, 4, v0
    s_add_u32 s36, s35, 4096
    s_add_u32 s37, s35, 8192
    s_add_u32 s38, s35, 12288
    ''')
    for q in range(4):
        for s in range(4):
            A(f'buffer_load_dwordx4 {ar(QF+4*(q*4+s),4)}, {vr(VT)}, s[12:15], s{35+q} offen offset:{s*1024}')
    A(f's_lshl_b32 s39, s24, 10')
    A(f'buffer_load_dwordx4 {vr(VT+2,4)}, {vr(VT)}, s[20:23], s39 offen')
    dma_tile(1); dma_tile(2); dma_tile(3)
    T0, T1, T2, T3 = VT+8, VT+9, VT+10, VT+11
    A(f'''
    v_and_b32 {vr(T0)}, 7, v0
    v_lshlrev_b32 {vr(T0)}, 1, {vr(T0)}
    v_lshrrev_b32 {vr(T1)}, 4, v0
    v_xor_b32 {vr(T0)}, {vr(T0)}, {vr(T1)}
    v_and_b32 {vr(T1)}, 15, v0
    v_lshlrev_b32 {vr(T1)}, 8, {vr(T1)}
    ''')
    for s in range(4):
        A(f'v_xor_b32 {vr(T2)}, {4*s}, {vr(T0)}')
        A(f'v_lshl_add_u32 {vr(KADDR+s)}, {vr(T2)}, 4, {vr(T1)}')
    A(f'''
    v_lshrrev_b32 {vr(T0)}, 2, v0
    v_lshlrev_b32 {vr(T1)}, 8, {vr(T0)}
    v_and_b32 {vr(T0)}, 7, {vr(T0)}
    v_and_b32 {vr(T2)}, 3, v0
    v_lshl_add_u32 {vr(T1)}, {vr(T2)}, 3, {vr(T1)}
    ''')
    for dt in range(8):
        A(f'v_xor_b32 {vr(T3)}, {dt}, {vr(T0)}')
        A(f'v_lshl_add_u32 {vr(VADDR+dt)}, {vr(T3)}, 5, {vr(T1)}')
    A(f'v_mov_b32 {vr(LANE)}, v0')
    if stamp: A('v_mov_b32 v250, 0')
    for r in range(128):
        A(f'v_mov_b32 {vr(r)}, 0')
    A('s_waitcnt vmcnt(8)')
    A('s_barrier')
    pro = [op_kread(0, 0, s) for s in range(4)]
    it = build_iter(-1, cfg, do_qk=True, do_pv=False, do_next=True, flags=tuple(flags) + ('first', 'nodma'))
    it2 = []
    seen_first_tile = False
    for o in it:
        if o.kind == 'bar': continue
        it2.append(o)
    res = []
    nq = 0
    badoff = [f'offset:{slot(-1)*16384+u*8192+x*4096}' for u in range(2) for x in range(2)]
    for o in it2:
        if o.kind == 'mfma': nq += 1
        if o.kind in ('trans', 'valu') and nq <= 4: continue
        if o.text.startswith('ds_read_b64_tr') and any(o.text.endswith(b) for b in badoff): continue
        if o.kind in ('trans',) and o.text.endswith(vr(SB + 4 * (((nq - 1) // 4 - 1) % 4))):
            res.append(op_s('s_nop 7'))
        res.append(o)
    res.append(op_s('s_nop 7'))
    if 'nolds' in flags:
        res += [op_kread(0, 1, s) for s in range(4)] + [op_vread(0, dt, u, x) for dt in range(4) for u in range(2) for x in range(2)]
    if 'noexp' in flags:
        for pb in range(2):
            for n in range(16):
                if pb == 0 and n < 4:
                    res += [op_exp(n, r) for r in range(4)] + [op_s('s_nop 0')]
                res += [op_cvt(pb, n, h) for h in range(2)]
    pro_ops, pend = finalize(A, pro + res, [], 4)
    body = []
    first_p = OFFS
    _, pend_ss = finalize(A, build_iter(3, cfg, flags=flags), [], 4)
    pend_ss = [(w, -1) for w, tg in pend_ss]
    for o in pro_ops: A(o.text)
    A('s_mov_b32 s32, 9')
    A('s_waitcnt lgkmcnt(0)')
    if stamp: A('s_memtime s[48:49]\ns_memrealtime s[56:57]\ns_waitcnt lgkmcnt(0)')
    it0, _ = finalize(A, build_iter(0, cfg, flags=tuple(flags) + ('first',)), pend_ss, 4)
    for o in it0: A(o.text)
    A(f's_branch L2_body{(OFFS+1)%4}')
    A.raw('.p2align 6')
    A.label('L2_loop')
    allops = list(pro_ops) + it0
    for p in range(4):
        i = (p - OFFS) % 4
        A.label(f'L2_body{p}')
        ops, _ = finalize(A, build_iter(i, cfg, flags=flags), pend_ss, 4)
        for o in ops: A(o.text)
        body += ops
    if stamp == 2:
        A('s_memrealtime s[60:61]')
        A('s_waitcnt lgkmcnt(0)')
        A('v_mov_b32 v251, s60')
        A(f'v_cmp_eq_u32 vcc, s32, {vr(LANE)}')
        A('s_nop 1')
        A('v_cndmask_b32 v250, v250, v251, vcc')
    A('s_sub_u32 s32, s32, 1')
    A('s_cmp_ge_i32 s32, 0')
    A('s_cbranch_scc1 L2_loop')
    if stamp: A('s_memtime s[50:51]\ns_memrealtime s[58:59]\ns_waitcnt lgkmcnt(0)')
    last = build_iter(39 % 4, cfg, do_qk=False, do_pv=True, do_next=False, flags=flags)
    last2 = []
    for o in last:
        if o.kind == 'valu': last2.append(op_s('s_nop 0'))
        last2.append(o)
        if o.kind == 'valu': last2.append(op_s('s_nop 1'))
    lops, _ = finalize(A, last2, pend_ss, 4)
    for o in lops: A(o.text)
    check_hazards(allops + body + body + lops)
    A('s_nop 15')
    A(f'''
    v_and_b32 {vr(VT+2)}, 15, {vr(LANE)}
    v_lshlrev_b32 {vr(VT+2)}, 2, {vr(VT+2)}
    s_mul_i32 s40, s25, {NPAD*4}
    s_lshl_b32 s41, s34, 6
    s_add_u32 s40, s40, s41
    s_add_u32 s40, s40, {WS_L-WS_BND}
    s_add_u32 s41, s40, {WS_M-WS_L}
    v_mov_b32 {vr(VT+3)}, 0
    s_mov_b32 exec_lo, 0
    s_mov_b32 exec_hi, 0xffff0000
    ''')
    for q in range(4):
        A(f'buffer_store_dword {vr(O(7,q)+3)}, {vr(VT+2)}, s[20:23], s40 offen offset:{64*q}')
    A('s_mov_b64 exec, -1')
    A(f'v_lshlrev_b32 {vr(VT+4)}, 2, {vr(LANE)}')
    A(f'buffer_store_dword {vr(VT+3)}, {vr(VT+4)}, s[20:23], s41 offen')
    A(f'''
    s_mul_i32 s40, s25, {392*8192}
    s_add_u32 s40, s40, s35
    s_add_u32 s41, s40, 4096
    s_add_u32 s42, s40, 8192
    s_add_u32 s43, s40, 12288
    v_lshlrev_b32 {vr(VT+2)}, 4, {vr(LANE)}
    ''')
    for w in range(4):
        for q in range(4):
            d = 128 + 4 * (w * 4 + q)
            for h in range(2):
                b = O(2 * w + h, q)
                A(f'v_cvt_pk_bf16_f32 {vr(d+2*h)}, {vr(b)}, {vr(b+1)}')
                A(f'v_cvt_pk_bf16_f32 {vr(d+2*h+1)}, {vr(b+2)}, {vr(b+3)}')
            A(f'buffer_store_dwordx4 {vr(d,4)}, {vr(VT+2)}, s[16:19], s{40+q} offen offset:{w*1024}')
    if stamp:
        A('s_waitcnt vmcnt(0)')
        A('s_memtime s[52:53]')
        A('s_memrealtime s[54:55]')
        A('s_waitcnt lgkmcnt(0)')
        for i in range(16):
            A(f'v_mov_b32 {vr(i)}, s{44+i}')
        A(f's_lshl_b32 s40, s2, 2')
        A(f's_add_u32 s40, s40, s26')
        A(f's_lshl_b32 s41, s40, 8')
        A(f's_lshl_b32 s40, s40, 6')
        A(f's_add_u32 s40, s40, {WS_STAMP-WS_BND}')
        A(f's_mov_b32 s22, 0x7fffffff')
        A(f'v_lshlrev_b32 v20, 2, {vr(LANE)}')
        A(f's_add_u32 s41, s41, {WS_STAMP-WS_BND+0x40000}')
        A(f'buffer_store_dword v250, v20, s[20:23], s41 offen')
        A(f'v_mov_b32 v20, 0')
        A(f's_mov_b64 exec, 1')
        for i in range(4):
            A(f'buffer_store_dwordx4 v[{4*i}:{4*i+3}], v20, s[20:23], s40 offen offset:{16*i}')
    A.label('L2_done')
    A('s_endpgm')
    import w23
    w23.gen_w23(A)

from k2 import desc
def make(path, **kw):
    A = Asm()
    A.raw('; @launch kernel=attn_kernel grid=(245,1,1) block=(256,1,1) lds=65536')
    A.raw('.amdgcn_target "amdgcn-amd-amdhsa--gfx950"\n.text')
    gen_k2(A, **kw)
    A.raw('.section .rodata,"a"')
    A.raw(desc('attn_kernel', 384, 256))
    open(path, 'w').write(A.text())
if __name__ == '__main__':
    make('b_base.s', stamp=2)
```

```python
from asmlib import *
from layout import *
from k1 import srd, wave_scan_incl, f32bits
NWG3 = 196
CAP = 1024

def gen_k3(A, name='fin_kernel'):
    A.raw(f'.globl {name}\n.p2align 8\n.type {name},@function')
    A.label(name)
    OPR, L, M, X, DI = 16, 96, 101, 106, 122
    TA, TB = 123, 124
    ENT = 128
    HS = 176
    AF = 208
    SEL = 240
    VADDR = 244
    PC0, PC1 = 252, 253
    A(f'''
    s_cmp_ge_u32 s2, {NWG3}
    s_cbranch_scc1 L3_done
    s_load_dwordx2 s[4:5], s[0:1], 88
    s_load_dwordx2 s[6:7], s[0:1], 0
    s_load_dwordx2 s[44:45], s[0:1], 24
    s_load_dwordx2 s[46:47], s[0:1], 72
    v_lshrrev_b32 v1, 6, v0
    v_and_b32 v0, 63, v0
    s_nop 0
    v_readfirstlane_b32 s3, v1
    v_and_b32 v1, 15, v0
    v_lshrrev_b32 v2, 4, v0
    s_lshl_b32 s48, s2, 2
    s_add_u32 s48, s48, s3
    s_mul_i32 s49, s3, 24576
    s_add_u32 s49, s49, 65536
    v_mov_b32 v3, {NBIN*4}
    v_mul_u32_u24 v3, v3, v0        ; lane*NBIN*4
    s_lshl_b32 s50, s48, 2
    s_add_u32 s51, s50, {64*NBIN*4}
    v_lshlrev_b32 v4, 4, v0         ; lane*16
    s_waitcnt lgkmcnt(0)
    ''')
    srd(A, 8, 4, WS_TAB, NCH*NBIN*4)
    A(f'buffer_load_dword {vr(TA)}, v3, s[8:11], s50 offen')
    A(f'buffer_load_dword {vr(TB)}, v3, s[8:11], s51 offen')
    srd(A, 12, 4, WS_W23, 65536)
    srd(A, 16, 4, WS_OP, 5*784*4096)
    srd(A, 20, 4, WS_L, WS_W23-WS_L)
    srd(A, 24, 6, 0, N*256)
    srd(A, 28, 44, 0, N*2)
    srd(A, 32, 46, 0, N*256)
    srd(A, 36, 4, WS_EDGE, NCH*CH*4+256)
    srd(A, 40, 4, WS_H1, N*256)
    A('s_lshl_b32 s52, s48, 12')
    for s in range(5):
        if s > 0: A(f's_add_u32 s53, s52, {s*784*4096}')
        for w in range(4):
            A(f'buffer_load_dwordx4 {vr(OPR+16*s+4*w,4)}, v4, s[16:19], s{52 if s == 0 else 53} offen offset:{w*1024}')
    A('v_lshlrev_b32 v5, 2, v1')
    A('s_lshl_b32 s54, s48, 6')
    for s in range(5):
        A(f's_add_u32 s53, s54, {s*NPAD*4}')
        A(f'buffer_load_dword {vr(L+s)}, v5, s[20:23], s53 offen')
        A(f's_add_u32 s55, s54, {s*NPAD*4+WS_M-WS_L}')
        A(f'buffer_load_dword {vr(M+s)}, v5, s[20:23], s55 offen')
    A('v_lshlrev_b32 v6, 8, v1')
    A('v_lshl_add_u32 v6, v2, 4, v6')
    for w in range(4):
        A(f'buffer_load_dwordx4 {vr(X+4*w,4)}, v6, s[24:27], s52 offen offset:{w*64}')
    A('v_lshlrev_b32 v7, 1, v1')
    A('s_lshl_b32 s53, s48, 5')
    A(f'buffer_load_ushort {vr(DI)}, v7, s[28:31], s53 offen')
    A('s_lshl_b32 s53, s3, 14')
    for b in range(4):
        A('s_mov_b32 m0, s53')
        A('s_nop 0')
        for k in range(4):
            A(f'buffer_load_dwordx4 v4, s[12:15], s53 offen offset:{k*1024} lds')
        A('s_add_u32 s53, s53, 4096')
    nafter = 20 + 10 + 4 + 1 + 16
    A(f'''
    v_lshrrev_b32 v8, 2, v0
    v_lshlrev_b32 v9, 8, v8
    v_and_b32 v8, 7, v8
    v_and_b32 v10, 3, v0
    v_lshl_add_u32 v9, v10, 3, v9
    s_add_u32 s56, s49, 8192
    v_add_u32 v9, s56, v9
    ''')
    for dt in range(8):
        A(f'v_xor_b32 v10, {dt}, v8')
        A(f'v_lshl_add_u32 {vr(VADDR+dt)}, v10, 5, v9')
    A(f'''
    v_lshlrev_b32 v8, 1, v2
    v_xor_b32 v8, v8, v1
    v_lshlrev_b32 {vr(PC0)}, 4, v8
    v_xor_b32 {vr(PC1)}, 0x80, {vr(PC0)}
    v_bfe_u32 v8, v0, 2, 2
    v_lshlrev_b32 v8, 8, v8
    v_bfe_u32 v9, v0, 4, 1
    v_lshl_add_u32 v8, v9, 3, v8
    v_and_b32 v9, 3, v0
    v_lshl_add_u32 v8, v9, 1, v8
    s_add_u32 s57, s49, 4608
    v_add_u32 v11, s57, v8
    v_add_u32 v12, s57, v4
    v_lshlrev_b32 v13, 2, v2
    v_add_u32 v13, s49, v13         ; v13 = list + g*4
    v_lshlrev_b32 v14, 2, v0
    v_add_u32 v14, s49, v14
    v_mov_b32 v15, 0x3f80
    v_mov_b32 v125, 0
    v_mov_b32 v126, 0
    v_mov_b32 v127, 0
    v_lshlrev_b32 v254, 14, v0
    ''')
    for r in range(32): A(f'v_mov_b32 {vr(HS+r)}, 0')
    A(f's_waitcnt vmcnt({nafter})')
    A(f'''
    v_and_b32 v3, 0xffff, {vr(TA)}
    v_lshl_add_u32 v3, v3, 2, v254
    v_lshrrev_b32 {vr(TA)}, 16, {vr(TA)}
    v_and_b32 v5, 0xffff, {vr(TB)}
    v_lshl_add_u32 v5, v5, 2, v254
    v_add_u32 v5, {64*CH*4}, v5
    v_lshrrev_b32 {vr(TB)}, 16, {vr(TB)}
    ''')
    A.label('L3_pass')
    A('s_mov_b32 s58, 24')
    A.label('L3_retry')
    A(f'''
    v_min_u32 v7, s58, {vr(TA)}
    v_min_u32 v8, s58, {vr(TB)}
    v_lshl_or_b32 v9, v8, 16, v7
    v_mov_b32 v10, v9
    ''')
    wave_scan_incl(A, 10)
    A(f'''
    s_nop 0
    v_readlane_b32 s59, v10, 63
    s_and_b32 s60, s59, 0xffff      ; TA
    s_lshr_b32 s61, s59, 16
    s_add_u32 s61, s61, s60         ; T
    s_cmp_le_u32 s61, {CAP}
    s_cbranch_scc1 L3_ok
    s_mov_b32 s58, 8
    s_branch L3_retry
    ''')
    A.label('L3_ok')
    A(f'''
    v_sub_u32 v10, v10, v9
    v_and_b32 v9, 0xffff, v10
    v_lshlrev_b32 v9, 2, v9
    v_add_u32 v9, s49, v9
    v_lshrrev_b32 v10, 16, v10
    v_add_u32 v10, s60, v10
    v_lshlrev_b32 v10, 2, v10
    v_add_u32 v10, s49, v10
    ''')
    for st, (cnt, ad) in enumerate(((7, 3), (8, 5))):
        for qd in range(6):
            A(f'v_cmp_lt_u32 vcc, {4*qd}, v{cnt}')
            A(f's_mov_b64 s[{64+2*(st*6+qd)}:{65+2*(st*6+qd)}], vcc')
            A('s_mov_b64 exec, vcc')
            A(f's_cbranch_execz L3_ld{st}')
            A(f'buffer_load_dwordx4 {vr(ENT+24*st+4*qd,4)}, v{ad}, s[36:39], 0 offen offset:{16*qd}')
        A.label(f'L3_ld{st}')
        A('s_mov_b64 exec, -1')
    A('s_waitcnt vmcnt(0)')
    for st, (cnt, ad) in enumerate(((7, 9), (8, 10))):
        for qd in range(5, -1, -1):
            A(f'v_cmp_lt_u32 vcc, {4*qd}, v{cnt}')
            A('s_mov_b64 exec, vcc')
            A(f's_cbranch_execz L3_w{st}_{qd}')
            for j in range(3, -1, -1):
                A(f'ds_write_b32 v{ad}, {vr(ENT+24*st+4*qd+j)} offset:{4*(4*qd+j)}')
            A.label(f'L3_w{st}_{qd}')
            A('s_mov_b64 exec, -1')
    A(f'''
    v_sub_u32 {vr(TA)}, {vr(TA)}, v7
    v_sub_u32 {vr(TB)}, {vr(TB)}, v8
    v_lshl_add_u32 v3, v7, 2, v3
    v_lshl_add_u32 v5, v8, 2, v5
    s_add_u32 s62, s61, 31
    s_lshr_b32 s62, s62, 5          ; ngroups
    s_cmp_eq_u32 s62, 0
    s_cbranch_scc1 L3_gdone
    v_mov_b32 v7, v13
    v_mov_b32 v8, v14
    v_mov_b32 v9, v0
    s_mov_b32 s63, 0                ; k
    ''')
    E8, VO = ENT, ENT + 8
    def issue(bufs):
        for i in range(4):
            A(f'ds_read2_b32 {vr(E8+2*i,2)}, v7 offset0:{8*i} offset1:{8*i+4}')
        A('v_add_u32 v7, 128, v7')
        A(f's_mov_b32 m0, {bufs}')
        A('s_waitcnt lgkmcnt(0)')
        for i in range(8):
            A(f'v_bitop3_b32 {vr(VO+i)}, {vr(E8+i)}, -16, {vr(PC0 if i%2==0 else PC1)} bitop3:0x6a')
            A(f'buffer_load_dwordx4 {vr(VO+i)}, s[40:43], 0 offen lds')
            if i < 7: A('s_add_u32 m0, m0, 1024')
    def consume(boff, vm):
        A(f'ds_write_b128 v12, v[124:127]' if False else 'ds_read_b32 v10, v8')
        A(f'v_mov_b32 {vr(SEL)}, 0\nv_mov_b32 {vr(SEL+1)}, 0\nv_mov_b32 {vr(SEL+2)}, 0\nv_mov_b32 {vr(SEL+3)}, 0')
        A(f'ds_write_b128 v12, {vr(SEL,4)}')
        A('v_cmp_gt_u32 vcc, s61, v9')
        A('s_mov_b32 exec_lo, vcc_lo')
        A('s_mov_b32 exec_hi, 0')
        A('s_waitcnt lgkmcnt(1)')
        A('v_and_b32 v10, 15, v10')
        A('v_lshl_add_u32 v10, v10, 4, v11')
        A('ds_write_b16 v10, v15')
        A('s_mov_b64 exec, -1')
        A(f'ds_read_b128 {vr(SEL,4)}, v12')
        A('v_add_u32 v8, 128, v8')
        A('v_add_u32 v9, 32, v9')
        A(f's_waitcnt vmcnt({vm})')
        for dt in range(8):
            for x in range(2):
                A(f'ds_read_b64_tr_b16 {vr(AF+4*dt+2*x,2)}, {vr(VADDR+dt)} offset:{boff+x*4096}')
        for dt in range(8):
            A(f's_waitcnt lgkmcnt({14-2*dt})')
            A(f'v_mfma_f32_16x16x32_bf16 {vr(HS+4*dt,4)}, {vr(AF+4*dt,4)}, {vr(SEL,4)}, {vr(HS+4*dt,4)}')
    A('s_add_u32 s88, s56, 8192')
    issue('s56')
    A.label('L3_gloop')
    issue('s88')
    consume(0, 8)
    A('s_add_u32 s63, s63, 1')
    A('s_cmp_ge_u32 s63, s62')
    A('s_cbranch_scc1 L3_gdone')
    issue('s56')
    consume(8192, 8)
    A('s_add_u32 s63, s63, 1')
    A('s_cmp_lt_u32 s63, s62')
    A('s_cbranch_scc1 L3_gloop')
    A.label('L3_gdone')
    A(f'''
    s_waitcnt vmcnt(0)
    v_or_b32 v7, {vr(TA)}, {vr(TB)}
    v_cmp_ne_u32 vcc, 0, v7
    s_cbranch_vccnz L3_pass
    ''')
    A(f'v_max3_f32 v7, {vr(M)}, {vr(M+1)}, {vr(M+2)}')
    A(f'v_max3_f32 v7, v7, {vr(M+3)}, {vr(M+4)}')
    for s in range(5):
        A(f'v_sub_f32 {vr(M+s)}, {vr(M+s)}, v7')
    for s in range(5):
        A(f'v_exp_f32 {vr(M+s)}, {vr(M+s)}')
    A('s_nop 0')
    A(f'v_mul_f32 v7, {vr(M)}, {vr(L)}')
    for s in range(1, 5):
        A(f'v_fmac_f32 v7, {vr(M+s)}, {vr(L+s)}')
    A('v_rcp_f32 v7, v7')
    for s in range(5):
        A(f'v_lshrrev_b32 {vr(L+s)}, 16, {vr(M+s)}')
        A(f'v_and_b32 {vr(M+s)}, 0xffff0000, {vr(M+s)}')
    G = AF
    for s in range(5):
        for k in range(16):
            src = OPR + 16 * s + k
            c0 = '0' if s == 0 else vr(G + 2 * k)
            c1 = '0' if s == 0 else vr(G + 2 * k + 1)
            A(f'v_dot2_f32_bf16 {vr(G+2*k)}, {vr(src)}, {vr(L+s)}, {c0}')
            A(f'v_dot2_f32_bf16 {vr(G+2*k+1)}, {vr(src)}, {vr(M+s)}, {c1}')
    A('s_nop 2')
    BF = 128
    for k in range(32):
        A(f'v_mul_f32 {vr(G+k)}, {vr(G+k)}, v7')
    for k in range(16):
        A(f'v_cvt_pk_bf16_f32 {vr(BF+k)}, {vr(G+2*k)}, {vr(G+2*k+1)}')
    A(f'v_lshlrev_b32 {vr(DI)}, 16, {vr(DI)}')
    for k in range(32):
        A(f'v_mul_f32 {vr(HS+k)}, {vr(HS+k)}, {vr(DI)}')
    for k in range(16):
        A(f'v_cvt_pk_bf16_f32 {vr(BF+16+k)}, {vr(HS+2*k)}, {vr(HS+2*k+1)}')
    A('s_barrier')
    Y = 16
    WB = [160, 192]
    def wreads(et):
        for ks in range(8):
            A(f'ds_read_b128 {vr(WB[et%2]+4*ks,4)}, v4 offset:{(et*8+ks)*1024}')
    wreads(0)
    for et in range(8):
        if et < 7: wreads(et + 1)
        A(f's_waitcnt lgkmcnt({8 if et < 7 else 0})')
        for ks in range(8):
            c = '0' if ks == 0 else vr(Y+4*et, 4)
            A(f'v_mfma_f32_16x16x32_bf16 {vr(Y+4*et,4)}, {vr(WB[et%2]+4*ks,4)}, {vr(BF+4*ks,4)}, {c}')
    A('s_nop 7')
    for w in range(4):
        for i in range(4):
            xr = X + 4 * w + i
            y = Y + 8 * w + 2 * i
            A(f'v_lshlrev_b32 v7, 16, {vr(xr)}')
            A(f'v_and_b32 v8, 0xffff0000, {vr(xr)}')
            A(f'v_add_f32 v7, v7, {vr(y)}')
            A(f'v_add_f32 v8, v8, {vr(y+1)}')
            A(f'v_cvt_pk_bf16_f32 {vr(xr)}, v7, v8')
        A(f'buffer_store_dwordx4 {vr(X+4*w,4)}, v6, s[32:35], s52 offen offset:{w*64}')
    A.label('L3_done')
    A('s_endpgm')
```

```python
N = 12500
NPAD = 12544
E = 400000
NWG2 = 245
WS_H1 = 0
WS_QF = 0x400000
WS_BND = 0x800000
WS_L = 0x810000
WS_M = 0x890000
WS_FLAG = 0x900000
WS_W23 = 0x910000
WS_TAB = 0x940000
WS_EDGE = 0xA00000
WS_OP = 0x1000000
WS_STAMP = 0xE00000
NCH = 196
CH = 2048
NBIN = 784
NH = 11
CHB = 36864
CHS = 39 * 4096
```

```python
from asmlib import *
from layout import *
from k1 import srd, red_g, bcast_g3, f32bits, BETA
import math

def gen_w23(A):
    A.label('L2_aux')
    A(f'''
    s_cmp_ge_u32 s2, {NWG2+2}
    s_cbranch_scc1 L2_done
    s_load_dwordx2 s[4:5], s[0:1], 88
    s_load_dwordx2 s[6:7], s[0:1], 64
    s_load_dwordx2 s[24:25], s[0:1], 56
    s_load_dwordx2 s[26:27], s[0:1], 32
    v_lshrrev_b32 v1, 6, v0
    v_and_b32 v0, 63, v0
    s_nop 0
    v_readfirstlane_b32 s3, v1
    v_and_b32 v2, 15, v0
    v_lshrrev_b32 v3, 4, v0
    s_sub_u32 s28, s2, {NWG2}
    s_waitcnt lgkmcnt(0)
    s_cmp_eq_u32 s28, 0
    s_cselect_b32 s24, s24, s26
    s_cselect_b32 s25, s25, s27
    ''')
    srd(A, 8, 6, 0, 32768)
    srd(A, 12, 24, 0, 32768)
    srd(A, 16, 4, WS_W23, 65536)
    A('''
    v_lshlrev_b32 v5, 1, v3
    v_xor_b32 v5, v5, v2
    v_lshlrev_b32 v5, 4, v5
    v_lshl_add_u32 v5, v3, 8, v5
    v_xor_b32 v6, 0x80, v5
    s_lshl_b32 s30, s3, 13
    s_add_u32 s31, s30, 4096
    ''')
    for half in range(2):
        A(f's_mov_b32 m0, s{30+half}')
        A('s_nop 0')
        for ii in range(4):
            v = 'v5' if (ii >> 1) == 0 else 'v6'
            A(f'buffer_load_dwordx4 {v}, s[8:11], s{30+half} offen offset:{ii*1024} lds')
    AF = 128
    A('v_lshlrev_b32 v4, 8, v2')
    A('v_lshl_add_u32 v4, v3, 4, v4')
    for dt in range(8):
        A(f's_mov_b32 s32, {dt*4096}')
        for s in range(4):
            A(f'buffer_load_dwordx4 {vr(AF+16*dt+4*s,4)}, v4, s[12:15], s32 offen offset:{64*s}')
    A('''
    v_bfe_u32 v26, v0, 2, 2
    v_and_b32 v27, 1, v3
    v_lshl_add_u32 v27, v27, 2, v26
    v_lshlrev_b32 v27, 1, v27
    v_and_b32 v28, 3, v0
    v_xor_b32 v27, v27, v28
    v_lshl_add_u32 v26, v3, 3, v26
    v_lshlrev_b32 v26, 8, v26
    s_lshl_b32 s33, s3, 2
    v_xor_b32 v28, s33, v27
    v_lshl_add_u32 v7, v28, 4, v26
    s_waitcnt vmcnt(0)
    s_barrier
    ''')
    BFR = 32
    for h in range(2):
        for s in range(4):
            for x in range(2):
                A(f'ds_read_b64_tr_b16 {vr(BFR+16*h+4*s+2*x,2)}, v7 offset:{s*8192+x*1024+8*h}')
    A('s_waitcnt lgkmcnt(0)')
    C = 64
    for h in range(2):
        for dt in range(8):
            for s in range(4):
                d = C + 32 * h + 4 * dt
                c = '0' if s == 0 else vr(d, 4)
                A(f'v_mfma_f32_16x16x32_bf16 {vr(d,4)}, {vr(AF+16*dt+4*s,4)}, {vr(BFR+16*h+4*s,4)}, {c}')
    A('s_nop 7')
    A('v_cmp_eq_u32 vcc, 3, v3')
    A('v_lshlrev_b32 v27, 4, v0')
    A('s_lshl_b32 s33, s3, 14')
    A('s_lshl_b32 s34, s28, 12')
    A('s_add_u32 s33, s33, s34')
    A('s_add_u32 s34, s33, 8192')
    for h in range(2):
        b = C + 32 * h
        A(f'v_add_f32 v24, {vr(b)}, {vr(b+1)}')
        for k in range(2, 32):
            A(f'v_add_f32 v24, v24, {vr(b+k)}')
        red_g(A, 24, 25)
        bcast_g3(A, 26, b + 31, 25)
        A(f'v_mul_f32 v24, {hex(f32bits(1/math.sqrt(128)))}, v24')
        A(f'v_sub_f32 v24, v26, v24')
        A(f'v_mul_f32 v24, {hex(f32bits(BETA))}, v24')
        for k in range(32):
            A(f'v_add_f32 {vr(b+k)}, {vr(b+k)}, v24')
        A(f'v_cndmask_b32 {vr(b+31)}, {vr(b+31)}, 0, vcc')
        for w in range(4):
            for i in range(4):
                A(f'v_cvt_pk_bf16_f32 {vr(8+4*w+i if h == 0 else 32+4*w+i)}, {vr(b+8*w+2*i)}, {vr(b+8*w+2*i+1)}')
            A(f'buffer_store_dwordx4 {vr(8+4*w if h == 0 else 32+4*w,4)}, v27, s[16:19], s{33+h} offen offset:{w*1024}')
    A('s_endpgm')
```

```python
import sys
from asmlib import *
from layout import *
import k1, k2b, k3
from k2 import desc
HDR = open('gather_scatter__hybrid_graph_tf_graphgps__graph.s.ref').read().split('; Override launch')[0]
def make(path, stamp=0, **kw):
    A = Asm()
    A.raw(HDR.rstrip('\n'))
    A.raw('; @launch kernel=prep_kernel grid=(294,1,1) block=(256,1,1) lds=65536')
    A.raw('; @launch kernel=attn_kernel grid=(247,1,1) block=(256,1,1) lds=65536')
    A.raw('; @launch kernel=fin_kernel grid=(196,1,1) block=(256,1,1) lds=163840')
    A.raw('.amdgcn_target "amdgcn-amd-amdhsa--gfx950"\n.text')
    k1.gen_k1(A)
    k2b.gen_k2(A, stamp=stamp, **kw)
    k3.gen_k3(A)
    A.raw('.section .rodata,"a"')
    A.raw(desc('prep_kernel', 256, 256))
    A.raw(desc('attn_kernel', 384, 256))
    A.raw(desc('fin_kernel', 256, 256, 96))
    open(path, 'w').write(A.text())
if __name__ == '__main__':
    make(sys.argv[1] if len(sys.argv) > 1 else 'all.s')
```

```python
class Asm:
    def __init__(self):
        self.lines = []
    def __call__(self, s):
        for l in s.strip('\n').split('\n'):
            self.lines.append('    ' + l.strip())
    def label(self, name):
        self.lines.append(name + ':')
    def raw(self, s):
        self.lines.append(s)
    def comment(self, s):
        self.lines.append('    ; ' + s)
    def text(self):
        return '\n'.join(self.lines) + '\n'

def vr(b, n=1):
    return f'v{b}' if n == 1 else f'v[{b}:{b+n-1}]'
def ar(b, n=1):
    return f'a{b}' if n == 1 else f'a[{b}:{b+n-1}]'
def sr(b, n=1):
    return f's{b}' if n == 1 else f's[{b}:{b+n-1}]'

STAMP_ON = False
def stamp(A, idx):
    if STAMP_ON: A(f's_memrealtime s[{70+2*idx}:{71+2*idx}]')
def stamp_flush(A, wsreg, off, waveid_sreg, n=12):
    if not STAMP_ON: return
    A('s_waitcnt vmcnt(0)')
    A(f's_memrealtime s[{70+2*(n-1)}:{71+2*(n-1)}]')
    A('s_waitcnt lgkmcnt(0)')
    A(f's_add_u32 s96, s{wsreg}, {off}')
    A(f's_addc_u32 s97, s{wsreg+1}, 0')
    A('s_mov_b32 s98, 0x100000')
    A('s_mov_b32 s99, 0x20000')
    A('s_lshl_b32 s100, s2, 2')
    A(f's_add_u32 s100, s100, s{waveid_sreg}')
    A('s_lshl_b32 s100, s100, 6')
    A('s_mov_b64 exec, -1')
    for i in range(n): A(f'v_mov_b32 v{i}, s{70+2*i}')
    A('v_mov_b32 v16, 0')
    A('s_mov_b64 exec, 1')
    for i in range(0, n, 4):
        A(f'buffer_store_dwordx4 v[{i}:{i+3}], v16, s[96:99], s100 offen offset:{4*i}')

PREFETCH = True
def code_prefetch(A, tag, start_label, end_label, s_pair, s_idx, s_tmp, v_lane16, v_dst):
    if not PREFETCH: return
    A(f's_getpc_b64 s[{s_pair}:{s_pair+1}]')
    A.label(f'Lpf_{tag}')
    A(f's_sub_u32 s{s_pair}, s{s_pair}, Lpf_{tag}-{start_label}')
    A(f's_subb_u32 s{s_pair+1}, s{s_pair+1}, 0')
    A(f's_lshl_b32 s{s_tmp}, s{s_idx}, 10')
    A(f's_min_u32 s{s_tmp}, s{s_tmp}, {end_label}-{start_label}-1024')
    A(f's_add_u32 s{s_pair}, s{s_pair}, s{s_tmp}')
    A(f's_addc_u32 s{s_pair+1}, s{s_pair+1}, 0')
    A(f'global_load_dwordx4 v[{v_dst}:{v_dst+3}], v{v_lane16}, s[{s_pair}:{s_pair+1}]')
```

```python
from asmlib import *
import asmlib
from layout import *
import math, struct

def f32bits(x): return struct.unpack('<I', struct.pack('<f', x))[0]
BETA = (2/math.sqrt(128))/(2-2/math.sqrt(128))
CSC = math.log2(math.e)/math.sqrt(128)
NLN = 196
K1_PF_END = 'attn_kernel'
NAUX = 4

def srd(A, s, base, off, size):
    A(f's_add_u32 s{s}, s{base}, {off}')
    A(f's_addc_u32 s{s+1}, s{base+1}, 0')
    A(f's_mov_b32 s{s+2}, {size}')
    A(f's_mov_b32 s{s+3}, 0x20000')

def red_g(A, v, t):
    A(f'v_mov_b32 {vr(t)}, {vr(v)}')
    A('s_nop 1')
    A(f'v_permlane16_swap_b32 {vr(v)}, {vr(t)}')
    A(f'v_add_f32 {vr(v)}, {vr(v)}, {vr(t)}')
    A(f'v_mov_b32 {vr(t)}, {vr(v)}')
    A('s_nop 1')
    A(f'v_permlane32_swap_b32 {vr(v)}, {vr(t)}')
    A(f'v_add_f32 {vr(v)}, {vr(v)}, {vr(t)}')

def bcast_g3(A, dst, src, t):
    A(f'v_mov_b32 {vr(t)}, {vr(src)}')
    A(f'v_mov_b32 {vr(dst)}, {vr(src)}')
    A('s_nop 1')
    A(f'v_permlane16_swap_b32 {vr(t)}, {vr(dst)}')
    A(f'v_mov_b32 {vr(t)}, {vr(dst)}')
    A('s_nop 1')
    A(f'v_permlane32_swap_b32 {vr(t)}, {vr(dst)}')

def wave_scan_incl(A, v):
    for sh in (1, 2, 4, 8):
        A('s_nop 1')
        A(f'v_add_u32_dpp {vr(v)}, {vr(v)}, {vr(v)} row_shr:{sh} row_mask:0xf bank_mask:0xf')
    A('s_nop 1')
    A(f'v_add_u32_dpp {vr(v)}, {vr(v)}, {vr(v)} row_bcast:15 row_mask:0xa bank_mask:0xf')
    A('s_nop 1')
    A(f'v_add_u32_dpp {vr(v)}, {vr(v)}, {vr(v)} row_bcast:31 row_mask:0xc bank_mask:0xf')

SC = ' sc1'
def gen_k1(A, name='prep_kernel'):
    A.raw(f'.globl {name}\n.p2align 8\n.type {name},@function')
    A.label(name)
    for i in range(12): asmlib.stamp(A, i)
    A(f'''
    s_cmp_ge_u32 s2, {NLN+NCH+NAUX}
    s_cbranch_scc1 L1_done
    s_load_dwordx2 s[4:5], s[0:1], 88
    v_lshrrev_b32 v1, 6, v0
    v_and_b32 v100, 63, v0
    v_lshlrev_b32 v100, 4, v100
    v_readfirstlane_b32 s50, v1
    s_lshr_b32 s51, s2, 3
    s_lshl_b32 s51, s51, 2
    s_add_u32 s50, s50, s51
    ''')
    asmlib.code_prefetch(A, 'k1', name, K1_PF_END, 52, 50, 51, 100, 104)
    A(f'''
    s_cmp_lt_u32 s2, {NAUX}
    s_cbranch_scc1 L1_aux
    s_cmp_ge_u32 s2, {NAUX+NLN}
    s_cbranch_scc1 L1_bin
    s_load_dwordx2 s[6:7], s[0:1], 0
    s_load_dwordx4 s[24:27], s[0:1], 40
    v_lshrrev_b32 v1, 6, v0
    v_and_b32 v0, 63, v0
    s_nop 0
    v_readfirstlane_b32 s3, v1
    ''')
    A(f'''
    v_and_b32 v2, 15, v0
    v_lshrrev_b32 v3, 4, v0
    s_sub_u32 s28, s2, {NAUX}
    s_lshl_b32 s28, s28, 2
    s_add_u32 s28, s28, s3          ; qtile16
    s_lshl_b32 s29, s28, 12
    v_lshlrev_b32 v4, 8, v2
    v_lshl_add_u32 v4, v3, 4, v4    ; i*256 + g*16
    s_waitcnt lgkmcnt(0)
    ''')
    srd(A, 8, 6, 0, N*256)
    srd(A, 12, 24, 0, 32768)
    srd(A, 16, 26, 0, 32768)
    X = 8
    asmlib.stamp(A, 1)
    for s in range(4):
        A(f'buffer_load_dwordx4 {vr(X+4*s,4)}, v4, s[8:11], s29 offen offset:{64*s}')
    A('''
    v_lshlrev_b32 v5, 1, v3
    v_xor_b32 v5, v5, v2
    v_lshlrev_b32 v5, 4, v5
    v_lshl_add_u32 v5, v3, 8, v5    ; g*256 + ((p^(g<<1))<<4)
    v_xor_b32 v6, 0x80, v5
    s_lshl_b32 s30, s3, 13          ; w*8192
    s_add_u32 s31, s30, 4096
    ''')
    for mat in range(2):
        for half in range(2):
            A(f's_add_u32 s32, s{30+half}, {mat*32768}')
            A('s_mov_b32 m0, s32')
            A('s_nop 0')
            for ii in range(4):
                v = 'v5' if (ii >> 1) == 0 else 'v6'
                A(f'buffer_load_dwordx4 {v}, s[{12+4*mat}:{15+4*mat}], s{30+half} offen offset:{ii*1024} lds')
    srd(A, 20, 4, WS_H1, N*256)
    srd(A, 36, 4, WS_QF, 784*4096)
    srd(A, 40, 4, WS_BND, NPAD*4)
    F = 32
    asmlib.stamp(A, 2)
    A('s_waitcnt vmcnt(16)')
    asmlib.stamp(A, 3)
    for k in range(16):
        A(f'v_lshlrev_b32 {vr(F+2*k)}, 16, {vr(X+k)}')
        A(f'v_and_b32 {vr(F+2*k+1)}, 0xffff0000, {vr(X+k)}')
    S, T = 24, 25
    A(f'v_add_f32 {vr(S)}, {vr(F)}, {vr(F+1)}')
    A(f'v_add_f32 {vr(26)}, {vr(F+2)}, {vr(F+3)}')
    for k in range(4, 32, 2):
        A(f'v_add_f32 {vr(S)}, {vr(S)}, {vr(F+k)}')
        A(f'v_add_f32 {vr(26)}, {vr(26)}, {vr(F+k+1)}')
    A(f'v_add_f32 {vr(S)}, {vr(S)}, {vr(26)}')
    red_g(A, S, T)
    A(f'v_mul_f32 {vr(S)}, {hex(f32bits(1/128))}, {vr(S)}')
    for k in range(32):
        A(f'v_sub_f32 {vr(F+k)}, {vr(F+k)}, {vr(S)}')
    A(f'v_mul_f32 {vr(S)}, {vr(F)}, {vr(F)}')
    A(f'v_mul_f32 {vr(26)}, {vr(F+1)}, {vr(F+1)}')
    for k in range(2, 32, 2):
        A(f'v_fmac_f32 {vr(S)}, {vr(F+k)}, {vr(F+k)}')
        A(f'v_fmac_f32 {vr(26)}, {vr(F+k+1)}, {vr(F+k+1)}')
    A(f'v_add_f32 {vr(S)}, {vr(S)}, {vr(26)}')
    red_g(A, S, T)
    A(f'v_mov_b32 {vr(T)}, {hex(f32bits(1e-5))}')
    A(f'v_fmac_f32 {vr(T)}, {hex(f32bits(1/128))}, {vr(S)}')
    A(f'v_rsq_f32 {vr(S)}, {vr(T)}')
    A('s_nop 0')
    for k in range(32):
        A(f'v_mul_f32 {vr(F+k)}, {vr(F+k)}, {vr(S)}')
    HB = 8
    for k in range(16):
        A(f'v_cvt_pk_bf16_f32 {vr(HB+k)}, {vr(F+2*k)}, {vr(F+2*k+1)}')
    bcast_g3(A, S, F+31, T)
    A(f'v_mul_f32 {vr(S)}, {hex(f32bits(BETA))}, {vr(S)}')
    for k in range(32):
        A(f'v_add_f32 {vr(F+k)}, {vr(F+k)}, {vr(S)}')
    A(f'v_cmp_eq_u32 vcc, 3, v3')
    A('s_nop 1')
    A(f'v_cndmask_b32 {vr(F+31)}, {vr(F+31)}, 1.0, vcc')
    H = 64
    for k in range(16):
        A(f'v_cvt_pk_bf16_f32 {vr(H+k)}, {vr(F+2*k)}, {vr(F+2*k+1)}')
    A('''
    v_and_b32 v26, 7, v2
    v_lshlrev_b32 v26, 1, v26
    v_xor_b32 v26, v26, v3
    v_lshlrev_b32 v27, 8, v2
    ''')
    for s in range(4):
        A(f'v_xor_b32 v28, {4*s}, v26')
        A(f'v_lshl_add_u32 {vr(80+s)}, v28, 4, v27')
        A(f'buffer_store_dwordx4 {vr(H+4*s,4)}, {vr(80+s)}, s[20:23], s29 offen{SC}')
    A('''
    v_bfe_u32 v26, v0, 2, 2         ; r
    v_and_b32 v27, 1, v3
    v_lshl_add_u32 v27, v27, 2, v26
    v_lshlrev_b32 v27, 1, v27       ; f
    v_and_b32 v28, 3, v0            ; c
    v_xor_b32 v27, v27, v28         ; c ^ f
    v_lshl_add_u32 v26, v3, 3, v26  ; 8g + r
    v_lshlrev_b32 v26, 8, v26
    ''')
    TA = 84
    for w in range(4):
        A(f'v_xor_b32 v28, {4*w}, v27')
        A(f'v_lshl_add_u32 {vr(TA+w)}, v28, 4, v26')
    A('''
    v_lshrrev_b32 v26, 2, v2
    v_lshlrev_b32 v26, 3, v26
    v_and_b32 v28, 3, v2
    v_add_u32 v26, v26, v28
    v_lshlrev_b32 v26, 8, v26       ; (8*(rho/4)+rho%4)*256
    v_and_b32 v27, 7, v2
    v_lshlrev_b32 v27, 1, v27
    v_xor_b32 v27, v27, v3
    ''')
    TB = 88
    for w in range(4):
        A(f'v_xor_b32 v28, {4*w}, v27')
        A(f'v_lshl_add_u32 {vr(TB+w)}, v28, 4, v26')
    asmlib.stamp(A, 4)
    A('s_waitcnt vmcnt(4)')
    A('s_barrier')
    asmlib.stamp(A, 5)
    AC = 96
    AF = 128
    def g1_reads(et):
        for s in range(4):
            for x in range(2):
                A(f'ds_read_b64_tr_b16 {vr(AF+16*et+4*s+2*x,2)}, {vr(TA+et//2)} offset:{s*8192+x*1024+8*(et%2)}')
    g1_reads(0); g1_reads(1)
    for et in range(8):
        A(f's_waitcnt lgkmcnt({8 if et < 7 else 0})')
        if et + 2 < 8:
            pass
        for s in range(4):
            c = '0' if s == 0 else vr(AC+4*et, 4)
            A(f'v_mfma_f32_16x16x32_bf16 {vr(AC+4*et,4)}, {vr(AF+16*et+4*s,4)}, {vr(HB+4*s,4)}, {c}')
        if et + 2 < 8:
            g1_reads(et + 2)
    def g2_reads(dt):
        for w in range(4):
            A(f'ds_read_b128 {vr(AF+16*dt+4*w,4)}, {vr(TB+w)} offset:{32768+(dt//2)*8192+(dt%2)*1024}')
    g2_reads(0); g2_reads(1); g2_reads(2)
    QB = 8
    asmlib.stamp(A, 6)
    for w in range(4):
        for h in range(2):
            b = AC + 4 * (2 * w + h)
            A(f'v_cvt_pk_bf16_f32 {vr(QB+4*w+2*h)}, {vr(b)}, {vr(b+1)}')
            A(f'v_cvt_pk_bf16_f32 {vr(QB+4*w+2*h+1)}, {vr(b+2)}, {vr(b+3)}')
    TC = 32
    A('s_nop 1')
    for dt in range(8):
        rem = min(2, 7 - dt)
        A(f's_waitcnt lgkmcnt({4*rem})')
        for w in range(4):
            c = '0' if w == 0 else vr(TC+4*dt, 4)
            A(f'v_mfma_f32_16x16x32_bf16 {vr(TC+4*dt,4)}, {vr(AF+16*dt+4*w,4)}, {vr(QB+4*w,4)}, {c}')
        if dt + 3 < 8:
            g2_reads(dt + 3)
    A('s_nop 7')
    asmlib.stamp(A, 8)
    A(f'v_add_f32 {vr(S)}, {vr(TC)}, {vr(TC+1)}')
    A(f'v_add_f32 {vr(26)}, {vr(TC+2)}, {vr(TC+3)}')
    for k in range(4, 32, 2):
        A(f'v_add_f32 {vr(S)}, {vr(S)}, {vr(TC+k)}')
        A(f'v_add_f32 {vr(26)}, {vr(26)}, {vr(TC+k+1)}')
    A(f'v_add_f32 {vr(S)}, {vr(S)}, {vr(26)}')
    red_g(A, S, T)
    bcast_g3(A, 26, TC+31, T)
    A(f'v_mul_f32 {vr(S)}, {hex(f32bits(1/math.sqrt(128)))}, {vr(S)}')
    A(f'v_sub_f32 {vr(S)}, {vr(26)}, {vr(S)}')
    A(f'v_mul_f32 {vr(S)}, {hex(f32bits(BETA*CSC))}, {vr(S)}')
    A(f's_mov_b32 s33, {hex(f32bits(CSC))}')
    for k in range(32):
        A(f'v_fma_f32 {vr(TC+k)}, {vr(TC+k)}, s33, {vr(S)}')
    A(f'v_cndmask_b32 {vr(TC+31)}, {vr(TC+31)}, 0, vcc')
    A(f'v_lshlrev_b32 v27, 4, v0')
    for w in range(4):
        for i in range(4):
            A(f'v_cvt_pk_bf16_f32 {vr(8+4*w+i)}, {vr(TC+8*w+2*i)}, {vr(TC+8*w+2*i+1)}')
        A(f'buffer_store_dwordx4 {vr(8+4*w,4)}, v27, s[36:39], s29 offen offset:{w*1024}{SC}')
    A(f'v_mul_f32 {vr(S)}, {vr(TC)}, {vr(TC)}')
    A(f'v_mul_f32 {vr(26)}, {vr(TC+1)}, {vr(TC+1)}')
    for k in range(2, 32, 2):
        A(f'v_fmac_f32 {vr(S)}, {vr(TC+k)}, {vr(TC+k)}')
        A(f'v_fmac_f32 {vr(26)}, {vr(TC+k+1)}, {vr(TC+k+1)}')
    A(f'v_add_f32 {vr(S)}, {vr(S)}, {vr(26)}')
    red_g(A, S, T)
    A('''
    s_lshl_b32 s33, s28, 6
    v_lshlrev_b32 v27, 2, v2
    s_mov_b64 exec, 0xffff
    ''')
    A(f'buffer_store_dword {vr(S)}, v27, s[40:43], s33 offen')
    asmlib.stamp(A, 9)
    asmlib.stamp_flush(A, 4, WS_STAMP+0x40000, 3)
    A('s_endpgm')

    A.label('L1_bin')
    A(f'''
    s_load_dwordx4 s[24:27], s[0:1], 8
    s_sub_u32 s28, s2, {NAUX+NLN}        ; chunk
    s_lshl_b32 s29, s28, 14
    v_lshlrev_b32 v1, 4, v0         ; t*16
    v_mov_b32 v2, 0
    v_mov_b32 v3, 0
    v_mov_b32 v4, 0
    v_mov_b32 v5, 0
    ds_write_b128 v1, v[2:5]
    s_waitcnt lgkmcnt(0)
    ''')
    srd(A, 8, 24, 0, E*4)
    srd(A, 12, 26, 0, E*4)
    D, SR, RK = 8, 24, 40
    asmlib.stamp(A, 1)
    A('v_lshrrev_b32 v7, 6, v0')
    A('s_nop 0')
    A('v_readfirstlane_b32 s3, v7')
    A('s_add_u32 s30, s29, 4096\ns_add_u32 s31, s29, 8192\ns_add_u32 s32, s29, 12288')
    for k in range(4):
        A(f'buffer_load_dwordx4 {vr(D+4*k,4)}, v1, s[12:15], s{29+k} offen')
    for k in range(4):
        A(f'buffer_load_dwordx4 {vr(SR+4*k,4)}, v1, s[8:11], s{29+k} offen')
    srd(A, 16, 4, WS_TAB, NCH*NBIN*4)
    srd(A, 20, 4, WS_EDGE, NCH*CH*4)
    for k in range(4):
        A(f'v_add_u32 v2, s{29+k}, v1')
        A(f'v_cmp_gt_u32 s[{40+2*k}:{41+2*k}], {hex(E*4) if False else "s34"}, v2' if False else f'v_cmp_gt_u32 vcc, {E*4}, v2')
        A(f's_mov_b64 s[{40+2*k}:{41+2*k}], vcc')
    A('v_mov_b32 v6, 1')
    A('s_barrier')
    asmlib.stamp(A, 2)
    BA = 56
    for k in range(4):
        A(f's_waitcnt vmcnt({7-k})')
        A(f's_mov_b64 exec, s[{40+2*k}:{41+2*k}]')
        for j in range(4):
            n = 4 * k + j
            A(f'v_lshrrev_b32 {vr(BA+n)}, 4, {vr(D+n)}')
            A(f'v_lshlrev_b32 {vr(BA+n)}, 2, {vr(BA+n)}')
            A(f'ds_add_rtn_u32 {vr(RK+n)}, {vr(BA+n)}, v6')
    A('s_mov_b64 exec, -1')
    asmlib.stamp(A, 3)
    A('s_waitcnt vmcnt(0)')
    for n in range(16):
        A(f'v_and_b32 v2, 7, {vr(SR+n)}')
        A(f'v_lshlrev_b32 {vr(SR+n)}, 8, {vr(SR+n)}')
        A(f'v_lshl_or_b32 {vr(SR+n)}, v2, 5, {vr(SR+n)}')
        A(f'v_and_or_b32 {vr(SR+n)}, {vr(D+n)}, 15, {vr(SR+n)}')
    A('s_waitcnt lgkmcnt(0)')
    A('s_barrier')
    asmlib.stamp(A, 4)
    A('''
    ds_read_b128 v[8:11], v1
    s_waitcnt lgkmcnt(0)
    v_add_u32 v12, v8, v9
    v_add_u32 v13, v12, v10
    v_add_u32 v14, v13, v11
    v_mov_b32 v15, v14
    ''')
    wave_scan_incl(A, 15)
    A('''
    v_lshrrev_b32 v16, 6, v0
    v_lshlrev_b32 v17, 2, v16
    v_and_b32 v18, 63, v0
    v_cmp_eq_u32 vcc, 63, v18
    s_and_saveexec_b64 s[36:37], vcc
    ds_write_b32 v17, v15 offset:4096
    s_mov_b64 exec, s[36:37]
    s_waitcnt lgkmcnt(0)
    s_barrier
    v_mov_b32 v17, 0
    ds_read_b128 v[20:23], v17 offset:4096
    v_sub_u32 v15, v15, v14
    s_waitcnt lgkmcnt(0)
    v_cmp_lt_u32 vcc, 0, v16
    s_nop 1
    v_cndmask_b32 v20, 0, v20, vcc
    v_cmp_lt_u32 vcc, 1, v16
    s_nop 1
    v_cndmask_b32 v21, 0, v21, vcc
    v_cmp_lt_u32 vcc, 2, v16
    s_nop 1
    v_cndmask_b32 v22, 0, v22, vcc
    v_add3_u32 v15, v15, v20, v21
    v_add_u32 v2, v15, v22          ; start0
    v_add_u32 v3, v2, v8
    v_add_u32 v4, v2, v12
    v_add_u32 v5, v2, v13
    ds_write_b128 v1, v[2:5]
    v_lshl_or_b32 v20, v8, 16, v2
    v_lshl_or_b32 v21, v9, 16, v3
    v_lshl_or_b32 v22, v10, 16, v4
    v_lshl_or_b32 v23, v11, 16, v5
    ''')
    A(f's_mul_i32 s33, s28, {NBIN*4}')
    A(f'v_cmp_gt_u32 vcc, {NBIN//4}, v0')
    A('s_and_saveexec_b64 s[36:37], vcc')
    A(f'buffer_store_dwordx4 v[20:23], v1, s[16:19], s33 offen{SC}')
    A('s_mov_b64 exec, s[36:37]')
    A('s_waitcnt lgkmcnt(0)')
    A('s_barrier')
    asmlib.stamp(A, 5)
    for k in range(4):
        A(f's_mov_b64 exec, s[{40+2*k}:{41+2*k}]')
        for j in range(4):
            n = 4 * k + j
            A(f'ds_read_b32 {vr(BA+n)}, {vr(BA+n)}')
    for k in range(4):
        A(f's_mov_b64 exec, s[{40+2*k}:{41+2*k}]')
        if k == 0: A('s_waitcnt lgkmcnt(0)')
        for j in range(4):
            n = 4 * k + j
            A(f'v_add_lshl_u32 {vr(BA+n)}, {vr(BA+n)}, {vr(RK+n)}, 2')
            A(f'ds_write_b32 {vr(BA+n)}, {vr(SR+n)} offset:8192')
    A('s_mov_b64 exec, -1')
    A('s_waitcnt lgkmcnt(0)')
    A('s_barrier')
    asmlib.stamp(A, 6)
    for k in range(4):
        A(f'ds_read_b128 {vr(8+4*k,4)}, v1 offset:{8192+4096*k}')
    for k in range(4):
        A(f's_waitcnt lgkmcnt({3-k})')
        A(f'buffer_store_dwordx4 {vr(8+4*k,4)}, v1, s[20:23], s{29+k} offen{SC}')
    asmlib.stamp(A, 7)
    asmlib.stamp_flush(A, 4, WS_STAMP+0x40000, 3)
    A.label('L1_done')
    A('s_endpgm')
    import w23
    w23.gen_w23(A)
```

```python
from asmlib import *
import asmlib
from layout import *
from k1 import srd, wave_scan_incl, f32bits
import re

PB = [128, 160]
SB = 192
KADDR = 208
VADDR = 212
VDMA = 220
LANE = 221
E8 = 222
VADDR2 = 230
PC0, PC1 = 238, 239
LPI, LPC, SELW, SELR, ONE, ETMP = 240, 241, 242, 243, 244, 245
TA, TB, ADA, ADB = 246, 247, 248, 249
T0, T1, T2, T3, T4, T5 = 250, 251, 252, 253, 254, 255
QF, KF, VF = 0, 64, 96
HS, GF, SEL, ZERO, ENT = 128, 160, 192, 196, 200
OFFS = 2
SBUF = 128
CAP = 1024
SPLITB = 79 * 8192
GBASE = 65536
GSIZE = 24576
THRESH = 72.0

XF = ()
OUTSC = ''
def slot(j): return (j + OFFS) % 4
def O(dt, q): return 4 * (dt * 4 + q)

class Op:
    def __init__(self, text, kind, rd=(), wr=(), tag=None):
        self.text, self.kind, self.rd, self.wr, self.tag = text, kind, set(rd), set(wr), tag
def regs(kind, b, n): return [(kind, b + i) for i in range(n)]

def op_qk(n, s):
    kt, q = n // 4, n % 4
    d = SB + 4 * (n % 4)
    a = KF + 16 * (kt % 2) + 4 * s
    b = QF + 4 * (q * 4 + s)
    c = '0' if s == 0 else vr(d, 4)
    return Op(f'v_mfma_f32_16x16x32_bf16 {vr(d,4)}, {ar(a,4)}, {ar(b,4)}, {c}', 'mfma',
              rd=regs('a', a, 4) + regs('a', b, 4), wr=regs('v', d, 4))
def op_pv(pb, dt, q, u, first=False):
    o = O(dt, q)
    a = VF + 8 * (dt % 4) + 4 * u
    p = PB[pb] + 4 * (u * 4 + q)
    return Op(f'v_mfma_f32_16x16x32_bf16 {vr(o,4)}, {ar(a,4)}, {vr(p,4)}, {"0" if first else vr(o,4)}', 'mfma',
              rd=regs('a', a, 4) + regs('v', p, 4), wr=regs('v', o, 4))
def op_kread(j, kt, s):
    a = KF + 16 * (kt % 2) + 4 * s
    return Op(f'ds_read_b128 {ar(a,4)}, {vr(KADDR+s)} offset:{slot(j)*16384+kt*4096}', 'lds', wr=regs('a', a, 4), tag=slot(j))
def op_vread(j, dt, u, x):
    a = VF + 8 * (dt % 4) + 4 * u + 2 * x
    return Op(f'ds_read_b64_tr_b16 {ar(a,2)}, {vr(VADDR+dt)} offset:{slot(j)*16384+u*8192+x*4096}', 'lds', wr=regs('a', a, 2), tag=slot(j))
def op_exp(n, r):
    d = SB + 4 * (n % 4) + r
    return Op(f'v_exp_f32 {vr(d)}, {vr(d)}', 'trans', rd=[('v', d)], wr=[('v', d)])
def op_cvt(pb, n, half):
    kt, q = n // 4, n % 4
    s = SB + 4 * (n % 4) + 2 * half
    d = PB[pb] + 4 * ((kt // 2) * 4 + q) + 2 * (kt % 2) + half
    return Op(f'v_cvt_pk_bf16_f32 {vr(d)}, {vr(s)}, {vr(s+1)}', 'valu', rd=[('v', s), ('v', s + 1)], wr=[('v', d)])
def op_dma(k):
    return Op(f'buffer_load_dwordx4 {vr(VDMA)}, s[8:11], s27 offen offset:{k*1024} lds', 'vmem')
def op_s(text): return Op(text, 'salu')

def g_issue_reads(loff):
    return [Op(f'ds_read2_b32 {vr(E8+2*i,2)}, {vr(LPI)} offset0:{loff//4+8*i} offset1:{loff//4+8*i+4}', 'lds', wr=regs('v', E8+2*i, 2), tag=-2) for i in range(4)]
def g_issue_dma(i, buf):
    ops = []
    ops.append(op_s(f's_mov_b32 m0, s{74+buf}') if i == 0 else op_s('s_add_u32 m0, m0, 1024'))
    ops.append(Op(f'v_bitop3_b32 {vr(E8+i)}, {vr(E8+i)}, -16, {vr(PC0 if i%2==0 else PC1)} bitop3:0x6a', 'valu', rd=[('v', E8+i)], wr=[('v', E8+i)]))
    if 'nogdma' not in XF: ops.append(Op(f'buffer_load_dwordx4 {vr(E8+i) if "gsame" not in XF else vr(VDMA)}, s[8:11], 0 offen lds', 'vmem'))
    return ops
def g_sel1(loff):
    return [Op(f'ds_read_b32 {vr(ETMP)}, {vr(LPC)} offset:{loff}', 'lds', wr=[('v', ETMP)], tag=-2),
            Op(f'ds_write_b128 {vr(SELR)}, {ar(ZERO,4)}', 'lds', tag=-2)]
def g_sel2():
    return [Op(f'v_and_b32 {vr(ETMP)}, 31, {vr(ETMP)}', 'valu', rd=[('v', ETMP)], wr=[('v', ETMP)]),
            Op(f'v_lshl_add_u32 {vr(ETMP)}, {vr(ETMP)}, 6, {vr(SELW)}', 'valu', rd=[('v', ETMP)], wr=[('v', ETMP)])]
def g_sel3():
    return [Op(f'ds_write_b16 {vr(ETMP)}, {vr(ONE)}', 'lds', tag=-2),
            Op(f'ds_read_b128 {ar(SEL,4)}, {vr(SELR)}', 'lds', wr=regs('a', SEL, 4), tag=-2)]
def g_tr(dt, x, buf):
    a = GF + 4 * dt + 2 * x
    return Op(f'ds_read_b64_tr_b16 {ar(a,2)}, {vr(VADDR2+dt)} offset:{buf*8192+x*4096}', 'lds', wr=regs('a', a, 2), tag=-2)
def g_mfma(dt):
    return Op(f'v_mfma_f32_16x16x32_bf16 {ar(HS+4*dt,4)}, {ar(GF+4*dt,4)}, {ar(SEL,4)}, {ar(HS+4*dt,4)}', 'mfma',
              rd=regs('a', GF+4*dt, 4) + regs('a', SEL, 4), wr=regs('a', HS+4*dt, 4))

DEFAULT = dict(
    slots=[['e0'], ['e1'], ['e2'], ['e3'], ['c0', 'c1'], ['v', 'v'], ['k'], []],
    bar_group=12, bar_slot=5,
    dma=[(12, 7), (13, 7), (14, 7), (15, 7)],
)

def build_iter(i, cfg, nqk=16, pv_us=(0, 1), first_pv=False, next_k=True, next_v_us=(0, 1), bar=True, dma=True,
               prev_tile=15, g_issue=None, g_cons=None):
    ops = []
    pbN, pbC = (i + 1) % 2, i % 2
    slots = cfg['slots']
    extra = {}
    def add(g, s, o): extra.setdefault((g, s), []).extend(o)
    if g_issue is not None:
        loff, buf = g_issue
        rd = g_issue_reads(loff)
        add(0, 6, rd[:1]); add(0, 7, rd[1:3]); add(1, 6, rd[3:])
        for k in range(8):
            add(1 + k // 2 + (0 if k % 2 else 0) + 1, 7 if k % 2 else 3, g_issue_dma(k, buf))
    if g_cons is not None:
        loff, buf, vm = g_cons
        add(5, 6, g_sel1(loff)[:1]); add(6, 6, g_sel1(loff)[1:])
        add(6, 7, g_sel2()); add(7, 7, g_sel3())
        add(7, 3, [op_s(f's_waitcnt vmcnt({vm})')])
        for dt in range(8 if 'nogtr' not in XF else 0):
            g = 7 + dt // 2
            add(g, 3 if dt % 2 == 0 else 6, [g_tr(dt, 0, buf), g_tr(dt, 1, buf)])
        for dt in range(8 if 'nogmfma' not in XF else 0):
            g = 9 + dt // 2
            add(g, 3 if dt % 2 == 0 else 7, [g_mfma(dt)])
    for n in range(16):
        dt = n // 2
        q0 = 2 * (n % 2)
        mf = [op_qk(n, s) if n < nqk else None for s in range(4)]
        for q in (q0, q0 + 1):
            for u in (0, 1):
                mf.append(op_pv(pbC, dt, q, u, first=(first_pv and u == 0)) if u in pv_us else None)
        dtn = dt + 2
        jv = i if dtn < 8 else i + 1
        uu = n % 2
        v_ok = (uu in pv_us) if dtn < 8 else (uu in next_v_us)
        vq = [op_vread(jv, dtn % 8, uu, x) for x in range(2)]
        kt = n // 4
        ktn = kt + 1
        jk = i + 1 if ktn < 4 else i + 2
        k_ok = (4 * ktn < nqk) if ktn < 4 else next_k
        kq = [op_kread(jk, ktn % 4, n % 4)]
        for m in range(8):
            if mf[m] is not None: ops.append(mf[m])
            for f in slots[m]:
                if f[0] == 'e' or f[0] == 'c':
                    if n == 0:
                        if prev_tile is not None:
                            ops.append(op_exp(prev_tile, int(f[1])) if f[0] == 'e' else op_cvt(pbC, prev_tile, int(f[1])))
                    elif n - 1 < nqk:
                        ops.append(op_exp(n - 1, int(f[1])) if f[0] == 'e' else op_cvt(pbN, n - 1, int(f[1])))
                elif f == 'v':
                    o = vq.pop(0)
                    if v_ok: ops.append(o)
                elif f == 'k':
                    o = kq.pop(0)
                    if k_ok: ops.append(o)
            ops.extend(extra.get((n, m), []))
            if m == 7 and cfg.get('stall'):
                ops.append(op_s(f's_nop {cfg["stall"]-1}'))
            if bar and n == cfg['bar_group'] and m == cfg['bar_slot']:
                ops.append(Op('BARRIER', 'bar', tag=slot(i)))
            if dma and 'nokv' not in XF:
                for k, (g, sl) in enumerate(cfg['dma']):
                    if g == n and sl == m:
                        if k == 0:
                            ops.append(op_s(f's_mov_b32 m0, s{28 + slot(i+4)}'))
                            ops.append(op_s('s_nop 0'))
                        ops.append(op_dma(k))
                        if k == 3: ops.append(op_s('s_add_u32 s27, s27, 16384'))
    return ops

def finalize(ops, pending_in, vm_wait):
    pend = list(pending_in)
    out = []
    for o in ops:
        if o.kind == 'bar':
            need = -1
            for idx, (w, tg) in enumerate(pend):
                if tg == o.tag: need = idx
            if need >= 0:
                cnt = len(pend) - 1 - need
                out.append(Op(f's_waitcnt vmcnt({vm_wait}) lgkmcnt({min(cnt,15)})', 'salu'))
                pend = pend[need + 1:]
            else:
                out.append(Op(f's_waitcnt vmcnt({vm_wait})', 'salu'))
            out.append(Op('s_barrier', 'salu'))
            continue
        if o.kind in ('mfma', 'valu', 'trans'):
            need = -1
            for idx, (w, tg) in enumerate(pend):
                if w & o.rd: need = idx
            if need >= 0:
                cnt = len(pend) - 1 - need
                out.append(Op(f's_waitcnt lgkmcnt({min(cnt,15)})', 'salu'))
                pend = pend[need + 1:]
        if o.kind == 'lds':
            pend.append((frozenset(o.wr), o.tag))
        out.append(o)
    return out, pend

def fix_hazards(ops, fix=True):
    pos = 0
    lm = {}; lv = {}; lt = {}
    out = []
    for o in ops:
        need = 0
        if o.kind in ('valu', 'trans'):
            for r in o.rd | o.wr:
                if r in lm: need = max(need, 8 - (pos - lm[r] - 1))
            if o.kind == 'valu':
                for r in o.rd:
                    if r in lt: need = max(need, 1 - (pos - lt[r] - 1))
        if o.kind == 'mfma':
            for r in o.rd | o.wr:
                if r in lv: need = max(need, 2 - (pos - lv[r] - 1))
            for r in o.rd:
                if r in lm: need = max(need, 8 - (pos - lm[r] - 1))
        if need > 0:
            if not fix: raise Exception(f'hazard at {o.text} need {need}')
            out.append(op_s(f's_nop {need-1}')); pos += need
        if o.kind == 'mfma':
            for r in o.wr: lm[r] = pos
        if o.kind in ('valu', 'trans'):
            for r in o.wr:
                lv[r] = pos
                if o.kind == 'trans': lt[r] = pos
                else: lt.pop(r, None)
        m = re.match(r's_nop (\d+)', o.text)
        pos += (int(m.group(1)) + 1) if m else 1
        out.append(o)
    return out

def emit(A, ops):
    for o in ops: A(o.text)

def list_scan(A, tag):
    A('s_mov_b32 s79, 24')
    A.label(f'L2_retry{tag}')
    A(f'''
    v_min_u32 {vr(T0)}, s79, {vr(TA)}
    v_min_u32 {vr(T1)}, s79, {vr(TB)}
    v_lshl_or_b32 {vr(T2)}, {vr(T1)}, 16, {vr(T0)}
    v_mov_b32 {vr(T3)}, {vr(T2)}
    ''')
    wave_scan_incl(A, T3)
    A(f'''
    s_nop 0
    v_readlane_b32 s80, {vr(T3)}, 63
    s_and_b32 s81, s80, 0xffff
    s_lshr_b32 s76, s80, 16
    s_add_u32 s76, s76, s81
    s_cmp_le_u32 s76, {CAP}
    s_cbranch_scc1 L2_ok{tag}
    s_mov_b32 s79, 8
    s_branch L2_retry{tag}
    ''')
    A.label(f'L2_ok{tag}')
    A(f'''
    v_sub_u32 {vr(T3)}, {vr(T3)}, {vr(T2)}
    v_and_b32 {vr(T2)}, 0xffff, {vr(T3)}
    v_lshlrev_b32 {vr(T2)}, 2, {vr(T2)}
    v_add_u32 {vr(T2)}, s73, {vr(T2)}
    v_lshrrev_b32 {vr(T3)}, 16, {vr(T3)}
    v_add_u32 {vr(T3)}, s81, {vr(T3)}
    v_lshlrev_b32 {vr(T3)}, 2, {vr(T3)}
    v_add_u32 {vr(T3)}, s73, {vr(T3)}
    s_add_u32 s77, s76, 31
    s_lshr_b32 s77, s77, 5
    s_mov_b32 s78, 0
    ''')

def list_loads(A, tag):
    for st, (cnt, ad) in enumerate(((T0, ADA), (T1, ADB))):
        for qd in range(6):
            A(f'v_cmp_lt_u32 vcc, {4*qd}, {vr(cnt)}')
            A('s_mov_b64 exec, vcc')
            A(f's_cbranch_execz L2_ld{tag}_{st}')
            A(f'buffer_load_dwordx4 {ar(ENT+24*st+4*qd,4)}, {vr(ad)}, s[64:67], 0 offen offset:{16*qd}')
        A.label(f'L2_ld{tag}_{st}')
        A('s_mov_b64 exec, -1')

def list_writes(A, tag):
    for st, (cnt, ad) in enumerate(((T0, T2), (T1, T3))):
        for qd in range(5, -1, -1):
            A(f'v_cmp_lt_u32 vcc, {4*qd}, {vr(cnt)}')
            A('s_mov_b64 exec, vcc')
            A(f's_cbranch_execz L2_w{tag}_{st}_{qd}')
            for j in range(3, -1, -1):
                A(f'ds_write_b32 {vr(ad)}, {ar(ENT+24*st+4*qd+j)} offset:{4*(4*qd+j)}')
            A.label(f'L2_w{tag}_{st}_{qd}')
            A('s_mov_b64 exec, -1')
    A(f'''
    v_add_u32 {vr(T2)}, s76, {vr(LANE)}
    v_lshlrev_b32 {vr(T2)}, 2, {vr(T2)}
    v_add_u32 {vr(T2)}, s73, {vr(T2)}
    v_mov_b32 {vr(T3)}, 0x7ffffff0
    ds_write_b32 {vr(T2)}, {vr(T3)}
    ds_write_b32 {vr(T2)}, {vr(T3)} offset:256
    ds_write_b32 {vr(T2)}, {vr(T3)} offset:512
    v_sub_u32 {vr(TA)}, {vr(TA)}, {vr(T0)}
    v_sub_u32 {vr(TB)}, {vr(TB)}, {vr(T1)}
    v_lshl_add_u32 {vr(ADA)}, {vr(T0)}, 2, {vr(ADA)}
    v_lshl_add_u32 {vr(ADB)}, {vr(T1)}, 2, {vr(ADB)}
    v_lshrrev_b32 {vr(LPI)}, 4, {vr(LANE)}
    v_lshlrev_b32 {vr(LPI)}, 2, {vr(LPI)}
    v_add_u32 {vr(LPI)}, s73, {vr(LPI)}
    v_and_b32 {vr(LPC)}, 31, {vr(LANE)}
    v_lshlrev_b32 {vr(LPC)}, 2, {vr(LPC)}
    v_add_u32 {vr(LPC)}, s73, {vr(LPC)}
    ''')

def w23_dma_ops():
    res = []
    for b in range(4):
        for k in range(4):
            ops = []
            if k == 0:
                ops.append(op_s(f's_add_u32 m0, s74, {b*4096}'))
                ops.append(op_s('s_nop 0'))
            ops.append(Op(f'buffer_load_dwordx4 {vr(T5)}, s[12:15], s33 offen offset:{k*1024} lds', 'vmem'))
            if k == 3: ops.append(op_s('s_add_u32 s33, s33, 4096'))
            res.append(ops)
    return res

def gen_k2(A, cfg=None, name='attn_kernel', stamp=0, flags=()):
    cfg = cfg or DEFAULT
    def st(i):
        if stamp: A(f's_memrealtime s[{44+2*i}:{45+2*i}]')
    A.raw(f'.globl {name}\n.p2align 8\n.type {name},@function')
    A.label(name)
    A(f'''
    s_cmp_ge_u32 s2, {NWG2}
    s_cbranch_scc1 L2_done
    s_load_dwordx2 s[4:5], s[0:1], 88
    s_load_dwordx2 s[6:7], s[0:1], 0
    s_load_dwordx2 s[84:85], s[0:1], 24
    s_load_dwordx2 s[86:87], s[0:1], 72
    ''')
    for i in range(10): st(i)
    A(f'''
    v_lshrrev_b32 v1, 6, v0
    v_and_b32 {vr(LANE)}, 63, v0
    s_mov_b32 s3, 0x33333334
    v_readfirstlane_b32 s26, v1
    s_lshr_b32 s33, s2, 3
    s_mul_hi_u32 s24, s33, s3
    s_mul_i32 s3, s24, 5
    s_sub_u32 s25, s33, s3
    s_lshl_b32 s24, s24, 3
    s_and_b32 s3, s2, 7
    s_add_u32 s24, s24, s3
    s_cmp_ge_u32 s2, 240
    s_cselect_b32 s24, 48, s24
    s_cselect_b32 s25, s3, s25
    s_lshl_b32 s33, s26, 12
    v_lshlrev_b32 {vr(T5)}, 4, {vr(LANE)}
    v_add_u32 {vr(VDMA)}, s33, {vr(T5)}
    s_mul_i32 s27, s25, {SPLITB}
    s_add_u32 s28, s33, 0
    s_add_u32 s29, s33, 16384
    s_add_u32 s30, s33, 32768
    s_add_u32 s31, s33, 49152
    s_mul_i32 s72, s26, 5
    s_add_u32 s72, s72, 4
    s_sub_u32 s72, s72, s25
    s_lshl_b32 s3, s24, 4
    s_cmp_lt_u32 s72, 16
    s_cselect_b32 s82, 1, 0
    s_add_u32 s72, s72, s3
    s_cmp_eq_u32 s82, 1
    s_cselect_b32 s72, s72, 0x100000
    s_mul_i32 s73, s26, {GSIZE}
    s_add_u32 s73, s73, {GBASE}
    s_add_u32 s74, s73, 8192
    s_add_u32 s75, s73, 16384
    v_mov_b32 {vr(T4)}, {NBIN*4}
    v_mul_u32_u24 {vr(T4)}, {vr(T4)}, {vr(LANE)}
    s_lshl_b32 s80, s72, 2
    s_add_u32 s81, s80, {64*NBIN*4}
    s_lshr_b32 s40, s2, 3
    s_lshl_b32 s40, s40, 2
    s_add_u32 s40, s40, s26
    ''')
    asmlib.code_prefetch(A, 'k2', name, 'L_code_end', 42, 40, 41, T5, 12)
    A('s_waitcnt lgkmcnt(0)')
    srd(A, 68, 4, WS_TAB, NCH*NBIN*4)
    srd(A, 8, 4, WS_H1, N*256)
    A(f'buffer_load_dword {vr(TA)}, {vr(T4)}, s[68:71], s80 offen')
    A(f'buffer_load_dword {vr(TB)}, {vr(T4)}, s[68:71], s81 offen')
    def dma_tile(j):
        ops = [op_s(f's_mov_b32 m0, s{28+slot(j)}'), op_s('s_nop 0')] + [op_dma(k) for k in range(4)] + [op_s('s_add_u32 s27, s27, 16384')]
        return ops
    emit(A, dma_tile(0))
    srd(A, 12, 4, WS_QF, 784*4096)
    srd(A, 20, 4, WS_BND, WS_W23-WS_BND)
    A(f'''
    s_lshl_b32 s34, s24, 4
    s_lshl_b32 s35, s26, 2
    s_add_u32 s34, s34, s35
    s_lshl_b32 s35, s34, 12
    s_add_u32 s36, s35, 4096
    s_add_u32 s37, s35, 8192
    s_add_u32 s38, s35, 12288
    s_lshl_b32 s39, s24, 10
    ''')
    for q in range(4):
        for s in range(4):
            A(f'buffer_load_dwordx4 {ar(QF+4*(q*4+s),4)}, {vr(T5)}, s[12:15], s{35+q} offen offset:{s*1024}')
    A(f'buffer_load_dwordx4 v[0:3], {vr(T5)}, s[20:23], s39 offen')
    emit(A, dma_tile(1))
    srd(A, 16, 4, WS_OP, 5*784*4096)
    srd(A, 64, 4, WS_EDGE, NCH*CH*4+256)
    L = vr(LANE)
    A(f'''
    v_and_b32 v4, 7, {L}
    v_lshlrev_b32 v4, 1, v4
    v_lshrrev_b32 v5, 4, {L}
    v_xor_b32 v4, v4, v5
    v_and_b32 v6, 15, {L}
    v_lshlrev_b32 v7, 8, v6
    ''')
    for s in range(4):
        A(f'v_xor_b32 v8, {4*s}, v4')
        A(f'v_lshl_add_u32 {vr(KADDR+s)}, v8, 4, v7')
    A(f'''
    v_lshrrev_b32 v4, 2, {L}
    v_lshlrev_b32 v7, 8, v4
    v_and_b32 v4, 7, v4
    v_and_b32 v8, 3, {L}
    v_lshl_add_u32 v7, v8, 3, v7
    ''')
    for dt in range(8):
        A(f'v_xor_b32 v8, {dt}, v4')
        A(f'v_lshl_add_u32 {vr(VADDR+dt)}, v8, 5, v7')
        A(f'v_add_u32 {vr(VADDR2+dt)}, s74, {vr(VADDR+dt)}')
    A(f'''
    v_lshlrev_b32 v8, 1, v5
    v_xor_b32 v8, v8, v6
    v_lshlrev_b32 {vr(PC0)}, 4, v8
    v_xor_b32 {vr(PC1)}, 0x80, {vr(PC0)}
    v_bfe_u32 v8, {L}, 2, 2
    v_lshlrev_b32 v8, 4, v8
    v_bfe_u32 v9, {L}, 4, 1
    v_lshl_add_u32 v8, v9, 3, v8
    v_and_b32 v9, 3, {L}
    v_lshl_add_u32 v8, v9, 1, v8
    s_add_u32 s83, s73, 5120
    v_add_u32 {vr(SELW)}, s83, v8
    v_lshlrev_b32 v8, 6, v6
    v_lshl_add_u32 v8, v5, 4, v8
    v_add_u32 {vr(SELR)}, s83, v8
    v_mov_b32 {vr(ONE)}, 0x3f80
    v_lshlrev_b32 v9, 14, {L}
    ''')
    for r in range(32): A(f'v_accvgpr_write_b32 {ar(HS+r)}, 0')
    for r in range(4): A(f'v_accvgpr_write_b32 {ar(ZERO+r)}, 0')
    A('s_waitcnt vmcnt(25)')
    A(f'''
    v_and_b32 {vr(ADA)}, 0xffff, {vr(TA)}
    v_lshl_add_u32 {vr(ADA)}, {vr(ADA)}, 2, v9
    v_lshrrev_b32 {vr(TA)}, 16, {vr(TA)}
    v_and_b32 {vr(ADB)}, 0xffff, {vr(TB)}
    v_lshl_add_u32 {vr(ADB)}, {vr(ADB)}, 2, v9
    v_add_u32 {vr(ADB)}, {64*CH*4}, {vr(ADB)}
    v_lshrrev_b32 {vr(TB)}, 16, {vr(TB)}
    ''')
    list_scan(A, 'a')
    st(1)
    A('s_waitcnt vmcnt(0)')
    A('s_barrier')
    st(2)
    emit(A, [op_kread(0, 0, s) for s in range(4)])
    list_loads(A, 'a')
    A(f'''
    v_max3_f32 v0, v0, v1, v2
    v_max_f32 v0, v0, v3
    v_cmp_lt_f32 vcc, {hex(f32bits(THRESH))}, v0
    s_cbranch_vccnz L2_slow
    ''')
    pro = []
    d2, d3 = dma_tile(2), dma_tile(3)
    dq = d2 + d3
    for n in range(16):
        kt = n // 4
        fill = []
        if n >= 2:
            fill = [[op_exp(n-2, 0)], [op_exp(n-2, 1)], [op_exp(n-2, 2)], [op_exp(n-2, 3), op_cvt(0, n-2, 0), op_cvt(0, n-2, 1)]]
        else:
            fill = [[], [], [], []]
        for s in range(4):
            pro.append(op_qk(n, s))
            pro += fill[s]
        ktn = kt + 1
        pro.append(op_kread(0 if ktn < 4 else 1, ktn % 4, n % 4))
        if n >= 12:
            pro += [op_vread(0, (n - 12) // 2, n % 2, x) for x in range(2)]
        if n < 8:
            while dq and dq[0].kind != 'vmem': pro.append(dq.pop(0))
            if dq: pro.append(dq.pop(0))
            if dq and dq[0].text.startswith('s_add'): pro.append(dq.pop(0))
    pro += [op_exp(14, r) for r in range(4)] + [op_cvt(0, 14, 0), op_cvt(0, 14, 1)]
    pend0 = [(frozenset(regs('a', KF+4*s, 4)), -1) for s in range(4)]
    pro, pend = finalize(pro, pend0, 4)
    pend = [(w, -1) for w, _ in pend]
    it0, pend = finalize(build_iter(0, cfg, first_pv=True), pend, 4)
    seq = fix_hazards(pro + it0)
    emit(A, seq[:len(seq)-len(it0)])
    st(3)
    emit(A, seq[len(seq)-len(it0):])
    list_writes(A, 'a')
    A('s_waitcnt lgkmcnt(0)')
    _, pend_ss = finalize(build_iter(3, cfg), [], 4)
    pend_ss = [(w, -1) for w, _ in pend_ss]
    it1, _ = finalize(build_iter(1, cfg, g_issue=(0, 0)), [], 12)
    emit(A, fix_hazards(it1))
    A('s_mov_b32 s32, 9')
    A('s_cmp_eq_u32 s25, 4')
    A('s_cselect_b32 s83, 1, 0')
    A.raw('.p2align 6')
    A.label('L2_head')
    if stamp == 2:
        A('s_memrealtime s[96:97]')
        A('s_memtime s[98:99]')
        A('s_waitcnt lgkmcnt(0)')
        A(f'v_mov_b32 {vr(T2)}, s96')
        A(f'v_mov_b32 {vr(T3)}, s98')
        A(f'v_cmp_eq_u32 vcc, s32, {vr(LANE)}')
        A('s_nop 1')
        A(f'v_cndmask_b32 {vr(T0)}, {vr(T0)}, {vr(T2)}, vcc')
        A(f'v_cndmask_b32 {vr(T1)}, {vr(T1)}, {vr(T3)}, vcc')
    A('s_cmp_lt_u32 s78, s77')
    if 'nog' not in flags: A('s_cbranch_scc1 L2_gbody')
    body = []
    for p in range(4):
        ops, pe = finalize(build_iter(p + 2, cfg), pend_ss, 4)
        assert [w for w, _ in pe] == [w for w, _ in pend_ss]
        body += ops
        if p == 2:
            A('s_cmp_eq_u32 s32, s83')
            A('s_cbranch_scc1 L2_post2')
        if p > 0: A.label(f'L2_body{p}')
        emit(A, ops)
    fix_hazards(body + body, fix=False)
    A('s_sub_u32 s32, s32, 1')
    A('s_cmp_lg_u32 s32, 0')
    A('s_cbranch_scc1 L2_head')
    A('s_branch L2_post')
    A.raw('.p2align 6')
    A.label('L2_gbody')
    gbody = []
    for p in range(4):
        ops, pe = finalize(build_iter(p + 2, cfg, g_issue=(128 * (p + 1), (p + 1) % 2), g_cons=(128 * p, p % 2, 12)), pend_ss, 12)
        assert [w for w, _ in pe] == [w for w, _ in pend_ss], (pe, pend_ss)
        gbody += ops
        emit(A, ops)
        A('s_add_u32 s78, s78, 1')
        if p < 3:
            A('s_cmp_ge_u32 s78, s77')
            A(f's_cbranch_scc1 L2_body{p+1}')
    fix_hazards(gbody + gbody, fix=False); fix_hazards(gbody + body, fix=False); fix_hazards(it1 + gbody, fix=False)
    A(f'v_add_u32 {vr(LPI)}, 512, {vr(LPI)}')
    A(f'v_add_u32 {vr(LPC)}, 512, {vr(LPC)}')
    A('s_sub_u32 s32, s32, 1')
    A('s_cmp_lg_u32 s32, 0')
    A('s_cbranch_scc1 L2_head')
    A.label('L2_post')
    if stamp == 2:
        A('s_memrealtime s[96:97]')
        A('s_memtime s[98:99]')
        A('s_waitcnt lgkmcnt(0)')
        A(f'v_mov_b32 {vr(T2)}, s96')
        A(f'v_mov_b32 {vr(T3)}, s98')
        A(f'v_cmp_eq_u32 vcc, s32, {vr(LANE)}')
        A('s_nop 1')
        A(f'v_cndmask_b32 {vr(T0)}, {vr(T0)}, {vr(T2)}, vcc')
        A(f'v_cndmask_b32 {vr(T1)}, {vr(T1)}, {vr(T3)}, vcc')
        A(f'v_accvgpr_write_b32 a252, {vr(T0)}')
        A(f'v_accvgpr_write_b32 a253, {vr(T1)}')
    def store_setup():
        srd(A, 12, 4, WS_W23, 65536)
        A('s_lshl_b32 s33, s26, 14')
        A(f'v_lshlrev_b32 {vr(T5)}, 4, {L}')
        A(f'''
        s_mul_i32 s40, s25, {784*4096}
        s_add_u32 s40, s40, s35
        s_add_u32 s41, s40, 4096
        s_add_u32 s42, s40, 8192
        s_add_u32 s43, s40, 12288
        ''')
    def store_ops(w, q):
        d = 128 + 4 * (w * 4 + q) if False else SBUF + 4 * ((w * 4 + q) % 8)
        ops = []
        for h in range(2):
            b = O(2 * w + h, q)
            ops.append(Op(f'v_cvt_pk_bf16_f32 {vr(d+2*h)}, {vr(b)}, {vr(b+1)}', 'valu', rd=regs('v', b, 2), wr=[('v', d+2*h)]))
            ops.append(Op(f'v_cvt_pk_bf16_f32 {vr(d+2*h+1)}, {vr(b+2)}, {vr(b+3)}', 'valu', rd=regs('v', b+2, 2), wr=[('v', d+2*h+1)]))
        ops.append(Op(f'buffer_store_dwordx4 {vr(d,4)}, {vr(T5)}, s[16:19], s{40+q} offen offset:{w*1024} sc1', 'vmem'))
        return ops
    def lm_stores():
        A(f'''
        v_and_b32 {vr(T4)}, 15, {L}
        v_lshlrev_b32 {vr(T4)}, 2, {vr(T4)}
        s_mul_i32 s36, s25, {NPAD*4}
        s_lshl_b32 s37, s34, 6
        s_add_u32 s36, s36, s37
        s_add_u32 s36, s36, {WS_L-WS_BND}
        s_add_u32 s37, s36, {WS_M-WS_L}
        s_mov_b32 exec_lo, 0
        s_mov_b32 exec_hi, 0xffff0000
        ''')
        for q in range(4):
            A(f'buffer_store_dword {vr(O(7,q)+3)}, {vr(T4)}, s[20:23], s36 offen offset:{64*q} sc1')
            A(f'buffer_store_dword {vr(T0+q)}, {vr(T4)}, s[20:23], s37 offen offset:{64*q} sc1')
        A('s_mov_b64 exec, -1')
    def post(i0):
        store_setup()
        it38, pe = finalize(build_iter(i0, cfg, nqk=8, next_k=False, next_v_us=(0,), bar=False, dma=False), pend_ss, 4)
        last, _ = finalize(build_iter(i0 + 1, cfg, nqk=0, pv_us=(0,), next_k=False, next_v_us=(), bar=False, dma=False, prev_tile=None), pe, 4)
        wd = w23_dma_ops()
        it38b = []
        nm = 0
        for o in it38:
            it38b.append(o)
            if o.kind == 'mfma':
                nm += 1
                if nm >= 64 and nm % 2 == 0 and wd:
                    it38b += wd.pop(0)
        assert not wd
        lastb = []
        nm = 0
        pendst = [(w, q) for w in range(3) for q in range(4)]
        for o in last:
            lastb.append(o)
            if o.kind == 'mfma':
                nm += 1
                if pendst and nm >= 8 * (pendst[0][0] + 1) + 2 and nm % 2 == 0:
                    lastb += store_ops(*pendst.pop(0))
        rest = []
        for wq in pendst + [(3, q) for q in range(4)]:
            rest += store_ops(*wq)
        emit(A, fix_hazards(body[-40:] + it38b + lastb + rest)[40:])
        st(4)
        A(f'v_mov_b32 {vr(T0)}, 0\nv_mov_b32 {vr(T1)}, 0\nv_mov_b32 {vr(T2)}, 0\nv_mov_b32 {vr(T3)}, 0')
    post(38)
    A('s_branch L2_lm')
    A.label('L2_post2')
    post(36)
    A('s_branch L2_lm')
    A.label('L2_store')
    store_setup()
    for ops in w23_dma_ops(): emit(A, ops)
    allst = []
    for w in range(4):
        for q in range(4): allst += store_ops(w, q)
    emit(A, allst)
    A.label('L2_lm')
    lm_stores()
    A('s_waitcnt vmcnt(0)')
    A('s_barrier')
    st(5)
    A(f'''
    s_lshl_b32 s40, s24, 8
    s_add_u32 s40, s40, {WS_FLAG-WS_BND}
    s_cmp_lg_u32 s26, 0
    s_cbranch_scc1 L2_noflag
    s_lshl_b32 s41, s25, 2
    v_mov_b32 {vr(T0)}, s41
    v_mov_b32 {vr(T1)}, 1
    s_mov_b64 exec, 1
    buffer_store_dword {vr(T1)}, {vr(T0)}, s[20:23], s40 offen sc1
    s_mov_b64 exec, -1
    ''')
    A.label('L2_noflag')
    A('s_cmp_eq_u32 s82, 0')
    A('s_cbranch_scc1 L2_exit')
    X, DI = 106, 122
    srd(A, 68, 6, 0, N*256)
    srd(A, 88, 84, 0, N*2)
    srd(A, 92, 86, 0, N*256)
    A(f'''
    s_lshl_b32 s36, s72, 12
    v_and_b32 v1, 15, {L}
    v_lshrrev_b32 v2, 4, {L}
    v_lshlrev_b32 v6, 8, v1
    v_lshl_add_u32 v6, v2, 4, v6
    v_lshlrev_b32 v7, 1, v1
    s_lshl_b32 s37, s72, 5
    ''')
    for w in range(4):
        A(f'buffer_load_dwordx4 {vr(X+4*w,4)}, v6, s[68:71], s36 offen offset:{w*64}')
    A(f'buffer_load_ushort {vr(DI)}, v7, s[88:91], s37 offen')
    A('s_lshl_b32 s74, s26, 14')
    for dt in range(8):
        A(f'v_add_u32 {vr(VADDR2+dt)}, s74, {vr(VADDR+dt)}')
    A.label('L2_left')
    A('s_cmp_ge_u32 s78, s77')
    A('s_cbranch_scc1 L2_leftdone')
    ops = g_issue_reads(0)
    for k in range(8): ops += g_issue_dma(k, 0)
    ops += g_sel1(0) + g_sel2() + g_sel3() + [op_s('s_waitcnt vmcnt(0)')]
    ops += [g_tr(dt, x, 0) for dt in range(8) for x in range(2)] + [g_mfma(dt) for dt in range(8)]
    ops, _ = finalize(ops, [], 0)
    emit(A, fix_hazards(ops))
    A(f'v_add_u32 {vr(LPI)}, 128, {vr(LPI)}')
    A(f'v_add_u32 {vr(LPC)}, 128, {vr(LPC)}')
    A('s_add_u32 s78, s78, 1')
    A('s_branch L2_left')
    A.label('L2_leftdone')
    A(f'''
    v_or_b32 {vr(T0)}, {vr(TA)}, {vr(TB)}
    v_cmp_ne_u32 vcc, 0, {vr(T0)}
    s_cbranch_vccz L2_poll
    ''')
    list_scan(A, 'b')
    list_loads(A, 'b')
    A('s_waitcnt vmcnt(0)')
    list_writes(A, 'b')
    A('s_branch L2_left')
    A.label('L2_poll')
    BF = 128
    A('s_waitcnt vmcnt(0)')
    A(f'v_lshlrev_b32 {vr(DI)}, 16, {vr(DI)}')
    HV = 176
    for k in range(32):
        A(f'v_accvgpr_read_b32 {vr(HV+k)}, {ar(HS+k)}')
    for k in range(32):
        A(f'v_mul_f32 {vr(HV+k)}, {vr(HV+k)}, {vr(DI)}')
    for k in range(16):
        A(f'v_cvt_pk_bf16_f32 {vr(BF+16+k)}, {vr(HV+2*k)}, {vr(HV+2*k+1)}')
    A(f'''
    v_min_u32 v8, 4, {L}
    v_lshlrev_b32 v8, 2, v8
    s_mov_b32 s42, 0x200000
    ''')
    A.label('L2_spin')
    A(f'''
    buffer_load_dword v9, v8, s[20:23], s40 offen sc1
    s_waitcnt vmcnt(0)
    v_cmp_ne_u32 vcc, 1, v9
    s_cbranch_vccz L2_go
    s_sleep 2
    s_sub_u32 s42, s42, 1
    s_cmp_lg_u32 s42, 0
    s_cbranch_scc1 L2_spin
    ''')
    A.label('L2_go')
    st(6)
    OPR, LL, MM = 16, 96, 101
    A('v_lshlrev_b32 v5, 2, v1')
    A(f's_lshl_b32 s38, s72, 6')
    for s in range(5):
        A(f's_add_u32 s39, s38, {s*NPAD*4+WS_L-WS_BND}')
        A(f'buffer_load_dword {vr(LL+s)}, v5, s[20:23], s39 offen sc1')
        A(f's_add_u32 s41, s38, {s*NPAD*4+WS_M-WS_BND}')
        A(f'buffer_load_dword {vr(MM+s)}, v5, s[20:23], s41 offen sc1')
    for s in range(5):
        if s > 0: A(f's_add_u32 s39, s36, {s*784*4096}')
        for w in range(4):
            A(f'buffer_load_dwordx4 {vr(OPR+16*s+4*w,4)}, {vr(T5)}, s[16:19], s{36 if s == 0 else 39} offen offset:{w*1024} sc1')
    A('s_waitcnt vmcnt(20)')
    A(f'v_max3_f32 v7, {vr(MM)}, {vr(MM+1)}, {vr(MM+2)}')
    A(f'v_max3_f32 v7, v7, {vr(MM+3)}, {vr(MM+4)}')
    for s in range(5): A(f'v_sub_f32 {vr(MM+s)}, {vr(MM+s)}, v7')
    for s in range(5): A(f'v_exp_f32 {vr(MM+s)}, {vr(MM+s)}')
    A('s_nop 0')
    A(f'v_mul_f32 v7, {vr(MM)}, {vr(LL)}')
    for s in range(1, 5): A(f'v_fmac_f32 v7, {vr(MM+s)}, {vr(LL+s)}')
    A('v_rcp_f32 v7, v7')
    for s in range(5):
        A(f'v_lshrrev_b32 {vr(LL+s)}, 16, {vr(MM+s)}')
        A(f'v_and_b32 {vr(MM+s)}, 0xffff0000, {vr(MM+s)}')
    G = 176
    for s in range(5):
        A(f's_waitcnt vmcnt({16-4*s})')
        for k in range(16):
            src = OPR + 16 * s + k
            c0 = '0' if s == 0 else vr(G + 2 * k)
            c1 = '0' if s == 0 else vr(G + 2 * k + 1)
            A(f'v_dot2_f32_bf16 {vr(G+2*k)}, {vr(src)}, {vr(LL+s)}, {c0}')
            A(f'v_dot2_f32_bf16 {vr(G+2*k+1)}, {vr(src)}, {vr(MM+s)}, {c1}')
    st(7)
    WB = [0, 32]
    A(f'v_add_u32 v10, {GBASE+8192}, {vr(T5)}')
    A(f'v_add_u32 v11, {GBASE+8192+2*GSIZE}, {vr(T5)}')
    def wreads(et):
        for ks in range(8):
            A(f'ds_read_b128 {ar(WB[et%2]+4*ks,4)}, {vr(10 + et//4)} offset:{((et//2)%2)*GSIZE+((et%2)*8+ks)*1024}')
    wreads(0)
    for k in range(32): A(f'v_mul_f32 {vr(G+k)}, {vr(G+k)}, v7')
    for k in range(16): A(f'v_cvt_pk_bf16_f32 {vr(BF+k)}, {vr(G+2*k)}, {vr(G+2*k+1)}')
    Y = 16
    for et in range(8):
        if et < 7: wreads(et + 1)
        A(f's_waitcnt lgkmcnt({8 if et < 7 else 0})')
        for ks in range(8):
            c = '0' if ks == 0 else vr(Y+4*et, 4)
            A(f'v_mfma_f32_16x16x32_bf16 {vr(Y+4*et,4)}, {ar(WB[et%2]+4*ks,4)}, {vr(BF+4*ks,4)}, {c}')
    A('s_nop 7')
    for w in range(4):
        for i in range(4):
            xr = X + 4 * w + i
            y = Y + 8 * w + 2 * i
            A(f'v_lshlrev_b32 v7, 16, {vr(xr)}')
            A(f'v_and_b32 v8, 0xffff0000, {vr(xr)}')
            A(f'v_add_f32 v7, v7, {vr(y)}')
            A(f'v_add_f32 v8, v8, {vr(y+1)}')
            A(f'v_cvt_pk_bf16_f32 {vr(xr)}, v7, v8')
        A(f'buffer_store_dwordx4 {vr(X+4*w,4)}, v6, s[92:95], s36 offen offset:{w*64}{OUTSC}')
    A.label('L2_exit')
    if stamp:
        A('s_waitcnt vmcnt(0)')
        st(8)
        A('s_waitcnt lgkmcnt(0)')
        for i in range(10): A(f'v_mov_b32 {vr(i)}, s{44+2*i}')
        A(f's_lshl_b32 s40, s2, 2')
        A(f's_add_u32 s40, s40, s26')
        A(f's_lshl_b32 s40, s40, 6')
        A(f's_add_u32 s40, s40, {WS_STAMP-WS_BND}')
        A(f's_mov_b32 s22, 0x7fffffff')
        if stamp == 2:
            A(f's_lshl_b32 s41, s2, 2')
            A(f's_add_u32 s41, s41, s26')
            A(f's_lshl_b32 s41, s41, 7')
            A(f's_add_u32 s41, s41, {WS_STAMP-WS_BND+0x80000}')
            A(f'v_lshlrev_b32 v20, 2, {vr(LANE)}')
            A(f's_mov_b64 exec, 0xffff')
            A(f'buffer_store_dword a252, v20, s[20:23], s41 offen')
            A(f'buffer_store_dword a253, v20, s[20:23], s41 offen offset:64')
            A(f's_mov_b64 exec, -1')
        A(f'v_mov_b32 v20, 0')
        A(f'v_mov_b32 v10, s82')
        A(f'v_mov_b32 v11, s77')
        A(f's_mov_b64 exec, 1')
        for i in range(3):
            A(f'buffer_store_dwordx4 v[{4*i}:{4*i+3}], v20, s[20:23], s40 offen offset:{16*i}')
    A.label('L2_done')
    A('s_endpgm')
    gen_slow(A)

def gen_slow(A):
    L = vr(LANE)
    A.label('L2_slow')
    A('s_waitcnt vmcnt(0) lgkmcnt(0)')
    list_writes(A, 's')
    MX = [T0, T1, T2, T3]
    for q in range(4): A(f'v_mov_b32 {vr(MX[q])}, 0xf149f2ca')
    for r in range(128): A(f'v_mov_b32 {vr(r)}, 0')
    A(f'''
    s_mul_i32 s27, s25, {SPLITB}
    s_mul_i32 s40, s25, {79*32}
    s_add_u32 s41, s40, {79*32}
    s_min_u32 s41, s41, {N}
    v_lshrrev_b32 {vr(T4)}, 4, {L}
    v_lshlrev_b32 {vr(T4)}, 2, {vr(T4)}
    v_add_u32 {vr(T4)}, s40, {vr(T4)}
    s_mov_b32 s32, 40
    v_mov_b32 {vr(T5)}, 0xff800000
    ''')
    def S(kt, q): return 128 + 8 * ((kt // 2) * 4 + q) + 4 * (kt % 2)
    A.label('L2_sloop')
    A('s_barrier')
    A('s_mov_b32 m0, s28')
    A('s_nop 0')
    for k in range(4): A(op_dma(k).text)
    A('s_add_u32 s27, s27, 16384')
    A('s_waitcnt vmcnt(0)')
    A('s_barrier')
    for kt in range(4):
        for s in range(4):
            A(f'ds_read_b128 {ar(KF+4*s,4)}, {vr(KADDR+s)} offset:{kt*4096}')
        A('s_waitcnt lgkmcnt(0)')
        for q in range(4):
            for s in range(4):
                d = S(kt, q)
                A(f'v_mfma_f32_16x16x32_bf16 {vr(d,4)}, {ar(KF+4*s,4)}, {ar(QF+4*(q*4+s),4)}, {"0" if s == 0 else vr(d,4)}')
    A('s_nop 7')
    for kt in range(4):
        for r in range(4):
            A(f'v_add_u32 {vr(192)}, {16*kt+r}, {vr(T4)}')
            A(f'v_cmp_gt_u32 vcc, s41, {vr(192)}')
            A('s_nop 1')
            for q in range(4):
                A(f'v_cndmask_b32 {vr(S(kt,q)+r)}, {vr(T5)}, {vr(S(kt,q)+r)}, vcc')
    A(f'v_add_u32 {vr(T4)}, 64, {vr(T4)}')
    a, b, al = 192, 193, 194
    for q in range(4):
        vals = [S(kt, q) + r for kt in range(4) for r in range(4)]
        A(f'v_max_f32 {vr(a)}, {vr(vals[0])}, {vr(vals[1])}')
        for k in range(2, 16, 2):
            A(f'v_max3_f32 {vr(a)}, {vr(a)}, {vr(vals[k])}, {vr(vals[k+1])}')
        A(f'''
        v_mov_b32 {vr(b)}, {vr(a)}
        s_nop 1
        v_permlane16_swap_b32 {vr(a)}, {vr(b)}
        v_max_f32 {vr(a)}, {vr(a)}, {vr(b)}
        v_mov_b32 {vr(b)}, {vr(a)}
        s_nop 1
        v_permlane32_swap_b32 {vr(a)}, {vr(b)}
        v_max_f32 {vr(a)}, {vr(a)}, {vr(b)}
        v_ceil_f32 {vr(a)}, {vr(a)}
        v_max_f32 {vr(a)}, {vr(a)}, {vr(MX[q])}
        v_sub_f32 {vr(al)}, {vr(MX[q])}, {vr(a)}
        v_exp_f32 {vr(al)}, {vr(al)}
        v_mov_b32 {vr(MX[q])}, {vr(a)}
        ''')
        for v in vals:
            A(f'v_sub_f32 {vr(v)}, {vr(v)}, {vr(a)}')
        for v in vals:
            A(f'v_exp_f32 {vr(v)}, {vr(v)}')
        for dt in range(8):
            for r in range(4):
                A(f'v_mul_f32 {vr(O(dt,q)+r)}, {vr(O(dt,q)+r)}, {vr(al)}')
        for u in range(2):
            base = S(2 * u, q)
            for i in range(4):
                A(f'v_cvt_pk_bf16_f32 {vr(base+i)}, {vr(base+2*i)}, {vr(base+2*i+1)}')
    for dt in range(8):
        for u in range(2):
            for x in range(2):
                A(f'ds_read_b64_tr_b16 {ar(VF+4*u+2*x,2)}, {vr(VADDR+dt)} offset:{u*8192+x*4096}')
        A('s_waitcnt lgkmcnt(0)')
        for q in range(4):
            for u in range(2):
                A(f'v_mfma_f32_16x16x32_bf16 {vr(O(dt,q),4)}, {ar(VF+4*u,4)}, {vr(S(2*u,q),4)}, {vr(O(dt,q),4)}')
    A('s_nop 7')
    A('s_sub_u32 s32, s32, 1')
    A('s_cmp_lg_u32 s32, 0')
    A('s_cbranch_scc1 L2_sloop')
    A('s_branch L2_store')
```

```python
from asmlib import *
import asmlib
from layout import *
from k1 import srd, red_g, bcast_g3, f32bits, BETA
import math

def gen_w23(A):
    A.label('L1_aux')
    A(f'''
    s_load_dwordx2 s[6:7], s[0:1], 64
    s_load_dwordx2 s[24:25], s[0:1], 56
    s_load_dwordx2 s[26:27], s[0:1], 32
    v_lshrrev_b32 v1, 6, v0
    v_and_b32 v0, 63, v0
    s_nop 0
    v_readfirstlane_b32 s3, v1
    v_and_b32 v2, 15, v0
    v_lshrrev_b32 v3, 4, v0
    s_and_b32 s28, s2, 1
    s_lshr_b32 s29, s2, 1
    v_lshlrev_b32 v5, 1, v3
    v_xor_b32 v5, v5, v2
    v_lshlrev_b32 v5, 4, v5
    v_lshl_add_u32 v5, v3, 8, v5
    v_xor_b32 v6, 0x80, v5
    s_lshl_b32 s30, s3, 13
    s_add_u32 s31, s30, 4096
    s_waitcnt lgkmcnt(0)
    s_cmp_eq_u32 s28, 0
    s_cselect_b32 s24, s24, s26
    s_cselect_b32 s25, s25, s27
    ''')
    srd(A, 8, 6, 0, 32768)
    srd(A, 12, 24, 0, 32768)
    srd(A, 16, 4, WS_W23, 65536)
    srd(A, 20, 4, WS_FLAG, 16384)
    for half in range(2):
        A(f's_mov_b32 m0, s{30+half}')
        A('s_nop 0')
        for ii in range(4):
            v = 'v5' if (ii >> 1) == 0 else 'v6'
            A(f'buffer_load_dwordx4 {v}, s[8:11], s{30+half} offen offset:{ii*1024} lds')
    for half in range(2):
        A(f's_add_u32 s32, s{30+half}, 32768')
        A(f's_mov_b32 m0, s32')
        A('s_nop 0')
        for ii in range(4):
            v = 'v5' if (ii & 1) == 0 else 'v6'
            A(f'buffer_load_dwordx4 {v}, s[12:15], s{30+half} offen offset:{ii*1024} lds')
    A('''
    v_mov_b32 v8, 0
    v_mov_b32 v9, 0
    v_mov_b32 v10, 0
    v_mov_b32 v11, 0
    v_lshrrev_b32 v30, 1, v0
    v_lshlrev_b32 v30, 8, v30
    v_and_b32 v31, 1, v0
    v_lshl_add_u32 v30, v31, 4, v30
    s_lshl_b32 s33, s3, 12
    s_mov_b32 exec_hi, 0
    buffer_store_dwordx4 v[8:11], v30, s[20:23], s33 offen sc1
    s_mov_b32 exec_hi, -1
    v_bfe_u32 v26, v0, 2, 2
    v_and_b32 v27, 1, v3
    v_lshl_add_u32 v27, v27, 2, v26
    v_lshlrev_b32 v27, 1, v27
    v_and_b32 v28, 3, v0
    v_xor_b32 v27, v27, v28
    v_lshl_add_u32 v26, v3, 3, v26
    v_lshlrev_b32 v26, 8, v26
    s_lshl_b32 s33, s3, 2
    v_xor_b32 v28, s33, v27
    v_lshl_add_u32 v7, v28, 4, v26
    s_lshl_b32 s33, s29, 3
    v_add_u32 v7, s33, v7
    v_and_b32 v26, 7, v2
    v_lshlrev_b32 v26, 1, v26
    v_xor_b32 v26, v26, v3
    v_lshlrev_b32 v27, 8, v2
    ''')
    for s in range(4):
        A(f'v_xor_b32 v28, {4*s}, v26')
        A(f'v_lshl_add_u32 {vr(12+s)}, v28, 4, v27')
    A('s_waitcnt vmcnt(1)')
    A('s_barrier')
    asmlib.stamp(A, 1)
    AF = 128
    BFR = 32
    for h in range(1):
        for s in range(4):
            for x in range(2):
                A(f'ds_read_b64_tr_b16 {vr(BFR+16*h+4*s+2*x,2)}, v7 offset:{s*8192+x*1024}')
    C = 64
    def areads(dt):
        for s in range(4):
            A(f'ds_read_b128 {vr(AF+16*dt+4*s,4)}, {vr(12+s)} offset:{32768+dt*4096}')
    areads(0); areads(1)
    for dt in range(8):
        if dt + 2 < 8: areads(dt + 2)
        A(f's_waitcnt lgkmcnt({4*min(2, 7-dt)})')
        for h in range(1):
            for s in range(4):
                d = C + 32 * h + 4 * dt
                c = '0' if s == 0 else vr(d, 4)
                A(f'v_mfma_f32_16x16x32_bf16 {vr(d,4)}, {vr(AF+16*dt+4*s,4)}, {vr(BFR+16*h+4*s,4)}, {c}')
    A('s_nop 7')
    A('v_cmp_eq_u32 vcc, 3, v3')
    A('v_lshlrev_b32 v27, 4, v0')
    A('s_lshl_b32 s33, s3, 14')
    A('s_lshl_b32 s34, s28, 12')
    A('s_add_u32 s33, s33, s34')
    A('s_lshl_b32 s34, s29, 13')
    A('s_add_u32 s33, s33, s34')
    for h in range(1):
        b = C + 32 * h
        A(f'v_add_f32 v24, {vr(b)}, {vr(b+1)}')
        A(f'v_add_f32 v29, {vr(b+2)}, {vr(b+3)}')
        for k in range(4, 32, 2):
            A(f'v_add_f32 v24, v24, {vr(b+k)}')
            A(f'v_add_f32 v29, v29, {vr(b+k+1)}')
        A('v_add_f32 v24, v24, v29')
        red_g(A, 24, 25)
        bcast_g3(A, 26, b + 31, 25)
        A(f'v_mul_f32 v24, {hex(f32bits(1/math.sqrt(128)))}, v24')
        A(f'v_sub_f32 v24, v26, v24')
        A(f'v_mul_f32 v24, {hex(f32bits(BETA))}, v24')
        for k in range(32):
            A(f'v_add_f32 {vr(b+k)}, {vr(b+k)}, v24')
        A(f'v_cndmask_b32 {vr(b+31)}, {vr(b+31)}, 0, vcc')
        for w in range(4):
            o = 128 + 16 * h + 4 * w
            for i in range(4):
                A(f'v_cvt_pk_bf16_f32 {vr(o+i)}, {vr(b+8*w+2*i)}, {vr(b+8*w+2*i+1)}')
            A(f'buffer_store_dwordx4 {vr(o,4)}, v27, s[16:19], s33 offen offset:{w*1024} sc1')
    asmlib.stamp_flush(A, 4, WS_STAMP+0x40000, 3)
    A('s_endpgm')
```

```python
import sys
from asmlib import *
from layout import *
import k1, k2c, asmlib
from k2 import desc
HDR = open('gather_scatter__hybrid_graph_tf_graphgps__graph.s.ref').read().split('; Override launch')[0]
def make(path, stamp=0, **kw):
    asmlib.STAMP_ON = bool(stamp)
    A = Asm()
    A.raw(HDR.rstrip('\n'))
    A.raw('; @launch kernel=prep_kernel grid=(298,1,1) block=(256,1,1) lds=65536')
    A.raw('; @launch kernel=attn_kernel grid=(245,1,1) block=(256,1,1) lds=163840')
    A.raw('.amdgcn_target "amdgcn-amd-amdhsa--gfx950"\n.text')
    k1.gen_k1(A)
    k2c.gen_k2(A, stamp=stamp, **kw)
    A.raw('.p2align 8')
    A.label('L_code_end')
    A.raw('.section .rodata,"a"')
    A.raw(desc('prep_kernel', 256, 256, 102 if stamp else 64))
    A.raw(desc('attn_kernel', 512, 256, 102))
    open(path, 'w').write(A.text())
if __name__ == '__main__':
    make('all.s')
    make('all_st.s', stamp=2)
```

```python
from asmlib import *
import asmlib
from layout import *
from k1 import srd, wave_scan_incl, f32bits
import re
import phase_a

PB = [128, 160]
SB = 192
KADDR = 208
VADDR = 212
VDMA = 220
LANE = 221
E8 = 222
VADDR2 = 230
PC0, PC1 = 238, 239
LPI, LPC, SELW, SELR, ONE, ETMP = 240, 241, 242, 243, 244, 245
TA, TB, ADA, ADB = 246, 247, 248, 249
T0, T1, T2, T3, T4, T5 = 250, 251, 252, 253, 254, 255
QF, KF, VF = 0, 64, 96
HS, GF, SEL, ZERO, ENT = 128, 160, 192, 196, 200
OFFS = 2
SBUF = 128
CAP = 1024
SPLITB = 79 * 8192
GBASE = 65536
GSIZE = 24576
THRESH = 72.0

XF = ()
LDSC = ' sc1'
OUTSC = ''
def slot(j): return (j + OFFS) % 4
def O(dt, q): return 4 * (dt * 4 + q)

class Op:
    def __init__(self, text, kind, rd=(), wr=(), tag=None):
        self.text, self.kind, self.rd, self.wr, self.tag = text, kind, set(rd), set(wr), tag
def regs(kind, b, n): return [(kind, b + i) for i in range(n)]

def op_qk(n, s):
    kt, q = n // 4, n % 4
    d = SB + 4 * (n % 4)
    a = KF + 16 * (kt % 2) + 4 * s
    b = QF + 4 * (q * 4 + s)
    c = '0' if s == 0 else vr(d, 4)
    return Op(f'v_mfma_f32_16x16x32_bf16 {vr(d,4)}, {ar(a,4)}, {ar(b,4)}, {c}', 'mfma',
              rd=regs('a', a, 4) + regs('a', b, 4), wr=regs('v', d, 4))
def op_pv(pb, dt, q, u, first=False):
    o = O(dt, q)
    a = VF + 8 * (dt % 4) + 4 * u
    p = PB[pb] + 4 * (u * 4 + q)
    return Op(f'v_mfma_f32_16x16x32_bf16 {vr(o,4)}, {ar(a,4)}, {vr(p,4)}, {"0" if first else vr(o,4)}', 'mfma',
              rd=regs('a', a, 4) + regs('v', p, 4), wr=regs('v', o, 4))
def op_kread(j, kt, s):
    a = KF + 16 * (kt % 2) + 4 * s
    return Op(f'ds_read_b128 {ar(a,4)}, {vr(KADDR+s)} offset:{slot(j)*16384+kt*4096}', 'lds', wr=regs('a', a, 4), tag=slot(j))
def op_vread(j, dt, u, x):
    a = VF + 8 * (dt % 4) + 4 * u + 2 * x
    return Op(f'ds_read_b64_tr_b16 {ar(a,2)}, {vr(VADDR+dt)} offset:{slot(j)*16384+u*8192+x*4096}', 'lds', wr=regs('a', a, 2), tag=slot(j))
def op_exp(n, r):
    d = SB + 4 * (n % 4) + r
    return Op(f'v_exp_f32 {vr(d)}, {vr(d)}', 'trans', rd=[('v', d)], wr=[('v', d)])
def op_cvt(pb, n, half):
    kt, q = n // 4, n % 4
    s = SB + 4 * (n % 4) + 2 * half
    d = PB[pb] + 4 * ((kt // 2) * 4 + q) + 2 * (kt % 2) + half
    return Op(f'v_cvt_pk_bf16_f32 {vr(d)}, {vr(s)}, {vr(s+1)}', 'valu', rd=[('v', s), ('v', s + 1)], wr=[('v', d)])
def op_dma(k):
    return Op(f'buffer_load_dwordx4 {vr(VDMA)}, s[8:11], s27 offen offset:{k*1024}{LDSC} lds', 'vmem')
def op_s(text): return Op(text, 'salu')

def g_issue_reads(loff):
    return [Op(f'ds_read2_b32 {vr(E8+2*i,2)}, {vr(LPI)} offset0:{loff//4+8*i} offset1:{loff//4+8*i+4}', 'lds', wr=regs('v', E8+2*i, 2), tag=-2) for i in range(4)]
def g_issue_dma(i, buf):
    ops = []
    ops.append(op_s(f's_mov_b32 m0, s{74+buf}') if i == 0 else op_s('s_add_u32 m0, m0, 1024'))
    ops.append(Op(f'v_bitop3_b32 {vr(E8+i)}, {vr(E8+i)}, -16, {vr(PC0 if i%2==0 else PC1)} bitop3:0x6a', 'valu', rd=[('v', E8+i)], wr=[('v', E8+i)]))
    if 'nogdma' not in XF: ops.append(Op(f'buffer_load_dwordx4 {vr(E8+i) if "gsame" not in XF else vr(VDMA)}, s[8:11], 0 offen{LDSC} lds', 'vmem'))
    return ops
def g_sel1(loff):
    return [Op(f'ds_read_b32 {vr(ETMP)}, {vr(LPC)} offset:{loff}', 'lds', wr=[('v', ETMP)], tag=-2),
            Op(f'ds_write_b128 {vr(SELR)}, {ar(ZERO,4)}', 'lds', tag=-2)]
def g_sel2():
    return [Op(f'v_and_b32 {vr(ETMP)}, 31, {vr(ETMP)}', 'valu', rd=[('v', ETMP)], wr=[('v', ETMP)]),
            Op(f'v_lshl_add_u32 {vr(ETMP)}, {vr(ETMP)}, 6, {vr(SELW)}', 'valu', rd=[('v', ETMP)], wr=[('v', ETMP)])]
def g_sel3():
    return [Op(f'ds_write_b16 {vr(ETMP)}, {vr(ONE)}', 'lds', tag=-2),
            Op(f'ds_read_b128 {ar(SEL,4)}, {vr(SELR)}', 'lds', wr=regs('a', SEL, 4), tag=-2)]
def g_tr(dt, x, buf):
    a = GF + 4 * dt + 2 * x
    return Op(f'ds_read_b64_tr_b16 {ar(a,2)}, {vr(VADDR2+dt)} offset:{buf*8192+x*4096}', 'lds', wr=regs('a', a, 2), tag=-2)
def g_mfma(dt):
    return Op(f'v_mfma_f32_16x16x32_bf16 {ar(HS+4*dt,4)}, {ar(GF+4*dt,4)}, {ar(SEL,4)}, {ar(HS+4*dt,4)}', 'mfma',
              rd=regs('a', GF+4*dt, 4) + regs('a', SEL, 4), wr=regs('a', HS+4*dt, 4))

EE = [['e0'], ['e1'], ['e2'], ['e3']]
DEFAULT = dict(
    slots4=[EE + [['c0','c1'], ['v','v'], ['k','k'], []], EE + [['c0','c1'], ['v','v'], ['k','k'], ['w']],
            EE + [['c0','c1'], ['v','v'], [], []], EE + [['c0','c1'], ['v','v'], [], ['w']]],
    bar_group=12, bar_slot=5,
    dma=[(12,7),(14,6),(14,7),(15,6)], m0=(11,6), sadd=(2,6), pvrev=True,
)

def build_iter(i, cfg, nqk=16, pv_us=(0, 1), first_pv=False, next_k=True, next_v_us=(0, 1), bar=True, dma=True,
               prev_tile=15, g_issue=None, g_cons=None):
    ops = []
    pbN, pbC = (i + 1) % 2, i % 2
    extra = {}
    def add(g, s, o): extra.setdefault((g, s), []).extend(o)
    if g_issue is not None:
        loff, buf = g_issue
        rd = g_issue_reads(loff)
        add(0, 6, rd[:1]); add(0, 7, rd[1:3]); add(1, 6, rd[3:])
        for k in range(8):
            add(1 + k // 2 + (0 if k % 2 else 0) + 1, 7 if k % 2 else 3, g_issue_dma(k, buf))
    if g_cons is not None:
        loff, buf, vm = g_cons
        add(5, 6, g_sel1(loff)[:1]); add(6, 6, g_sel1(loff)[1:])
        add(6, 7, g_sel2()); add(7, 7, g_sel3())
        add(7, 3, [op_s(f's_waitcnt vmcnt({vm})')])
        for dt in range(8 if 'nogtr' not in XF else 0):
            g = 7 + dt // 2
            add(g, 3 if dt % 2 == 0 else 6, [g_tr(dt, 0, buf), g_tr(dt, 1, buf)])
        for dt in range(8 if 'nogmfma' not in XF else 0):
            g = 9 + dt // 2
            add(g, 3 if dt % 2 == 0 else 7, [g_mfma(dt)])
    kq = []
    for n in range(16):
        dt = n // 2
        q0 = 2 * (n % 2)
        slots = cfg['slots4'][n % 4] if 'slots4' in cfg else cfg['slots']
        mf = [op_qk(n, s) if n < nqk else None for s in range(4)]
        for q in (q0, q0 + 1):
            us = (1, 0) if (cfg.get('pvrev') and q == q0 + 1 and len(pv_us) == 2) else (0, 1)
            for u in us:
                mf.append(op_pv(pbC, dt, q, u, first=(first_pv and u == us[0])) if u in pv_us else None)
        dtn = dt + 2
        jv = i if dtn < 8 else i + 1
        uu = n % 2
        v_ok = (uu in pv_us) if dtn < 8 else (uu in next_v_us)
        vq = [op_vread(jv, dtn % 8, uu, x) for x in range(2)]
        kt = n // 4
        ktn = kt + 1
        jk = i + 1 if ktn < 4 else i + 2
        k_ok = (4 * ktn < nqk) if ktn < 4 else next_k
        if n % 4 == 0:
            assert not kq
            kq = [op_kread(jk, ktn % 4, s) for s in range(4)]
        for m in range(8):
            if mf[m] is not None: ops.append(mf[m])
            for f in slots[m]:
                if ('no' + f[0]) in XF and 2 <= i <= 5:
                    if f == 'k': kq.pop(0)
                    continue
                if f[0] == 'e' or f[0] == 'c':
                    if n == 0:
                        if prev_tile is not None:
                            ops.append(op_exp(prev_tile, int(f[1])) if f[0] == 'e' else op_cvt(pbC, prev_tile, int(f[1])))
                    elif n - 1 < nqk:
                        ops.append(op_exp(n - 1, int(f[1])) if f[0] == 'e' else op_cvt(pbN, n - 1, int(f[1])))
                elif f == 'v':
                    o = vq.pop(0)
                    if v_ok: ops.append(o)
                elif f == 'k':
                    o = kq.pop(0)
                    if k_ok: ops.append(o)
                elif f == 'w':
                    need = set()
                    for nn in (n + 1, n + 2):
                        n2 = nn % 16
                        need |= set(regs('a', KF + 16 * ((n2 // 4) % 2), 16)) if n2 // 4 != kt or nn >= 16 else set()
                        if n2 // 2 != dt: need |= set(regs('a', VF + 8 * ((n2 // 2) % 4), 8))
                    ops.append(Op('WAIT', 'wait', rd=need))
            ops.extend(extra.get((n, m), []))
            if m == 7 and cfg.get('stall'):
                ops.append(op_s(f's_nop {cfg["stall"]-1}'))
            if bar and 'nobar' not in XF and n == cfg['bar_group'] and m == cfg['bar_slot']:
                ops.append(Op('BARRIER', 'bar', tag=slot(i)))
            if dma and 'nokv' not in XF:
                for k, (g, sl) in enumerate(cfg['dma']):
                    if g == n and sl == m:
                        ops.append(op_dma(k))
                if cfg['m0'] == (n, m): ops.append(op_s(f's_mov_b32 m0, s{28 + slot(i+4)}'))
                if cfg['sadd'] == (n, m): ops.append(op_s('s_add_u32 s27, s27, 16384'))
    return ops

def finalize(ops, pending_in, vm_wait):
    pend = list(pending_in)
    out = []
    for o in ops:
        if o.kind == 'bar':
            need = -1
            for idx, (w, tg) in enumerate(pend):
                if tg == o.tag: need = idx
            if need >= 0:
                cnt = len(pend) - 1 - need
                out.append(Op(f's_waitcnt vmcnt({vm_wait}) lgkmcnt({min(cnt,15)})', 'salu'))
                pend = pend[need + 1:]
            else:
                out.append(Op(f's_waitcnt vmcnt({vm_wait})', 'salu'))
            out.append(Op('s_barrier', 'salu'))
            continue
        if o.kind in ('mfma', 'valu', 'trans', 'wait'):
            need = -1
            for idx, (w, tg) in enumerate(pend):
                if w & o.rd: need = idx
            if need >= 0:
                cnt = len(pend) - 1 - need
                out.append(Op(f's_waitcnt lgkmcnt({min(cnt,15)})', 'salu'))
                pend = pend[need + 1:]
        if o.kind == 'lds':
            pend.append((frozenset(o.wr), o.tag))
        if o.kind != 'wait': out.append(o)
    return out, pend

def fix_hazards(ops, fix=True):
    pos = 0
    lm = {}; lv = {}; lt = {}
    out = []
    for o in ops:
        need = 0
        if o.kind in ('valu', 'trans'):
            for r in o.rd | o.wr:
                if r in lm: need = max(need, 8 - (pos - lm[r] - 1))
            if o.kind == 'valu':
                for r in o.rd:
                    if r in lt: need = max(need, 1 - (pos - lt[r] - 1))
        if o.kind == 'mfma':
            for r in o.rd | o.wr:
                if r in lv: need = max(need, 2 - (pos - lv[r] - 1))
            for r in o.rd:
                if r in lm: need = max(need, 8 - (pos - lm[r] - 1))
        if need > 0:
            if not fix: raise Exception(f'hazard at {o.text} need {need}')
            out.append(op_s(f's_nop {need-1}')); pos += need
        if o.kind == 'mfma':
            for r in o.wr: lm[r] = pos
        if o.kind in ('valu', 'trans'):
            for r in o.wr:
                lv[r] = pos
                if o.kind == 'trans': lt[r] = pos
                else: lt.pop(r, None)
        m = re.match(r's_nop (\d+)', o.text)
        pos += (int(m.group(1)) + 1) if m else 1
        out.append(o)
    return out

def emit(A, ops):
    for o in ops: A(o.text)

TW = [TA, TB, ADA, ADB]
CN = [E8, E8+1, E8+2, E8+3]
LA = [E8+4, E8+5, E8+6, E8+7]
ENTR = [160, 176, 200, 216]
LIM = 16
def list_scan(A, tag):
    A(f's_mov_b32 s79, {LIM}')
    A.label(f'L2_retry{tag}')
    for k in range(4):
        A(f'v_lshrrev_b32 {vr(CN[k])}, 16, {vr(TW[k])}')
        A(f'v_min_u32 {vr(CN[k])}, s79, {vr(CN[k])}')
    A(f'''
    v_lshl_or_b32 {vr(T0)}, {vr(CN[1])}, 16, {vr(CN[0])}
    v_lshl_or_b32 {vr(T1)}, {vr(CN[3])}, 16, {vr(CN[2])}
    v_mov_b32 {vr(T2)}, {vr(T0)}
    v_mov_b32 {vr(T3)}, {vr(T1)}
    s_nop 0
    ''')
    for mod in ('row_shr:1 row_mask:0xf', 'row_shr:2 row_mask:0xf', 'row_shr:4 row_mask:0xf', 'row_shr:8 row_mask:0xf', 'row_bcast:15 row_mask:0xa', 'row_bcast:31 row_mask:0xc'):
        A(f'v_add_u32_dpp {vr(T2)}, {vr(T2)}, {vr(T2)} {mod} bank_mask:0xf')
        A(f'v_add_u32_dpp {vr(T3)}, {vr(T3)}, {vr(T3)} {mod} bank_mask:0xf')
        A('s_nop 0')
    A(f'''
    v_readlane_b32 s80, {vr(T2)}, 63
    v_readlane_b32 s81, {vr(T3)}, 63
    s_and_b32 s36, s80, 0xffff
    s_lshr_b32 s37, s80, 16
    s_add_u32 s37, s37, s36
    s_and_b32 s38, s81, 0xffff
    s_add_u32 s38, s38, s37
    s_lshr_b32 s76, s81, 16
    s_add_u32 s76, s76, s38
    s_cmp_le_u32 s76, {CAP}
    s_cbranch_scc1 L2_ok{tag}
    s_mov_b32 s79, 4
    s_branch L2_retry{tag}
    ''')
    A.label(f'L2_ok{tag}')
    A(f'''
    v_sub_u32 {vr(T2)}, {vr(T2)}, {vr(T0)}
    v_sub_u32 {vr(T3)}, {vr(T3)}, {vr(T1)}
    v_and_b32 {vr(LA[0])}, 0xffff, {vr(T2)}
    v_lshrrev_b32 {vr(LA[1])}, 16, {vr(T2)}
    v_add_u32 {vr(LA[1])}, s36, {vr(LA[1])}
    v_and_b32 {vr(LA[2])}, 0xffff, {vr(T3)}
    v_add_u32 {vr(LA[2])}, s37, {vr(LA[2])}
    v_lshrrev_b32 {vr(LA[3])}, 16, {vr(T3)}
    v_add_u32 {vr(LA[3])}, s38, {vr(LA[3])}
    s_add_u32 s77, s76, 31
    s_lshr_b32 s77, s77, 5
    s_mov_b32 s78, 0
    v_lshlrev_b32 {vr(T1)}, 13, {vr(LANE)}
    ''')
    for k in range(4):
        A(f'v_lshlrev_b32 {vr(LA[k])}, 2, {vr(LA[k])}')
        A(f'v_add_u32 {vr(LA[k])}, s73, {vr(LA[k])}')

def list_loads(A, tag):
    for st in range(4):
        A(f'v_and_b32 {vr(T0)}, 0xffff, {vr(TW[st])}')
        A(f'v_lshl_add_u32 {vr(T0)}, {vr(T0)}, 2, {vr(T1)}')
        A(f's_mov_b32 s36, {st*64*CH*4}')
        for qd in range(LIM // 4):
            A(f'v_cmp_lt_u32 vcc, {4*qd}, {vr(CN[st])}')
            A('s_mov_b64 exec, vcc')
            A(f's_cbranch_execz L2_ld{tag}_{st}')
            A(f'buffer_load_dwordx4 {ar(ENTR[st]+4*qd,4)}, {vr(T0)}, s[64:67], s36 offen offset:{16*qd} sc1')
        A.label(f'L2_ld{tag}_{st}')
        A('s_mov_b64 exec, -1')

def list_writes(A, tag):
    for st in range(4):
        for qd in range(LIM // 4 - 1, -1, -1):
            A(f'v_cmp_lt_u32 vcc, {4*qd}, {vr(CN[st])}')
            A('s_mov_b64 exec, vcc')
            A(f's_cbranch_execz L2_w{tag}_{st}_{qd}')
            for j in range(3, -1, -1):
                A(f'ds_write_b32 {vr(LA[st])}, {ar(ENTR[st]+4*qd+j)} offset:{4*(4*qd+j)}')
            A.label(f'L2_w{tag}_{st}_{qd}')
            A('s_mov_b64 exec, -1')
    A(f'''
    v_add_u32 {vr(T2)}, s76, {vr(LANE)}
    v_lshlrev_b32 {vr(T2)}, 2, {vr(T2)}
    v_add_u32 {vr(T2)}, s73, {vr(T2)}
    v_mov_b32 {vr(T3)}, 0x7ffffff0
    ds_write_b32 {vr(T2)}, {vr(T3)}
    ds_write_b32 {vr(T2)}, {vr(T3)} offset:256
    ds_write_b32 {vr(T2)}, {vr(T3)} offset:512
    ''')
    for k in range(4):
        A(f'v_add_u32 {vr(TW[k])}, {vr(TW[k])}, {vr(CN[k])}')
        A(f'v_lshlrev_b32 {vr(CN[k])}, 16, {vr(CN[k])}')
        A(f'v_sub_u32 {vr(TW[k])}, {vr(TW[k])}, {vr(CN[k])}')
    A(f'''
    v_lshrrev_b32 {vr(LPI)}, 4, {vr(LANE)}
    v_lshlrev_b32 {vr(LPI)}, 2, {vr(LPI)}
    v_add_u32 {vr(LPI)}, s73, {vr(LPI)}
    v_and_b32 {vr(LPC)}, 31, {vr(LANE)}
    v_lshlrev_b32 {vr(LPC)}, 2, {vr(LPC)}
    v_add_u32 {vr(LPC)}, s73, {vr(LPC)}
    ''')

def table_loads(A):
    A(f'v_mov_b32 {vr(T4)}, {NBIN*4}')
    A(f'v_mul_u32_u24 {vr(T4)}, {vr(T4)}, {vr(LANE)}')
    A('s_lshl_b32 s80, s72, 2')
    for k in range(4):
        A(f'buffer_load_dword {vr(TW[k])}, {vr(T4)}, s[68:71], s80 offen sc1')
        if k < 3: A(f's_add_u32 s80, s80, {64*NBIN*4}')

def full_check_issue(A, vdst, vaddr):
    A(f'v_min_u32 {vr(vaddr)}, 49, {vr(LANE)}')
    A(f'v_lshlrev_b32 {vr(vaddr)}, 8, {vr(vaddr)}')
    A(f's_mov_b32 s39, {WS_FLAG-WS_BND+32}')
    A(f'buffer_load_dwordx4 {vr(vdst,4)}, {vr(vaddr)}, s[20:23], s39 offen sc1')
    A(f'buffer_load_dword {vr(vdst+4)}, {vr(vaddr)}, s[20:23], s39 offen offset:16 sc1')

def flags_spin(A, tag, vdst, vaddr, first_wait):
    A('s_mov_b32 s41, 0x20000')
    A(first_wait)
    A.label(f'L2_fs{tag}')
    A(f'''
    v_and_b32 {vr(vdst)}, {vr(vdst)}, {vr(vdst+1)}
    v_and_b32 {vr(vdst+2)}, {vr(vdst+2)}, {vr(vdst+3)}
    v_and_b32 {vr(vdst)}, {vr(vdst)}, {vr(vdst+4)}
    v_and_b32 {vr(vdst)}, {vr(vdst)}, {vr(vdst+2)}
    v_cmp_ne_u32 vcc, 1, {vr(vdst)}
    s_cbranch_vccz L2_fsok{tag}
    s_sub_u32 s41, s41, 1
    s_cmp_eq_u32 s41, 0
    s_cbranch_scc1 L2_fsok{tag}
    s_sleep 1
    buffer_load_dwordx4 {vr(vdst,4)}, {vr(vaddr)}, s[20:23], s39 offen sc1
    buffer_load_dword {vr(vdst+4)}, {vr(vaddr)}, s[20:23], s39 offen offset:16 sc1
    s_waitcnt vmcnt(0)
    s_branch L2_fs{tag}
    ''')
    A.label(f'L2_fsok{tag}')

def w23_dma_ops():
    res = []
    for b in range(4):
        for k in range(4):
            ops = []
            if k == 0:
                ops.append(op_s(f's_add_u32 m0, s74, {b*4096}'))
                ops.append(op_s('s_nop 0'))
            ops.append(Op(f'buffer_load_dwordx4 {vr(T5)}, s[12:15], s33 offen offset:{k*1024} sc1 lds', 'vmem'))
            if k == 3: ops.append(op_s('s_add_u32 s33, s33, 4096'))
            res.append(ops)
    return res

def gen_k2(A, cfg=None, name='attn_kernel', stamp=0, flags=()):
    cfg = cfg or DEFAULT
    def st(i):
        if stamp: A(f's_memrealtime s[{44+2*i}:{45+2*i}]')
    A.raw(f'.globl {name}\n.p2align 8\n.type {name},@function')
    A.label(name)
    L = vr(LANE)
    A(f'''
    s_cmp_ge_u32 s2, 256
    s_cbranch_scc1 L2_done
    s_load_dwordx2 s[4:5], s[0:1], 88
    s_load_dwordx2 s[100:101], s[0:1], 80
    s_cmp_lt_u32 s2, 11
    s_cbranch_scc1 L_helper
    s_load_dwordx2 s[6:7], s[0:1], 0
    s_load_dwordx2 s[84:85], s[0:1], 24
    s_load_dwordx2 s[86:87], s[0:1], 72
    s_load_dwordx4 s[76:79], s[0:1], 40
    s_load_dwordx4 s[96:99], s[0:1], 8
    ''')
    for i in range(10): st(i)
    A(f'''
    v_lshrrev_b32 v1, 6, v0
    v_and_b32 v0, 63, v0
    v_mov_b32 {L}, v0
    s_mov_b32 s3, 0x33333334
    v_readfirstlane_b32 s26, v1
    s_lshr_b32 s33, s2, 3
    s_lshl_b32 s40, s33, 2
    s_sub_u32 s33, s33, 2
    s_mul_hi_u32 s24, s33, s3
    s_mul_i32 s3, s24, 5
    s_sub_u32 s25, s33, s3
    s_lshl_b32 s24, s24, 3
    s_and_b32 s3, s2, 7
    s_add_u32 s24, s24, s3
    s_sub_u32 s3, s2, 11
    s_cmp_lt_u32 s2, 16
    s_cselect_b32 s24, 48, s24
    s_cselect_b32 s25, s3, s25
    v_and_b32 v2, 15, v0
    v_lshrrev_b32 v3, 4, v0
    v_lshlrev_b32 {vr(T5)}, 4, v0
    s_mul_i32 s72, s26, 5
    s_add_u32 s72, s72, 4
    s_sub_u32 s72, s72, s25
    s_lshl_b32 s3, s24, 4
    s_cmp_lt_u32 s72, 16
    s_cselect_b32 s82, 1, 0
    s_add_u32 s72, s72, s3
    s_cmp_eq_u32 s82, 1
    s_cselect_b32 s72, s72, 0x100000
    s_mul_i32 s73, s26, {GSIZE}
    s_add_u32 s73, s73, {GBASE}
    s_add_u32 s74, s73, 8192
    s_add_u32 s75, s73, 16384
    s_add_u32 s40, s40, s26
    s_sub_u32 s40, s40, 4
    ''')
    asmlib.code_prefetch(A, 'k2', name, 'L_code_end', 42, 40, 41, T5, 200)
    A('s_waitcnt lgkmcnt(0)')
    srd(A, 88, 76, 0, 32768)
    srd(A, 92, 78, 0, 32768)
    srd(A, 64, 4, WS_EDGE, NCH*CH*4+256)
    srd(A, 20, 4, WS_BND, WS_W23-WS_BND)
    dma_fn = lambda: phase_a.weights_dma(A, 26, 88, 92, lambda ii: ii >> 1)
    A('s_cmp_eq_u32 s82, 0')
    A('s_cbranch_scc1 L_binw')
    srd(A, 68, 6, 0, N*256)
    phase_a.owner_x_loads(A)
    dma_fn()
    srd(A, 8, 4, WS_H1, N*256)
    srd(A, 12, 4, WS_QF, 784*4096)
    phase_a.owner_compute(A, st)
    A('s_branch L_adone')
    A.label('L_binw')
    srd(A, 12, 96, 0, E*4)
    srd(A, 16, 98, 0, E*4)
    srd(A, 68, 4, WS_TAB, NCH*NBIN*4)
    phase_a.bin_wave(A, dma_fn)
    A.label('L_adone')
    st(9)
    srd(A, 96, 100, 0, 256)
    A('v_mov_b32 v10, 0')
    A('buffer_load_dword v11, v10, s[96:99], 0 offen sc1')
    srd(A, 8, 4, WS_H1, N*256)
    srd(A, 12, 4, WS_QF, 784*4096)
    srd(A, 16, 4, WS_OP, 5*784*4096)
    srd(A, 68, 4, WS_TAB, NCH*NBIN*4)
    def dma_tile(j):
        ops = [op_s(f's_mov_b32 m0, s{28+slot(j)}'), op_s('s_nop 0')] + [op_dma(k) for k in range(4)] + [op_s('s_add_u32 s27, s27, 16384')]
        return ops
    A(f'''
    s_lshl_b32 s33, s26, 12
    v_add_u32 {vr(VDMA)}, s33, {vr(T5)}
    s_mul_i32 s27, s25, {SPLITB}
    s_add_u32 s28, s33, 0
    s_add_u32 s29, s33, 16384
    s_add_u32 s30, s33, 32768
    s_add_u32 s31, s33, 49152
    s_lshl_b32 s34, s24, 4
    s_lshl_b32 s35, s26, 2
    s_add_u32 s34, s34, s35
    s_lshl_b32 s35, s34, 12
    v_and_b32 v4, 7, {L}
    v_lshlrev_b32 v4, 1, v4
    v_lshrrev_b32 v5, 4, {L}
    v_xor_b32 v4, v4, v5
    v_and_b32 v6, 15, {L}
    v_lshlrev_b32 v7, 8, v6
    ''')
    for s in range(4):
        A(f'v_xor_b32 v8, {4*s}, v4')
        A(f'v_lshl_add_u32 {vr(KADDR+s)}, v8, 4, v7')
    A(f'''
    v_lshrrev_b32 v4, 2, {L}
    v_lshlrev_b32 v7, 8, v4
    v_and_b32 v4, 7, v4
    v_and_b32 v8, 3, {L}
    v_lshl_add_u32 v7, v8, 3, v7
    ''')
    for dt in range(8):
        A(f'v_xor_b32 v8, {dt}, v4')
        A(f'v_lshl_add_u32 {vr(VADDR+dt)}, v8, 5, v7')
        A(f'v_add_u32 {vr(VADDR2+dt)}, s74, {vr(VADDR+dt)}')
    A(f'''
    v_lshlrev_b32 v8, 1, v5
    v_xor_b32 v8, v8, v6
    v_lshlrev_b32 {vr(PC0)}, 4, v8
    v_xor_b32 {vr(PC1)}, 0x80, {vr(PC0)}
    v_bfe_u32 v8, {L}, 2, 2
    v_lshlrev_b32 v8, 4, v8
    v_bfe_u32 v9, {L}, 4, 1
    v_lshl_add_u32 v8, v9, 3, v8
    v_and_b32 v9, 3, {L}
    v_lshl_add_u32 v8, v9, 1, v8
    s_add_u32 s83, s73, 5120
    v_add_u32 {vr(SELW)}, s83, v8
    v_lshlrev_b32 v8, 6, v6
    v_lshl_add_u32 v8, v5, 4, v8
    v_add_u32 {vr(SELR)}, s83, v8
    v_mov_b32 {vr(ONE)}, 0x3f80
    ''')
    for r in range(32): A(f'v_accvgpr_write_b32 {ar(HS+r)}, 0')
    for r in range(4): A(f'v_accvgpr_write_b32 {ar(ZERO+r)}, 0')
    A('s_waitcnt vmcnt(0)')
    A('s_barrier')
    st(1)
    A('s_cmp_lg_u32 s26, 0')
    A('s_cbranch_scc1 L_depok')
    A('v_cmp_ne_u32 vcc, 1, v11')
    A('s_cbranch_vccz L_rsokm')
    phase_a.ready_spin(A, 'm', 11, 10)
    A(f'''
    s_lshl_b32 s40, s24, 8
    s_lshl_b32 s41, s25, 2
    s_add_u32 s41, s41, s40
    s_add_u32 s41, s41, {WS_FLAG-WS_BND+32}
    v_mov_b32 v11, 1
    s_mov_b64 exec, 1
    buffer_store_dword v11, v10, s[20:23], s41 offen sc1
    s_mov_b64 exec, -1
    s_lshr_b32 s41, s27, 16
    s_lshl_b32 s41, s41, 8
    s_add_u32 s42, s27, {255*256}
    s_lshr_b32 s42, s42, 16
    s_lshl_b32 s42, s42, 8
    v_mov_b32 v12, s40
    v_mov_b32 v13, s41
    v_cmp_eq_u32 vcc, 1, {L}
    s_nop 1
    v_cndmask_b32 v12, v12, v13, vcc
    v_mov_b32 v13, s42
    v_cmp_eq_u32 vcc, 2, {L}
    s_nop 1
    v_cndmask_b32 v12, v12, v13, vcc
    s_mov_b32 s39, {WS_FLAG-WS_BND+32}
    buffer_load_dwordx4 v[16:19], v12, s[20:23], s39 offen sc1
    buffer_load_dword v20, v12, s[20:23], s39 offen offset:16 sc1
    ''')
    flags_spin(A, 'a', 16, 12, 's_waitcnt vmcnt(0)')
    A.label('L_depok')
    A('s_barrier')
    st(2)
    emit(A, dma_tile(0))
    A(f'''
    s_add_u32 s36, s35, 4096
    s_add_u32 s37, s35, 8192
    s_add_u32 s38, s35, 12288
    s_lshl_b32 s39, s24, 10
    ''')
    for q in range(4):
        for s in range(4):
            A(f'buffer_load_dwordx4 {ar(QF+4*(q*4+s),4)}, {vr(T5)}, s[12:15], s{35+q} offen offset:{s*1024}{LDSC}')
    A(f'buffer_load_dwordx4 v[0:3], {vr(T5)}, s[20:23], s39 offen sc1')
    emit(A, dma_tile(1))
    A('s_waitcnt vmcnt(0)')
    A('s_barrier')
    emit(A, [op_kread(0, 0, s) for s in range(4)])
    full_check_issue(A, E8, E8+6)
    A(f'''
    v_max3_f32 v0, v0, v1, v2
    v_max_f32 v0, v0, v3
    v_cmp_lt_f32 vcc, {hex(f32bits(THRESH))}, v0
    s_cbranch_vccnz L2_slow
    ''')
    pro = []
    d2, d3 = dma_tile(2), dma_tile(3)
    if cfg['sadd'] < cfg['dma'][0]: d3 = d3[:-1]
    dq = d2 + d3
    for n in range(16):
        kt = n // 4
        fill = []
        if n >= 2:
            fill = [[op_exp(n-2, 0)], [op_exp(n-2, 1)], [op_exp(n-2, 2)], [op_exp(n-2, 3), op_cvt(0, n-2, 0), op_cvt(0, n-2, 1)]]
        else:
            fill = [[], [], [], []]
        for s in range(4):
            pro.append(op_qk(n, s))
            pro += fill[s]
        ktn = kt + 1
        pro.append(op_kread(0 if ktn < 4 else 1, ktn % 4, n % 4))
        if n >= 12:
            pro += [op_vread(0, (n - 12) // 2, n % 2, x) for x in range(2)]
        if n < 8:
            while dq and dq[0].kind != 'vmem': pro.append(dq.pop(0))
            if dq: pro.append(dq.pop(0))
            if dq and dq[0].text.startswith('s_add'): pro.append(dq.pop(0))
    pro += [op_exp(14, r) for r in range(4)] + [op_cvt(0, 14, 0), op_cvt(0, 14, 1)]
    pend0 = [(frozenset(regs('a', KF+4*s, 4)), -1) for s in range(4)]
    pro, pend = finalize(pro, pend0, 4)
    pend = [(w, -1) for w, _ in pend]
    it0, pend = finalize(build_iter(0, cfg, first_pv=True), pend, 4)
    emit(A, fix_hazards(pro))
    st(3)
    flags_spin(A, 'b', E8, E8+6, 's_waitcnt vmcnt(8)')
    table_loads(A)
    emit(A, fix_hazards(it0))
    A('s_waitcnt vmcnt(4)')
    list_scan(A, 'a')
    list_loads(A, 'a')
    A('s_waitcnt lgkmcnt(0)')
    _, pend_ss = finalize(build_iter(3, cfg), [], 4)
    pend_ss = [(w, -1) for w, _ in pend_ss]
    it1, _ = finalize(build_iter(1, cfg, dma=False), [], 0)
    emit(A, fix_hazards(it1))
    list_writes(A, 'a')
    gi = g_issue_reads(0)
    for k in range(8): gi += g_issue_dma(k, 0)
    A('s_waitcnt lgkmcnt(0)')
    gi, _ = finalize(gi, [], 0)
    emit(A, gi)
    d5 = dma_tile(5)
    if cfg['sadd'] < cfg['dma'][0]: d5 = d5[-1:] + d5[:-1]
    emit(A, d5)
    A('s_mov_b32 s32, 9')
    A('s_cmp_eq_u32 s25, 4')
    A('s_cselect_b32 s83, 1, 0')
    A.raw('.p2align 6')
    A.label('L2_head')
    if stamp == 2:
        A('s_memrealtime s[96:97]')
        A('s_memtime s[98:99]')
        A('s_waitcnt lgkmcnt(0)')
        A(f'v_mov_b32 {vr(T2)}, s96')
        A(f'v_mov_b32 {vr(T3)}, s98')
        A(f'v_cmp_eq_u32 vcc, s32, {vr(LANE)}')
        A('s_nop 1')
        A(f'v_cndmask_b32 {vr(T0)}, {vr(T0)}, {vr(T2)}, vcc')
        A(f'v_cndmask_b32 {vr(T1)}, {vr(T1)}, {vr(T3)}, vcc')
    A('s_cmp_eq_u32 s32, 1')
    A('s_cbranch_scc1 L2_body0')
    A('s_cmp_lt_u32 s78, s77')
    if 'nog' not in flags: A('s_cbranch_scc1 L2_gbody')
    body = []
    for p in range(4):
        ops, pe = finalize(build_iter(p + 2, cfg), pend_ss, 4)
        body += ops
        if p == 2:
            A('s_cmp_eq_u32 s32, s83')
            A('s_cbranch_scc1 L2_post2')
        A.label(f'L2_body{p}')
        emit(A, ops)
    if not XF: fix_hazards(body + body, fix=False)
    A('s_sub_u32 s32, s32, 1')
    A('s_cmp_lg_u32 s32, 0')
    A('s_cbranch_scc1 L2_head')
    A('s_branch L2_post')
    A.raw('.p2align 6')
    A.label('L2_gbody')
    gbody = []
    for p in range(4):
        ops, pe = finalize(build_iter(p + 2, cfg, g_issue=(128 * (p + 1), (p + 1) % 2), g_cons=(128 * p, p % 2, 12)), pend_ss, 12)
        assert XF or [w for w, _ in pe] == [w for w, _ in pend_ss], (pe, pend_ss)
        gbody += ops
        emit(A, ops)
        A('s_add_u32 s78, s78, 1')
        if p < 3:
            A('s_cmp_ge_u32 s78, s77')
            A(f's_cbranch_scc1 L2_body{p+1}')
    if not XF: fix_hazards(gbody + gbody, fix=False); fix_hazards(gbody + body, fix=False); fix_hazards(it1 + gbody, fix=False)
    A(f'v_add_u32 {vr(LPI)}, 512, {vr(LPI)}')
    A(f'v_add_u32 {vr(LPC)}, 512, {vr(LPC)}')
    A('s_sub_u32 s32, s32, 1')
    A('s_cmp_lg_u32 s32, 0')
    A('s_cbranch_scc1 L2_head')
    A.label('L2_post')
    if stamp == 2:
        A('s_memrealtime s[96:97]')
        A('s_memtime s[98:99]')
        A('s_waitcnt lgkmcnt(0)')
        A(f'v_mov_b32 {vr(T2)}, s96')
        A(f'v_mov_b32 {vr(T3)}, s98')
        A(f'v_cmp_eq_u32 vcc, s32, {vr(LANE)}')
        A('s_nop 1')
        A(f'v_cndmask_b32 {vr(T0)}, {vr(T0)}, {vr(T2)}, vcc')
        A(f'v_cndmask_b32 {vr(T1)}, {vr(T1)}, {vr(T3)}, vcc')
        A(f'v_accvgpr_write_b32 a252, {vr(T0)}')
        A(f'v_accvgpr_write_b32 a253, {vr(T1)}')
    def store_setup():
        srd(A, 12, 4, WS_W23, 65536)
        A('s_lshl_b32 s33, s26, 14')
        A(f'v_lshlrev_b32 {vr(T5)}, 4, {L}')
        A(f'''
        s_mul_i32 s40, s25, {784*4096}
        s_add_u32 s40, s40, s35
        s_add_u32 s41, s40, 4096
        s_add_u32 s42, s40, 8192
        s_add_u32 s43, s40, 12288
        ''')
    def store_ops(w, q):
        d = 128 + 4 * (w * 4 + q) if False else SBUF + 4 * ((w * 4 + q) % 8)
        ops = []
        for h in range(2):
            b = O(2 * w + h, q)
            ops.append(Op(f'v_cvt_pk_bf16_f32 {vr(d+2*h)}, {vr(b)}, {vr(b+1)}', 'valu', rd=regs('v', b, 2), wr=[('v', d+2*h)]))
            ops.append(Op(f'v_cvt_pk_bf16_f32 {vr(d+2*h+1)}, {vr(b+2)}, {vr(b+3)}', 'valu', rd=regs('v', b+2, 2), wr=[('v', d+2*h+1)]))
        ops.append(Op(f'buffer_store_dwordx4 {vr(d,4)}, {vr(T5)}, s[16:19], s{40+q} offen offset:{w*1024} sc1', 'vmem'))
        return ops
    def lm_stores():
        A(f'''
        v_and_b32 {vr(T4)}, 15, {L}
        v_lshlrev_b32 {vr(T4)}, 2, {vr(T4)}
        s_mul_i32 s36, s25, {NPAD*4}
        s_lshl_b32 s37, s34, 6
        s_add_u32 s36, s36, s37
        s_add_u32 s36, s36, {WS_L-WS_BND}
        s_add_u32 s37, s36, {WS_M-WS_L}
        s_mov_b32 exec_lo, 0
        s_mov_b32 exec_hi, 0xffff0000
        ''')
        for q in range(4):
            A(f'buffer_store_dword {vr(O(7,q)+3)}, {vr(T4)}, s[20:23], s36 offen offset:{64*q} sc1')
            A(f'buffer_store_dword {vr(T0+q)}, {vr(T4)}, s[20:23], s37 offen offset:{64*q} sc1')
        A('s_mov_b64 exec, -1')
    def post(i0):
        store_setup()
        it38, pe = finalize(build_iter(i0, cfg, nqk=8, next_k=False, next_v_us=(0,), bar=False, dma=False), pend_ss, 4)
        last, _ = finalize(build_iter(i0 + 1, cfg, nqk=0, pv_us=(0,), next_k=False, next_v_us=(), bar=False, dma=False, prev_tile=None), pe, 4)
        wd = w23_dma_ops()
        it38b = []
        nm = 0
        for o in it38:
            it38b.append(o)
            if o.kind == 'mfma':
                nm += 1
                if nm >= 64 and nm % 2 == 0 and wd:
                    it38b += wd.pop(0)
        assert not wd
        lastb = []
        nm = 0
        pendst = [(w, q) for w in range(3) for q in range(4)]
        for o in last:
            lastb.append(o)
            if o.kind == 'mfma':
                nm += 1
                if pendst and nm >= 8 * (pendst[0][0] + 1) + 2 and nm % 2 == 0:
                    lastb += store_ops(*pendst.pop(0))
        rest = []
        for wq in pendst + [(3, q) for q in range(4)]:
            rest += store_ops(*wq)
        emit(A, fix_hazards(body[-40:] + it38b + lastb + rest)[40:])
        st(4)
        A(f'v_mov_b32 {vr(T0)}, 0\nv_mov_b32 {vr(T1)}, 0\nv_mov_b32 {vr(T2)}, 0\nv_mov_b32 {vr(T3)}, 0')
    post(38)
    A('s_branch L2_lm')
    A.label('L2_post2')
    post(36)
    A('s_branch L2_lm')
    A.label('L2_store')
    store_setup()
    for ops in w23_dma_ops(): emit(A, ops)
    allst = []
    for w in range(4):
        for q in range(4): allst += store_ops(w, q)
    emit(A, allst)
    A.label('L2_lm')
    lm_stores()
    A('s_waitcnt vmcnt(0)')
    A('s_barrier')
    st(5)
    A(f'''
    s_lshl_b32 s40, s24, 8
    s_add_u32 s40, s40, {WS_FLAG-WS_BND}
    s_cmp_lg_u32 s26, 0
    s_cbranch_scc1 L2_noflag
    s_lshl_b32 s41, s25, 2
    v_mov_b32 {vr(T0)}, s41
    v_mov_b32 {vr(T1)}, 1
    s_mov_b64 exec, 1
    buffer_store_dword {vr(T1)}, {vr(T0)}, s[20:23], s40 offen sc1
    s_mov_b64 exec, -1
    ''')
    A.label('L2_noflag')
    A('s_cmp_eq_u32 s82, 0')
    A('s_cbranch_scc1 L2_exit')
    X, DI = 106, 122
    srd(A, 68, 6, 0, N*256)
    srd(A, 88, 84, 0, N*2)
    srd(A, 92, 86, 0, N*256)
    A(f'''
    s_lshl_b32 s36, s72, 12
    v_and_b32 v1, 15, {L}
    v_lshrrev_b32 v2, 4, {L}
    v_lshlrev_b32 v6, 8, v1
    v_lshl_add_u32 v6, v2, 4, v6
    v_lshlrev_b32 v7, 1, v1
    s_lshl_b32 s37, s72, 5
    ''')
    for w in range(4):
        A(f'buffer_load_dwordx4 {vr(X+4*w,4)}, v6, s[68:71], s36 offen offset:{w*64}')
    A(f'buffer_load_ushort {vr(DI)}, v7, s[88:91], s37 offen')
    A('s_lshl_b32 s74, s26, 14')
    for dt in range(8):
        A(f'v_add_u32 {vr(VADDR2+dt)}, s74, {vr(VADDR+dt)}')
    A.label('L2_left')
    A('s_cmp_ge_u32 s78, s77')
    A('s_cbranch_scc1 L2_leftdone')
    ops = g_issue_reads(0)
    for k in range(8): ops += g_issue_dma(k, 0)
    ops += g_sel1(0) + g_sel2() + g_sel3() + [op_s('s_waitcnt vmcnt(0)')]
    ops += [g_tr(dt, x, 0) for dt in range(8) for x in range(2)] + [g_mfma(dt) for dt in range(8)]
    ops, _ = finalize(ops, [], 0)
    emit(A, fix_hazards(ops))
    A(f'v_add_u32 {vr(LPI)}, 128, {vr(LPI)}')
    A(f'v_add_u32 {vr(LPC)}, 128, {vr(LPC)}')
    A('s_add_u32 s78, s78, 1')
    A('s_branch L2_left')
    A.label('L2_leftdone')
    A(f'''
    v_or3_b32 {vr(T0)}, {vr(TW[0])}, {vr(TW[1])}, {vr(TW[2])}
    v_or_b32 {vr(T0)}, {vr(T0)}, {vr(TW[3])}
    v_lshrrev_b32 {vr(T0)}, 16, {vr(T0)}
    v_cmp_ne_u32 vcc, 0, {vr(T0)}
    s_cbranch_vccz L2_poll
    ''')
    list_scan(A, 'b')
    list_loads(A, 'b')
    A('s_waitcnt vmcnt(0)')
    list_writes(A, 'b')
    A('s_branch L2_left')
    A.label('L2_poll')
    A('s_lshl_b32 s36, s72, 12')
    BF = 128
    A('s_waitcnt vmcnt(0)')
    A(f'v_lshlrev_b32 {vr(DI)}, 16, {vr(DI)}')
    HV = 176
    for k in range(32):
        A(f'v_accvgpr_read_b32 {vr(HV+k)}, {ar(HS+k)}')
    for k in range(32):
        A(f'v_mul_f32 {vr(HV+k)}, {vr(HV+k)}, {vr(DI)}')
    for k in range(16):
        A(f'v_cvt_pk_bf16_f32 {vr(BF+16+k)}, {vr(HV+2*k)}, {vr(HV+2*k+1)}')
    A(f'''
    v_min_u32 v8, 4, {L}
    v_lshlrev_b32 v8, 2, v8
    s_mov_b32 s42, 0x20000
    ''')
    A.label('L2_spin')
    A(f'''
    buffer_load_dword v9, v8, s[20:23], s40 offen sc1
    s_waitcnt vmcnt(0)
    v_cmp_ne_u32 vcc, 1, v9
    s_cbranch_vccz L2_go
    s_sleep 2
    s_sub_u32 s42, s42, 1
    s_cmp_lg_u32 s42, 0
    s_cbranch_scc1 L2_spin
    ''')
    A.label('L2_go')
    st(6)
    OPR, LL, MM = 16, 96, 101
    A('v_lshlrev_b32 v5, 2, v1')
    A(f's_lshl_b32 s38, s72, 6')
    for s in range(5):
        A(f's_add_u32 s39, s38, {s*NPAD*4+WS_L-WS_BND}')
        A(f'buffer_load_dword {vr(LL+s)}, v5, s[20:23], s39 offen sc1')
        A(f's_add_u32 s41, s38, {s*NPAD*4+WS_M-WS_BND}')
        A(f'buffer_load_dword {vr(MM+s)}, v5, s[20:23], s41 offen sc1')
    for s in range(5):
        if s > 0: A(f's_add_u32 s39, s36, {s*784*4096}')
        for w in range(4):
            A(f'buffer_load_dwordx4 {vr(OPR+16*s+4*w,4)}, {vr(T5)}, s[16:19], s{36 if s == 0 else 39} offen offset:{w*1024} sc1')
    A('s_waitcnt vmcnt(20)')
    A(f'v_max3_f32 v7, {vr(MM)}, {vr(MM+1)}, {vr(MM+2)}')
    A(f'v_max3_f32 v7, v7, {vr(MM+3)}, {vr(MM+4)}')
    for s in range(5): A(f'v_sub_f32 {vr(MM+s)}, {vr(MM+s)}, v7')
    for s in range(5): A(f'v_exp_f32 {vr(MM+s)}, {vr(MM+s)}')
    A('s_nop 0')
    A(f'v_mul_f32 v7, {vr(MM)}, {vr(LL)}')
    for s in range(1, 5): A(f'v_fmac_f32 v7, {vr(MM+s)}, {vr(LL+s)}')
    A('v_rcp_f32 v7, v7')
    for s in range(5):
        A(f'v_lshrrev_b32 {vr(LL+s)}, 16, {vr(MM+s)}')
        A(f'v_and_b32 {vr(MM+s)}, 0xffff0000, {vr(MM+s)}')
    G = 176
    for s in range(5):
        A(f's_waitcnt vmcnt({16-4*s})')
        for k in range(16):
            src = OPR + 16 * s + k
            c0 = '0' if s == 0 else vr(G + 2 * k)
            c1 = '0' if s == 0 else vr(G + 2 * k + 1)
            A(f'v_dot2_f32_bf16 {vr(G+2*k)}, {vr(src)}, {vr(LL+s)}, {c0}')
            A(f'v_dot2_f32_bf16 {vr(G+2*k+1)}, {vr(src)}, {vr(MM+s)}, {c1}')
    st(7)
    WB = [0, 32]
    A(f'v_add_u32 v10, {GBASE+8192}, {vr(T5)}')
    A(f'v_add_u32 v11, {GBASE+8192+2*GSIZE}, {vr(T5)}')
    def wreads(et):
        for ks in range(8):
            A(f'ds_read_b128 {ar(WB[et%2]+4*ks,4)}, {vr(10 + et//4)} offset:{((et//2)%2)*GSIZE+((et%2)*8+ks)*1024}')
    wreads(0)
    for k in range(32): A(f'v_mul_f32 {vr(G+k)}, {vr(G+k)}, v7')
    for k in range(16): A(f'v_cvt_pk_bf16_f32 {vr(BF+k)}, {vr(G+2*k)}, {vr(G+2*k+1)}')
    Y = 16
    for et in range(8):
        if et < 7: wreads(et + 1)
        A(f's_waitcnt lgkmcnt({8 if et < 7 else 0})')
        for ks in range(8):
            c = '0' if ks == 0 else vr(Y+4*et, 4)
            A(f'v_mfma_f32_16x16x32_bf16 {vr(Y+4*et,4)}, {ar(WB[et%2]+4*ks,4)}, {vr(BF+4*ks,4)}, {c}')
    A('s_nop 7')
    for w in range(4):
        for i in range(4):
            xr = X + 4 * w + i
            y = Y + 8 * w + 2 * i
            A(f'v_lshlrev_b32 v7, 16, {vr(xr)}')
            A(f'v_and_b32 v8, 0xffff0000, {vr(xr)}')
            A(f'v_add_f32 v7, v7, {vr(y)}')
            A(f'v_add_f32 v8, v8, {vr(y+1)}')
            A(f'v_cvt_pk_bf16_f32 {vr(xr)}, v7, v8')
        A(f'buffer_store_dwordx4 {vr(X+4*w,4)}, v6, s[92:95], s36 offen offset:{w*64}{OUTSC}')
    A.label('L2_exit')
    if stamp:
        A('s_waitcnt vmcnt(0)')
        st(8)
        A('s_waitcnt lgkmcnt(0)')
        for i in range(10): A(f'v_mov_b32 {vr(i)}, s{44+2*i}')
        A(f's_lshl_b32 s40, s2, 2')
        A(f's_add_u32 s40, s40, s26')
        A(f's_lshl_b32 s40, s40, 6')
        A(f's_add_u32 s40, s40, {WS_STAMP-WS_BND}')
        A(f's_mov_b32 s22, 0x7fffffff')
        if stamp == 2:
            A(f's_lshl_b32 s41, s2, 2')
            A(f's_add_u32 s41, s41, s26')
            A(f's_lshl_b32 s41, s41, 7')
            A(f's_add_u32 s41, s41, {WS_STAMP-WS_BND+0x80000}')
            A(f'v_lshlrev_b32 v20, 2, {vr(LANE)}')
            A(f's_mov_b64 exec, 0xffff')
            A(f'buffer_store_dword a252, v20, s[20:23], s41 offen')
            A(f'buffer_store_dword a253, v20, s[20:23], s41 offen offset:64')
            A(f's_mov_b64 exec, -1')
        A(f'v_mov_b32 v20, 0')
        A(f'v_mov_b32 v10, s82')
        A(f'v_mov_b32 v11, s77')
        A(f's_mov_b64 exec, 1')
        for i in range(3):
            A(f'buffer_store_dwordx4 v[{4*i}:{4*i+3}], v20, s[20:23], s40 offen offset:{16*i}')
    A.label('L2_done')
    A('s_endpgm')
    gen_slow(A)
    phase_a.helpers(A)

def gen_slow(A):
    L = vr(LANE)
    A.label('L2_slow')
    flags_spin(A, 's', E8, E8+6, 's_waitcnt vmcnt(0) lgkmcnt(0)')
    table_loads(A)
    A('s_waitcnt vmcnt(0)')
    list_scan(A, 's')
    list_loads(A, 's')
    A('s_waitcnt vmcnt(0)')
    list_writes(A, 's')
    MX = [T0, T1, T2, T3]
    for q in range(4): A(f'v_mov_b32 {vr(MX[q])}, 0xf149f2ca')
    for r in range(128): A(f'v_mov_b32 {vr(r)}, 0')
    A(f'''
    s_mul_i32 s27, s25, {SPLITB}
    s_mul_i32 s40, s25, {79*32}
    s_add_u32 s41, s40, {79*32}
    s_min_u32 s41, s41, {N}
    v_lshrrev_b32 {vr(T4)}, 4, {L}
    v_lshlrev_b32 {vr(T4)}, 2, {vr(T4)}
    v_add_u32 {vr(T4)}, s40, {vr(T4)}
    s_mov_b32 s32, 40
    v_mov_b32 {vr(T5)}, 0xff800000
    ''')
    def S(kt, q): return 128 + 8 * ((kt // 2) * 4 + q) + 4 * (kt % 2)
    A.label('L2_sloop')
    A('s_barrier')
    A('s_mov_b32 m0, s28')
    A('s_nop 0')
    for k in range(4): A(op_dma(k).text)
    A('s_add_u32 s27, s27, 16384')
    A('s_waitcnt vmcnt(0)')
    A('s_barrier')
    for kt in range(4):
        for s in range(4):
            A(f'ds_read_b128 {ar(KF+4*s,4)}, {vr(KADDR+s)} offset:{kt*4096}')
        A('s_waitcnt lgkmcnt(0)')
        for q in range(4):
            for s in range(4):
                d = S(kt, q)
                A(f'v_mfma_f32_16x16x32_bf16 {vr(d,4)}, {ar(KF+4*s,4)}, {ar(QF+4*(q*4+s),4)}, {"0" if s == 0 else vr(d,4)}')
    A('s_nop 7')
    for kt in range(4):
        for r in range(4):
            A(f'v_add_u32 {vr(192)}, {16*kt+r}, {vr(T4)}')
            A(f'v_cmp_gt_u32 vcc, s41, {vr(192)}')
            A('s_nop 1')
            for q in range(4):
                A(f'v_cndmask_b32 {vr(S(kt,q)+r)}, {vr(T5)}, {vr(S(kt,q)+r)}, vcc')
    A(f'v_add_u32 {vr(T4)}, 64, {vr(T4)}')
    a, b, al = 192, 193, 194
    for q in range(4):
        vals = [S(kt, q) + r for kt in range(4) for r in range(4)]
        A(f'v_max_f32 {vr(a)}, {vr(vals[0])}, {vr(vals[1])}')
        for k in range(2, 16, 2):
            A(f'v_max3_f32 {vr(a)}, {vr(a)}, {vr(vals[k])}, {vr(vals[k+1])}')
        A(f'''
        v_mov_b32 {vr(b)}, {vr(a)}
        s_nop 1
        v_permlane16_swap_b32 {vr(a)}, {vr(b)}
        v_max_f32 {vr(a)}, {vr(a)}, {vr(b)}
        v_mov_b32 {vr(b)}, {vr(a)}
        s_nop 1
        v_permlane32_swap_b32 {vr(a)}, {vr(b)}
        v_max_f32 {vr(a)}, {vr(a)}, {vr(b)}
        v_ceil_f32 {vr(a)}, {vr(a)}
        v_max_f32 {vr(a)}, {vr(a)}, {vr(MX[q])}
        v_sub_f32 {vr(al)}, {vr(MX[q])}, {vr(a)}
        v_exp_f32 {vr(al)}, {vr(al)}
        v_mov_b32 {vr(MX[q])}, {vr(a)}
        ''')
        for v in vals:
            A(f'v_sub_f32 {vr(v)}, {vr(v)}, {vr(a)}')
        for v in vals:
            A(f'v_exp_f32 {vr(v)}, {vr(v)}')
        for dt in range(8):
            for r in range(4):
                A(f'v_mul_f32 {vr(O(dt,q)+r)}, {vr(O(dt,q)+r)}, {vr(al)}')
        for u in range(2):
            base = S(2 * u, q)
            for i in range(4):
                A(f'v_cvt_pk_bf16_f32 {vr(base+i)}, {vr(base+2*i)}, {vr(base+2*i+1)}')
    for dt in range(8):
        for u in range(2):
            for x in range(2):
                A(f'ds_read_b64_tr_b16 {ar(VF+4*u+2*x,2)}, {vr(VADDR+dt)} offset:{u*8192+x*4096}')
        A('s_waitcnt lgkmcnt(0)')
        for q in range(4):
            for u in range(2):
                A(f'v_mfma_f32_16x16x32_bf16 {vr(O(dt,q),4)}, {ar(VF+4*u,4)}, {vr(S(2*u,q),4)}, {vr(O(dt,q),4)}')
    A('s_nop 7')
    A('s_sub_u32 s32, s32, 1')
    A('s_cmp_lg_u32 s32, 0')
    A('s_cbranch_scc1 L2_sloop')
    A('s_branch L2_store')
```

```python
from asmlib import *
from layout import *
from k1 import srd, red_g, bcast_g3, wave_scan_incl, f32bits, BETA, CSC
import math

def weights_dma(A, swave, srd0, srd1, par1):
    A(f'''
    v_lshlrev_b32 v5, 1, v3
    v_xor_b32 v5, v5, v2
    v_lshlrev_b32 v5, 4, v5
    v_lshl_add_u32 v5, v3, 8, v5
    v_xor_b32 v6, 0x80, v5
    s_lshl_b32 s36, s{swave}, 13
    s_add_u32 s37, s36, 4096
    ''')
    for mat, sd in enumerate((srd0, srd1)):
        for half in range(2):
            A(f's_add_u32 m0, s{36+half}, {mat*32768}')
            A('s_nop 0')
            for ii in range(4):
                sel = (ii >> 1) if mat == 0 else par1(ii)
                A(f'buffer_load_dwordx4 {"v6" if sel else "v5"}, s[{sd}:{sd+3}], s{36+half} offen offset:{ii*1024} lds')

def owner_x_loads(A):
    A('s_lshl_b32 s38, s72, 12')
    A('v_lshlrev_b32 v4, 8, v2')
    A('v_lshl_add_u32 v4, v3, 4, v4')
    for s in range(4):
        A(f'buffer_load_dwordx4 {vr(8+4*s,4)}, v4, s[68:71], s38 offen offset:{64*s}')

def owner_compute(A, st):
    X = 8; F = 32; S, T = 24, 25
    A('s_waitcnt vmcnt(16)')
    for k in range(16):
        A(f'v_lshlrev_b32 {vr(F+2*k)}, 16, {vr(X+k)}')
        A(f'v_and_b32 {vr(F+2*k+1)}, 0xffff0000, {vr(X+k)}')
    def sum32(base, sq=False):
        if sq:
            A(f'v_mul_f32 {vr(S)}, {vr(base)}, {vr(base)}')
            A(f'v_mul_f32 {vr(26)}, {vr(base+1)}, {vr(base+1)}')
            for k in range(2, 32, 2):
                A(f'v_fmac_f32 {vr(S)}, {vr(base+k)}, {vr(base+k)}')
                A(f'v_fmac_f32 {vr(26)}, {vr(base+k+1)}, {vr(base+k+1)}')
        else:
            A(f'v_add_f32 {vr(S)}, {vr(base)}, {vr(base+1)}')
            A(f'v_add_f32 {vr(26)}, {vr(base+2)}, {vr(base+3)}')
            for k in range(4, 32, 2):
                A(f'v_add_f32 {vr(S)}, {vr(S)}, {vr(base+k)}')
                A(f'v_add_f32 {vr(26)}, {vr(26)}, {vr(base+k+1)}')
        A(f'v_add_f32 {vr(S)}, {vr(S)}, {vr(26)}')
        red_g(A, S, T)
    sum32(F)
    A(f'v_mul_f32 {vr(S)}, {hex(f32bits(1/128))}, {vr(S)}')
    for k in range(32): A(f'v_sub_f32 {vr(F+k)}, {vr(F+k)}, {vr(S)}')
    sum32(F, True)
    A(f'v_mov_b32 {vr(T)}, {hex(f32bits(1e-5))}')
    A(f'v_fmac_f32 {vr(T)}, {hex(f32bits(1/128))}, {vr(S)}')
    A(f'v_rsq_f32 {vr(S)}, {vr(T)}')
    A('s_nop 0')
    for k in range(32): A(f'v_mul_f32 {vr(F+k)}, {vr(F+k)}, {vr(S)}')
    HB = 8
    for k in range(16): A(f'v_cvt_pk_bf16_f32 {vr(HB+k)}, {vr(F+2*k)}, {vr(F+2*k+1)}')
    bcast_g3(A, S, F+31, T)
    A(f'v_mul_f32 {vr(S)}, {hex(f32bits(BETA))}, {vr(S)}')
    for k in range(32): A(f'v_add_f32 {vr(F+k)}, {vr(F+k)}, {vr(S)}')
    A(f'v_cmp_eq_u32 vcc, 3, v3')
    A('s_nop 1')
    A(f'v_cndmask_b32 {vr(F+31)}, {vr(F+31)}, 1.0, vcc')
    H = 64
    for k in range(16): A(f'v_cvt_pk_bf16_f32 {vr(H+k)}, {vr(F+2*k)}, {vr(F+2*k+1)}')
    A('''
    v_and_b32 v26, 7, v2
    v_lshlrev_b32 v26, 1, v26
    v_xor_b32 v26, v26, v3
    v_lshlrev_b32 v27, 8, v2
    ''')
    for s in range(4):
        A(f'v_xor_b32 v28, {4*s}, v26')
        A(f'v_lshl_add_u32 {vr(80+s)}, v28, 4, v27')
        A(f'buffer_store_dwordx4 {vr(H+4*s,4)}, {vr(80+s)}, s[8:11], s38 offen sc1')
    A('''
    v_bfe_u32 v26, v0, 2, 2
    v_and_b32 v27, 1, v3
    v_lshl_add_u32 v27, v27, 2, v26
    v_lshlrev_b32 v27, 1, v27
    v_and_b32 v28, 3, v0
    v_xor_b32 v27, v27, v28
    v_lshl_add_u32 v26, v3, 3, v26
    v_lshlrev_b32 v26, 8, v26
    ''')
    TA_ = 84
    for w in range(4):
        A(f'v_xor_b32 v28, {4*w}, v27')
        A(f'v_lshl_add_u32 {vr(TA_+w)}, v28, 4, v26')
    A('''
    v_lshrrev_b32 v26, 2, v2
    v_lshlrev_b32 v26, 3, v26
    v_and_b32 v28, 3, v2
    v_add_u32 v26, v26, v28
    v_lshlrev_b32 v26, 8, v26
    v_and_b32 v27, 7, v2
    v_lshlrev_b32 v27, 1, v27
    v_xor_b32 v27, v27, v3
    ''')
    TB_ = 88
    for w in range(4):
        A(f'v_xor_b32 v28, {4*w}, v27')
        A(f'v_lshl_add_u32 {vr(TB_+w)}, v28, 4, v26')
    A('s_waitcnt vmcnt(4)')
    A('s_barrier')
    AC = 96; AF = 0
    def g1_reads(et):
        for s in range(4):
            for x in range(2):
                A(f'ds_read_b64_tr_b16 {ar(AF+16*et+4*s+2*x,2)}, {vr(TA_+et//2)} offset:{s*8192+x*1024+8*(et%2)}')
    g1_reads(0); g1_reads(1)
    for et in range(8):
        A(f's_waitcnt lgkmcnt({8 if et < 7 else 0})')
        for s in range(4):
            c = '0' if s == 0 else vr(AC+4*et, 4)
            A(f'v_mfma_f32_16x16x32_bf16 {vr(AC+4*et,4)}, {ar(AF+16*et+4*s,4)}, {vr(HB+4*s,4)}, {c}')
        if et + 2 < 8: g1_reads(et + 2)
    def g2_reads(dt):
        for w in range(4):
            A(f'ds_read_b128 {ar(AF+16*dt+4*w,4)}, {vr(TB_+w)} offset:{32768+(dt//2)*8192+(dt%2)*1024}')
    g2_reads(0); g2_reads(1); g2_reads(2)
    QB = 8
    for w in range(4):
        for h in range(2):
            b = AC + 4 * (2 * w + h)
            A(f'v_cvt_pk_bf16_f32 {vr(QB+4*w+2*h)}, {vr(b)}, {vr(b+1)}')
            A(f'v_cvt_pk_bf16_f32 {vr(QB+4*w+2*h+1)}, {vr(b+2)}, {vr(b+3)}')
    TC = 32
    A('s_nop 1')
    for dt in range(8):
        rem = min(2, 7 - dt)
        A(f's_waitcnt lgkmcnt({4*rem})')
        for w in range(4):
            c = '0' if w == 0 else vr(TC+4*dt, 4)
            A(f'v_mfma_f32_16x16x32_bf16 {vr(TC+4*dt,4)}, {ar(AF+16*dt+4*w,4)}, {vr(QB+4*w,4)}, {c}')
        if dt + 3 < 8: g2_reads(dt + 3)
    A('s_nop 7')
    sum32(TC)
    bcast_g3(A, 26, TC+31, T)
    A(f'v_mul_f32 {vr(S)}, {hex(f32bits(1/math.sqrt(128)))}, {vr(S)}')
    A(f'v_sub_f32 {vr(S)}, {vr(26)}, {vr(S)}')
    A(f'v_mul_f32 {vr(S)}, {hex(f32bits(BETA*CSC))}, {vr(S)}')
    A(f's_mov_b32 s33, {hex(f32bits(CSC))}')
    for k in range(32): A(f'v_fma_f32 {vr(TC+k)}, {vr(TC+k)}, s33, {vr(S)}')
    A(f'v_cndmask_b32 {vr(TC+31)}, {vr(TC+31)}, 0, vcc')
    A(f'v_lshlrev_b32 v27, 4, v0')
    for w in range(4):
        for i in range(4):
            A(f'v_cvt_pk_bf16_f32 {vr(8+4*w+i)}, {vr(TC+8*w+2*i)}, {vr(TC+8*w+2*i+1)}')
        A(f'buffer_store_dwordx4 {vr(8+4*w,4)}, v27, s[12:15], s38 offen offset:{w*1024} sc1')
    sum32(TC, True)
    A('''
    s_lshl_b32 s33, s72, 6
    v_lshlrev_b32 v27, 2, v2
    s_mov_b64 exec, 0xffff
    ''')
    A(f'buffer_store_dword {vr(S)}, v27, s[20:23], s33 offen sc1')
    A('s_mov_b64 exec, -1')

def bin_wave(A, dma_fn):
    D, SR, RK, BA = 8, 40, 72, 104
    A('''
    s_lshl_b32 s38, s24, 2
    s_add_u32 s38, s38, s25         ; chunk
    s_lshl_b32 s39, s38, 13
    s_add_u32 s40, s39, 4096
    v_lshlrev_b32 v1, 4, v0
    ''')
    for k in range(8):
        A(f'buffer_load_dwordx4 {vr(D+4*k,4)}, v1, s[16:19], s{39 + k//4} offen offset:{(k%4)*1024}')
    dma_fn()
    for k in range(8):
        A(f'buffer_load_dwordx4 {vr(SR+4*k,4)}, v1, s[12:15], s{39 + k//4} offen offset:{(k%4)*1024}')
    A('''
    v_add_u32 v4, s73, v1
    v_mov_b32 v136, 0
    v_mov_b32 v137, 0
    v_mov_b32 v138, 0
    v_mov_b32 v139, 0
    v_mov_b32 v7, 1
    v_add_u32 v140, s39, v1
    v_mov_b32 v141, 16000
    ''')
    for j in range(4): A(f'ds_write_b128 v4, v[136:139] offset:{j*1024}')
    for k in range(8):
        A(f's_waitcnt vmcnt({31-k})')
        A(f'v_cmp_gt_u32 vcc, {E*4 - k*1024}, v140')
        A('s_nop 1')
        for j in range(4):
            n = 4 * k + j
            A(f'v_cndmask_b32 {vr(D+n)}, v141, {vr(D+n)}, vcc')
            A(f'v_lshrrev_b32 {vr(BA+n)}, 4, {vr(D+n)}')
            A(f'v_lshl_add_u32 {vr(BA+n)}, {vr(BA+n)}, 2, s73')
            A(f'ds_add_rtn_u32 {vr(RK+n)}, {vr(BA+n)}, v7')
    A('s_waitcnt vmcnt(8)')
    A('s_barrier')
    HV = 144
    for j in range(4): A(f'ds_read_b128 {vr(HV+4*j,4)}, v4 offset:{j*1024}')
    A('s_waitcnt vmcnt(0)')
    for n in range(32):
        A(f'v_and_b32 v5, 7, {vr(SR+n)}')
        A(f'v_lshlrev_b32 {vr(SR+n)}, 8, {vr(SR+n)}')
        A(f'v_lshl_or_b32 {vr(SR+n)}, v5, 5, {vr(SR+n)}')
        A(f'v_and_or_b32 {vr(SR+n)}, {vr(D+n)}, 15, {vr(SR+n)}')
    A('s_waitcnt lgkmcnt(0)')
    ST = 160
    A(f'v_mov_b32 {vr(ST)}, 0')
    for i in range(1, 16): A(f'v_add_u32 {vr(ST+i)}, {vr(ST+i-1)}, {vr(HV+i-1)}')
    A(f'v_add_u32 v5, {vr(ST+15)}, {vr(HV+15)}')
    A('v_mov_b32 v6, v5')
    wave_scan_incl(A, 6)
    A('v_sub_u32 v6, v6, v5')
    for i in range(16): A(f'v_add_u32 {vr(ST+i)}, {vr(ST+i)}, v6')
    for j in range(4): A(f'ds_write_b128 v4, {vr(ST+4*j,4)} offset:{j*1024}')
    for n in range(32): A(f'ds_read_b32 {vr(BA+n)}, {vr(BA+n)}')
    for i in range(16): A(f'v_lshl_or_b32 {vr(HV+i)}, {vr(HV+i)}, 16, {vr(ST+i)}')
    A(f's_mul_i32 s33, s38, {NBIN*4}')
    for j in range(3): A(f'buffer_store_dwordx4 {vr(HV+4*j,4)}, v1, s[68:71], s33 offen offset:{j*1024} sc1')
    A('s_mov_b64 exec, 15')
    A(f'buffer_store_dwordx4 {vr(HV+12,4)}, v1, s[68:71], s33 offen offset:3072 sc1')
    A('s_mov_b64 exec, -1')
    A('s_waitcnt lgkmcnt(0)')
    for n in range(32):
        A(f'v_add_u32 {vr(BA+n)}, {vr(BA+n)}, {vr(RK+n)}')
        A(f'v_lshl_add_u32 {vr(BA+n)}, {vr(BA+n)}, 2, s73')
        A(f'ds_write_b32 {vr(BA+n)}, {vr(SR+n)} offset:4096')
    for k in range(8): A(f'ds_read_b128 {vr(D+4*k,4)}, v4 offset:{4096+1024*k}')
    for k in range(8):
        A(f's_waitcnt lgkmcnt({7-k})')
        A(f'buffer_store_dwordx4 {vr(D+4*k,4)}, v1, s[64:67], s{39 + k//4} offen offset:{(k%4)*1024} sc1')

def ready_spin(A, tag, vd, vz):
    A('s_mov_b32 s41, 0x20000')
    A.label(f'L_rs{tag}')
    A(f'''
    buffer_load_dword {vr(vd)}, {vr(vz)}, s[96:99], 0 offen sc1
    s_waitcnt vmcnt(0)
    v_cmp_ne_u32 vcc, 1, {vr(vd)}
    s_cbranch_vccz L_rsok{tag}
    s_sub_u32 s41, s41, 1
    s_cmp_lg_u32 s41, 0
    s_cbranch_scc1 L_rs{tag}
    ''')
    A.label(f'L_rsok{tag}')

def helpers(A):
    A.label('L_helper')
    A(f'''
    s_cmp_gt_u32 s2, 4
    s_cbranch_scc1 L2_done
    s_load_dwordx2 s[6:7], s[0:1], 64
    s_load_dwordx2 s[24:25], s[0:1], 56
    s_load_dwordx2 s[26:27], s[0:1], 32
    v_lshrrev_b32 v1, 6, v0
    v_mov_b32 v30, v0
    v_and_b32 v0, 63, v0
    v_readfirstlane_b32 s3, v1
    v_and_b32 v2, 15, v0
    v_lshrrev_b32 v3, 4, v0
    s_and_b32 s28, s2, 1
    s_lshr_b32 s29, s2, 1
    v_mov_b32 v8, 0
    s_waitcnt lgkmcnt(0)
    ''')
    srd(A, 96, 100, 0, 256)
    srd(A, 20, 4, WS_FLAG, 16384)
    A('s_cmp_lt_u32 s2, 4')
    A('s_cbranch_scc1 L_w23')
    A(f'''
    v_lshrrev_b32 v9, 2, v30
    v_lshlrev_b32 v9, 8, v9
    v_and_b32 v10, 3, v30
    v_lshl_add_u32 v9, v10, 4, v9
    v_cmp_eq_u32 vcc, {49*4+3}, v30
    v_mov_b32 v13, 0
    v_mov_b32 v14, 0
    v_mov_b32 v15, 0
    v_cndmask_b32 v12, 0, 1, vcc
    buffer_store_dwordx4 v[12:15], v9, s[20:23], 0 offen sc1
    s_waitcnt vmcnt(0)
    s_barrier
    s_cmp_lg_u32 s3, 0
    s_cbranch_scc1 L2_done
    v_mov_b32 v9, 1
    s_mov_b64 exec, 1
    buffer_store_dword v9, v8, s[96:99], 0 offen sc1
    s_endpgm
    ''')
    A.label('L_w23')
    A('''
    s_cmp_eq_u32 s28, 0
    s_cselect_b32 s24, s24, s26
    s_cselect_b32 s25, s25, s27
    ''')
    srd(A, 8, 6, 0, 32768)
    srd(A, 12, 24, 0, 32768)
    srd(A, 16, 4, WS_W23, 65536)
    weights_dma(A, 3, 8, 12, lambda ii: ii & 1)
    A('''
    v_bfe_u32 v26, v0, 2, 2
    v_and_b32 v27, 1, v3
    v_lshl_add_u32 v27, v27, 2, v26
    v_lshlrev_b32 v27, 1, v27
    v_and_b32 v28, 3, v0
    v_xor_b32 v27, v27, v28
    v_lshl_add_u32 v26, v3, 3, v26
    v_lshlrev_b32 v26, 8, v26
    s_lshl_b32 s33, s3, 2
    v_xor_b32 v28, s33, v27
    v_lshl_add_u32 v7, v28, 4, v26
    s_lshl_b32 s33, s29, 3
    v_add_u32 v7, s33, v7
    v_and_b32 v26, 7, v2
    v_lshlrev_b32 v26, 1, v26
    v_xor_b32 v26, v26, v3
    v_lshlrev_b32 v27, 8, v2
    ''')
    for s in range(4):
        A(f'v_xor_b32 v28, {4*s}, v26')
        A(f'v_lshl_add_u32 {vr(12+s)}, v28, 4, v27')
    A('s_waitcnt vmcnt(0)')
    A('s_barrier')
    AF = 128; BFR = 32; C = 64
    for s in range(4):
        for x in range(2):
            A(f'ds_read_b64_tr_b16 {vr(BFR+4*s+2*x,2)}, v7 offset:{s*8192+x*1024}')
    def areads(dt):
        for s in range(4):
            A(f'ds_read_b128 {vr(AF+16*dt+4*s,4)}, {vr(12+s)} offset:{32768+dt*4096}')
    areads(0); areads(1)
    for dt in range(8):
        if dt + 2 < 8: areads(dt + 2)
        A(f's_waitcnt lgkmcnt({4*min(2, 7-dt)})')
        for s in range(4):
            d = C + 4 * dt
            c = '0' if s == 0 else vr(d, 4)
            A(f'v_mfma_f32_16x16x32_bf16 {vr(d,4)}, {vr(AF+16*dt+4*s,4)}, {vr(BFR+4*s,4)}, {c}')
    A('s_nop 7')
    A('''
    v_cmp_eq_u32 vcc, 3, v3
    v_lshlrev_b32 v27, 4, v0
    s_lshl_b32 s33, s3, 14
    s_lshl_b32 s34, s28, 12
    s_add_u32 s33, s33, s34
    s_lshl_b32 s34, s29, 13
    s_add_u32 s33, s33, s34
    ''')
    b = C
    A(f'v_add_f32 v24, {vr(b)}, {vr(b+1)}')
    A(f'v_add_f32 v29, {vr(b+2)}, {vr(b+3)}')
    for k in range(4, 32, 2):
        A(f'v_add_f32 v24, v24, {vr(b+k)}')
        A(f'v_add_f32 v29, v29, {vr(b+k+1)}')
    A('v_add_f32 v24, v24, v29')
    red_g(A, 24, 25)
    bcast_g3(A, 26, b + 31, 25)
    A(f'v_mul_f32 v24, {hex(f32bits(1/math.sqrt(128)))}, v24')
    A(f'v_sub_f32 v24, v26, v24')
    A(f'v_mul_f32 v24, {hex(f32bits(BETA))}, v24')
    for k in range(32): A(f'v_add_f32 {vr(b+k)}, {vr(b+k)}, v24')
    A(f'v_cndmask_b32 {vr(b+31)}, {vr(b+31)}, 0, vcc')
    for w in range(4):
        o = 128 + 4 * w
        for i in range(4):
            A(f'v_cvt_pk_bf16_f32 {vr(o+i)}, {vr(b+8*w+2*i)}, {vr(b+8*w+2*i+1)}')
        A(f'buffer_store_dwordx4 {vr(o,4)}, v27, s[16:19], s33 offen offset:{w*1024} sc1')
    A('s_waitcnt vmcnt(0)')
    A('s_barrier')
    A('s_cmp_lg_u32 s3, 0')
    A('s_cbranch_scc1 L2_done')
    ready_spin(A, 'h', 9, 8)
    A(f'''
    s_lshl_b32 s33, s2, 2
    s_add_u32 s33, s33, {49*256+32}
    v_mov_b32 v9, 1
    s_mov_b64 exec, 1
    buffer_store_dword v9, v8, s[20:23], s33 offen sc1
    s_endpgm
    ''')
```

```python
import sys
from asmlib import *
from layout import *
import k4, asmlib, phase_a
from k2 import desc
HDR = open('gather_scatter__hybrid_graph_tf_graphgps__graph.s.ref').read().split('; Override launch')[0]
OFFICIAL = 'gather_scatter__hybrid_graph_tf_graphgps__graph_kernel'
def make(path, stamp=0, official=False, **kw):
    phase_a.HSTAMP = (stamp == 2)
    A = Asm()
    A.raw(HDR.rstrip('\n'))
    name = OFFICIAL if official else 'attn_kernel'
    if official: A.raw('; @launch grid=(256,1,1) block=(256,1,1) lds=163840')
    else: A.raw('; @launch kernel=attn_kernel grid=(256,1,1) block=(256,1,1) lds=163840')
    A.raw('.amdgcn_target "amdgcn-amd-amdhsa--gfx950"\n.text')
    k4.gen_k2(A, stamp=stamp, name=name, **kw)
    A.raw('.p2align 8')
    A.label('L_code_end')
    A.raw('.section .rodata,"a"')
    A.raw(desc(name, 512, 256, 102))
    open(path, 'w').write(A.text())
if __name__ == '__main__':
    make('f.s')
    make('f_st.s', stamp=2)
    make('gather_scatter__hybrid_graph_tf_graphgps__graph.s', official=True)
```

```python
from asmlib import *
import asmlib
from layout import *
from k1 import srd, wave_scan_incl, f32bits
import re
import phase_a

PB = [128, 160]
SB = 192
KADDR = 208
VADDR = 212
VDMA = 220
LANE = 221
E8 = 222
VADDR2 = 230
PC0, PC1 = 238, 239
LPI, LPC, SELW, SELR, ONE, ETMP = 240, 241, 242, 243, 244, 245
TA, TB, ADA, ADB = 246, 247, 248, 249
T0, T1, T2, T3, T4, T5 = 250, 251, 252, 253, 254, 255
QF, KF, VF = 0, 64, 96
HS, GF, SEL, ZERO, ENT = 128, 160, 192, 196, 200
OFFS = 2
SBUF = 128
CAP = 1024
SPLITB = 79 * 8192
GBASE = 65536
GSIZE = 24576
THRESH = 72.0

XF = ()
LDSC = ' sc1'
OUTSC = ''
def slot(j): return (j + OFFS) % 4
def O(dt, q): return 4 * (dt * 4 + q)

class Op:
    def __init__(self, text, kind, rd=(), wr=(), tag=None):
        self.text, self.kind, self.rd, self.wr, self.tag = text, kind, set(rd), set(wr), tag
def regs(kind, b, n): return [(kind, b + i) for i in range(n)]

def op_qk(n, s):
    kt, q = n // 4, n % 4
    d = SB + 4 * (n % 4)
    a = KF + 16 * (kt % 2) + 4 * s
    b = QF + 4 * (q * 4 + s)
    c = '0' if s == 0 else vr(d, 4)
    return Op(f'v_mfma_f32_16x16x32_bf16 {vr(d,4)}, {ar(a,4)}, {ar(b,4)}, {c}', 'mfma',
              rd=regs('a', a, 4) + regs('a', b, 4), wr=regs('v', d, 4))
def op_pv(pb, dt, q, u, first=False):
    o = O(dt, q)
    a = VF + 8 * (dt % 4) + 4 * u
    p = PB[pb] + 4 * (u * 4 + q)
    return Op(f'v_mfma_f32_16x16x32_bf16 {vr(o,4)}, {ar(a,4)}, {vr(p,4)}, {"0" if first else vr(o,4)}', 'mfma',
              rd=regs('a', a, 4) + regs('v', p, 4), wr=regs('v', o, 4))
def op_kread(j, kt, s):
    a = KF + 16 * (kt % 2) + 4 * s
    return Op(f'ds_read_b128 {ar(a,4)}, {vr(KADDR+s)} offset:{slot(j)*16384+kt*4096}', 'lds', wr=regs('a', a, 4), tag=slot(j))
def op_vread(j, dt, u, x):
    a = VF + 8 * (dt % 4) + 4 * u + 2 * x
    return Op(f'ds_read_b64_tr_b16 {ar(a,2)}, {vr(VADDR+dt)} offset:{slot(j)*16384+u*8192+x*4096}', 'lds', wr=regs('a', a, 2), tag=slot(j))
def op_exp(n, r):
    d = SB + 4 * (n % 4) + r
    return Op(f'v_exp_f32 {vr(d)}, {vr(d)}', 'trans', rd=[('v', d)], wr=[('v', d)])
def op_cvt(pb, n, half):
    kt, q = n // 4, n % 4
    s = SB + 4 * (n % 4) + 2 * half
    d = PB[pb] + 4 * ((kt // 2) * 4 + q) + 2 * (kt % 2) + half
    return Op(f'v_cvt_pk_bf16_f32 {vr(d)}, {vr(s)}, {vr(s+1)}', 'valu', rd=[('v', s), ('v', s + 1)], wr=[('v', d)])
def op_dma(k):
    return Op(f'buffer_load_dwordx4 {vr(VDMA)}, s[8:11], s27 offen offset:{k*1024}{LDSC} lds', 'vmem')
def op_s(text): return Op(text, 'salu')
def next_off():
    return [[op_s('s_add_u32 s27, s27, 16384')], [op_s('s_cmp_eq_u32 s27, s89'), op_s('s_cselect_b32 s27, s88, s27')],
            [op_s('s_cmp_eq_u32 s27, s90'), op_s('s_cselect_b32 s27, s89, s27')]]

def g_issue_reads(loff):
    return [Op(f'ds_read2_b32 {vr(E8+2*i,2)}, {vr(LPI)} offset0:{loff//4+8*i} offset1:{loff//4+8*i+4}', 'lds', wr=regs('v', E8+2*i, 2), tag=-2) for i in range(4)]
def g_issue_dma(i, buf):
    ops = []
    ops.append(op_s(f's_mov_b32 m0, s{74+buf}') if i == 0 else op_s('s_add_u32 m0, m0, 1024'))
    ops.append(Op(f'v_bitop3_b32 {vr(E8+i)}, {vr(E8+i)}, -16, {vr(PC0 if i%2==0 else PC1)} bitop3:0x6a', 'valu', rd=[('v', E8+i)], wr=[('v', E8+i)]))
    if 'nogdma' not in XF: ops.append(Op(f'buffer_load_dwordx4 {vr(E8+i) if "gsame" not in XF else vr(VDMA)}, s[8:11], 0 offen{LDSC} lds', 'vmem'))
    return ops
def g_sel1(loff):
    return [Op(f'ds_read_b32 {vr(ETMP)}, {vr(LPC)} offset:{loff}', 'lds', wr=[('v', ETMP)], tag=-2),
            Op(f'ds_write_b128 {vr(SELR)}, {ar(ZERO,4)}', 'lds', tag=-2)]
def g_sel2():
    return [Op(f'v_and_b32 {vr(ETMP)}, 31, {vr(ETMP)}', 'valu', rd=[('v', ETMP)], wr=[('v', ETMP)]),
            Op(f'v_lshl_add_u32 {vr(ETMP)}, {vr(ETMP)}, 6, {vr(SELW)}', 'valu', rd=[('v', ETMP)], wr=[('v', ETMP)])]
def g_sel3():
    return [Op(f'ds_write_b16 {vr(ETMP)}, {vr(ONE)}', 'lds', tag=-2),
            Op(f'ds_read_b128 {ar(SEL,4)}, {vr(SELR)}', 'lds', wr=regs('a', SEL, 4), tag=-2)]
def g_tr(dt, x, buf):
    a = GF + 4 * dt + 2 * x
    return Op(f'ds_read_b64_tr_b16 {ar(a,2)}, {vr(VADDR2+dt)} offset:{buf*8192+x*4096}', 'lds', wr=regs('a', a, 2), tag=-2)
def g_mfma(dt):
    return Op(f'v_mfma_f32_16x16x32_bf16 {ar(HS+4*dt,4)}, {ar(GF+4*dt,4)}, {ar(SEL,4)}, {ar(HS+4*dt,4)}', 'mfma',
              rd=regs('a', GF+4*dt, 4) + regs('a', SEL, 4), wr=regs('a', HS+4*dt, 4))

EE = [['e0'], ['e1'], ['e2'], ['e3']]
DEFAULT = dict(
    slots4=[EE + [['c0','c1'], ['v','v'], ['k','k'], []], EE + [['c0','c1'], ['v','v'], ['k','k'], ['w']],
            EE + [['c0','c1'], ['v','v'], [], []], EE + [['c0','c1'], ['v','v'], [], ['w']]],
    bar_group=12, bar_slot=5,
    dma=[(12,7),(14,6),(14,7),(15,6)], m0=(11,6), sadd3=[(6,6),(7,6),(10,6)], pvrev=True,
)

def build_iter(i, cfg, nqk=16, pv_us=(0, 1), first_pv=False, next_k=True, next_v_us=(0, 1), bar=True, dma=True,
               prev_tile=15, g_issue=None, g_cons=None):
    ops = []
    pbN, pbC = (i + 1) % 2, i % 2
    extra = {}
    def add(g, s, o): extra.setdefault((g, s), []).extend(o)
    if g_issue is not None:
        loff, buf = g_issue
        rd = g_issue_reads(loff)
        add(0, 6, rd[:1]); add(0, 7, rd[1:3]); add(1, 6, rd[3:])
        for k in range(8):
            add(1 + k // 2 + (0 if k % 2 else 0) + 1, 7 if k % 2 else 3, g_issue_dma(k, buf))
    if g_cons is not None:
        loff, buf, vm = g_cons
        add(5, 6, g_sel1(loff)[:1]); add(6, 6, g_sel1(loff)[1:])
        add(6, 7, g_sel2()); add(7, 7, g_sel3())
        add(7, 3, [op_s(f's_waitcnt vmcnt({vm})')])
        for dt in range(8 if 'nogtr' not in XF else 0):
            g = 7 + dt // 2
            add(g, 3 if dt % 2 == 0 else 6, [g_tr(dt, 0, buf), g_tr(dt, 1, buf)])
        for dt in range(8 if 'nogmfma' not in XF else 0):
            g = 9 + dt // 2
            add(g, 3 if dt % 2 == 0 else 7, [g_mfma(dt)])
    kq = []
    for n in range(16):
        dt = n // 2
        q0 = 2 * (n % 2)
        slots = cfg['slots4'][n % 4] if 'slots4' in cfg else cfg['slots']
        mf = [op_qk(n, s) if n < nqk else None for s in range(4)]
        for q in (q0, q0 + 1):
            us = (1, 0) if (cfg.get('pvrev') and q == q0 + 1 and len(pv_us) == 2) else (0, 1)
            for u in us:
                mf.append(op_pv(pbC, dt, q, u, first=(first_pv and u == us[0])) if u in pv_us else None)
        dtn = dt + 2
        jv = i if dtn < 8 else i + 1
        uu = n % 2
        v_ok = (uu in pv_us) if dtn < 8 else (uu in next_v_us)
        vq = [op_vread(jv, dtn % 8, uu, x) for x in range(2)]
        kt = n // 4
        ktn = kt + 1
        jk = i + 1 if ktn < 4 else i + 2
        k_ok = (4 * ktn < nqk) if ktn < 4 else next_k
        if n % 4 == 0:
            assert not kq
            kq = [op_kread(jk, ktn % 4, s) for s in range(4)]
        for m in range(8):
            if mf[m] is not None: ops.append(mf[m])
            for f in slots[m]:
                if ('no' + f[0]) in XF and 2 <= i <= 5:
                    if f == 'k': kq.pop(0)
                    continue
                if f[0] == 'e' or f[0] == 'c':
                    if n == 0:
                        if prev_tile is not None:
                            ops.append(op_exp(prev_tile, int(f[1])) if f[0] == 'e' else op_cvt(pbC, prev_tile, int(f[1])))
                    elif n - 1 < nqk:
                        ops.append(op_exp(n - 1, int(f[1])) if f[0] == 'e' else op_cvt(pbN, n - 1, int(f[1])))
                elif f == 'v':
                    o = vq.pop(0)
                    if v_ok: ops.append(o)
                elif f == 'k':
                    o = kq.pop(0)
                    if k_ok: ops.append(o)
                elif f == 'w':
                    need = set()
                    for nn in (n + 1, n + 2):
                        n2 = nn % 16
                        need |= set(regs('a', KF + 16 * ((n2 // 4) % 2), 16)) if n2 // 4 != kt or nn >= 16 else set()
                        if n2 // 2 != dt: need |= set(regs('a', VF + 8 * ((n2 // 2) % 4), 8))
                    ops.append(Op('WAIT', 'wait', rd=need))
            ops.extend(extra.get((n, m), []))
            if m == 7 and cfg.get('stall'):
                ops.append(op_s(f's_nop {cfg["stall"]-1}'))
            if bar and 'nobar' not in XF and n == cfg['bar_group'] and m == cfg['bar_slot']:
                ops.append(Op('BARRIER', 'bar', tag=slot(i)))
            if dma and 'nokv' not in XF:
                for k, (g, sl) in enumerate(cfg['dma']):
                    if g == n and sl == m:
                        ops.append(op_dma(k))
                if cfg['m0'] == (n, m): ops.append(op_s(f's_mov_b32 m0, s{28 + slot(i+4)}'))
                for k, pos in enumerate(cfg['sadd3']):
                    if pos == (n, m): ops.extend(next_off()[k])
    return ops

def finalize(ops, pending_in, vm_wait):
    pend = list(pending_in)
    out = []
    for o in ops:
        if o.kind == 'bar':
            need = -1
            for idx, (w, tg) in enumerate(pend):
                if tg == o.tag: need = idx
            if need >= 0:
                cnt = len(pend) - 1 - need
                out.append(Op(f's_waitcnt vmcnt({vm_wait}) lgkmcnt({min(cnt,15)})', 'salu'))
                pend = pend[need + 1:]
            else:
                out.append(Op(f's_waitcnt vmcnt({vm_wait})', 'salu'))
            out.append(Op('s_barrier', 'salu'))
            continue
        if o.kind in ('mfma', 'valu', 'trans', 'wait'):
            need = -1
            for idx, (w, tg) in enumerate(pend):
                if w & o.rd: need = idx
            if need >= 0:
                cnt = len(pend) - 1 - need
                out.append(Op(f's_waitcnt lgkmcnt({min(cnt,15)})', 'salu'))
                pend = pend[need + 1:]
        if o.kind == 'lds':
            pend.append((frozenset(o.wr), o.tag))
        if o.kind != 'wait': out.append(o)
    return out, pend

def fix_hazards(ops, fix=True):
    pos = 0
    lm = {}; lv = {}; lt = {}
    out = []
    for o in ops:
        need = 0
        if o.kind in ('valu', 'trans'):
            for r in o.rd | o.wr:
                if r in lm: need = max(need, 8 - (pos - lm[r] - 1))
            if o.kind == 'valu':
                for r in o.rd:
                    if r in lt: need = max(need, 1 - (pos - lt[r] - 1))
        if o.kind == 'mfma':
            for r in o.rd | o.wr:
                if r in lv: need = max(need, 2 - (pos - lv[r] - 1))
            for r in o.rd:
                if r in lm: need = max(need, 8 - (pos - lm[r] - 1))
        if need > 0:
            if not fix: raise Exception(f'hazard at {o.text} need {need}')
            out.append(op_s(f's_nop {need-1}')); pos += need
        if o.kind == 'mfma':
            for r in o.wr: lm[r] = pos
        if o.kind in ('valu', 'trans'):
            for r in o.wr:
                lv[r] = pos
                if o.kind == 'trans': lt[r] = pos
                else: lt.pop(r, None)
        m = re.match(r's_nop (\d+)', o.text)
        pos += (int(m.group(1)) + 1) if m else 1
        out.append(o)
    return out

def emit(A, ops):
    for o in ops: A(o.text)

TW = [TA, TB, ADA, ADB]
CN = [E8, E8+1, E8+2, E8+3]
LA = [E8+4, E8+5, E8+6, E8+7]
ENTR = [160, 176, 200, 216]
LIM = 16
RT = 4
def list_scan(A, tag):
    A(f's_mov_b32 s79, {LIM}')
    A.label(f'L2_retry{tag}')
    for k in range(4):
        A(f'v_lshrrev_b32 {vr(CN[k])}, 16, {vr(TW[k])}')
        A(f'v_min_u32 {vr(CN[k])}, s79, {vr(CN[k])}')
    A(f'''
    v_lshl_or_b32 {vr(T0)}, {vr(CN[1])}, 16, {vr(CN[0])}
    v_lshl_or_b32 {vr(T1)}, {vr(CN[3])}, 16, {vr(CN[2])}
    v_mov_b32 {vr(T2)}, {vr(T0)}
    v_mov_b32 {vr(T3)}, {vr(T1)}
    s_nop 0
    ''')
    for mod in ('row_shr:1 row_mask:0xf', 'row_shr:2 row_mask:0xf', 'row_shr:4 row_mask:0xf', 'row_shr:8 row_mask:0xf', 'row_bcast:15 row_mask:0xa', 'row_bcast:31 row_mask:0xc'):
        A(f'v_add_u32_dpp {vr(T2)}, {vr(T2)}, {vr(T2)} {mod} bank_mask:0xf')
        A(f'v_add_u32_dpp {vr(T3)}, {vr(T3)}, {vr(T3)} {mod} bank_mask:0xf')
        A('s_nop 0')
    A(f'''
    v_readlane_b32 s80, {vr(T2)}, 63
    v_readlane_b32 s81, {vr(T3)}, 63
    s_and_b32 s36, s80, 0xffff
    s_lshr_b32 s37, s80, 16
    s_add_u32 s37, s37, s36
    s_and_b32 s38, s81, 0xffff
    s_add_u32 s38, s38, s37
    s_lshr_b32 s76, s81, 16
    s_add_u32 s76, s76, s38
    s_cmp_le_u32 s76, {CAP}
    s_cbranch_scc1 L2_ok{tag}
    s_mov_b32 s79, 4
    s_branch L2_retry{tag}
    ''')
    A.label(f'L2_ok{tag}')
    A(f'''
    v_sub_u32 {vr(T2)}, {vr(T2)}, {vr(T0)}
    v_sub_u32 {vr(T3)}, {vr(T3)}, {vr(T1)}
    v_and_b32 {vr(LA[0])}, 0xffff, {vr(T2)}
    v_lshrrev_b32 {vr(LA[1])}, 16, {vr(T2)}
    v_add_u32 {vr(LA[1])}, s36, {vr(LA[1])}
    v_and_b32 {vr(LA[2])}, 0xffff, {vr(T3)}
    v_add_u32 {vr(LA[2])}, s37, {vr(LA[2])}
    v_lshrrev_b32 {vr(LA[3])}, 16, {vr(T3)}
    v_add_u32 {vr(LA[3])}, s38, {vr(LA[3])}
    s_add_u32 s77, s76, 31
    s_lshr_b32 s77, s77, 5
    s_mov_b32 s78, 0
    s_max_u32 s3, s77, {RT-1}
    s_sub_u32 s3, s3, {RT-1}
    s_and_b32 s3, s3, -2
    v_lshlrev_b32 {vr(T1)}, 13, {vr(LANE)}
    ''')
    for k in range(4):
        A(f'v_lshlrev_b32 {vr(LA[k])}, 2, {vr(LA[k])}')
        A(f'v_add_u32 {vr(LA[k])}, s73, {vr(LA[k])}')

def list_loads(A, tag):
    for st in range(4):
        A(f'v_and_b32 {vr(T0)}, 0xffff, {vr(TW[st])}')
        A(f'v_lshl_add_u32 {vr(T0)}, {vr(T0)}, 2, {vr(T1)}')
        A(f's_mov_b32 s36, {st*64*CH*4}')
        for qd in range(LIM // 4):
            A(f'v_cmp_lt_u32 vcc, {4*qd}, {vr(CN[st])}')
            A('s_mov_b64 exec, vcc')
            A(f's_cbranch_execz L2_ld{tag}_{st}')
            A(f'buffer_load_dwordx4 {ar(ENTR[st]+4*qd,4)}, {vr(T0)}, s[64:67], s36 offen offset:{16*qd} sc1')
        A.label(f'L2_ld{tag}_{st}')
        A('s_mov_b64 exec, -1')

def list_writes(A, tag):
    for st in range(4):
        for qd in range(LIM // 4 - 1, -1, -1):
            A(f'v_cmp_lt_u32 vcc, {4*qd}, {vr(CN[st])}')
            A('s_mov_b64 exec, vcc')
            A(f's_cbranch_execz L2_w{tag}_{st}_{qd}')
            for j in range(3, -1, -1):
                A(f'ds_write_b32 {vr(LA[st])}, {ar(ENTR[st]+4*qd+j)} offset:{4*(4*qd+j)}')
            A.label(f'L2_w{tag}_{st}_{qd}')
            A('s_mov_b64 exec, -1')
    A(f'''
    v_add_u32 {vr(T2)}, s76, {vr(LANE)}
    v_lshlrev_b32 {vr(T2)}, 2, {vr(T2)}
    v_add_u32 {vr(T2)}, s73, {vr(T2)}
    v_mov_b32 {vr(T3)}, 0x7ffffff0
    ds_write_b32 {vr(T2)}, {vr(T3)}
    ds_write_b32 {vr(T2)}, {vr(T3)} offset:256
    ds_write_b32 {vr(T2)}, {vr(T3)} offset:512
    ''')
    for k in range(4):
        A(f'v_add_u32 {vr(TW[k])}, {vr(TW[k])}, {vr(CN[k])}')
        A(f'v_lshlrev_b32 {vr(CN[k])}, 16, {vr(CN[k])}')
        A(f'v_sub_u32 {vr(TW[k])}, {vr(TW[k])}, {vr(CN[k])}')
    A(f'''
    v_lshrrev_b32 {vr(LPI)}, 4, {vr(LANE)}
    v_lshlrev_b32 {vr(LPI)}, 2, {vr(LPI)}
    v_add_u32 {vr(LPI)}, s73, {vr(LPI)}
    v_and_b32 {vr(LPC)}, 31, {vr(LANE)}
    v_lshlrev_b32 {vr(LPC)}, 2, {vr(LPC)}
    v_add_u32 {vr(LPC)}, s73, {vr(LPC)}
    ''')

def table_loads(A):
    A(f'v_mov_b32 {vr(T4)}, {NBIN*4}')
    A(f'v_mul_u32_u24 {vr(T4)}, {vr(T4)}, {vr(LANE)}')
    A('s_lshl_b32 s80, s72, 2')
    for k in range(4):
        A(f'buffer_load_dword {vr(TW[k])}, {vr(T4)}, s[68:71], s80 offen sc1')
        if k < 3: A(f's_add_u32 s80, s80, {64*NBIN*4}')

def full_check_issue(A, vdst, vaddr):
    A(f'v_min_u32 {vr(vaddr)}, 49, {vr(LANE)}')
    A(f'v_lshlrev_b32 {vr(vaddr)}, 8, {vr(vaddr)}')
    A(f's_mov_b32 s39, {WS_FLAG-WS_BND+32}')
    A(f'buffer_load_dwordx4 {vr(vdst,4)}, {vr(vaddr)}, s[20:23], s39 offen sc1')
    A(f'buffer_load_dword {vr(vdst+4)}, {vr(vaddr)}, s[20:23], s39 offen offset:16 sc1')

def flags_spin(A, tag, vdst, vaddr, first_wait):
    A('s_mov_b32 s41, 0x20000')
    A(first_wait)
    A.label(f'L2_fs{tag}')
    A(f'''
    v_and_b32 {vr(vdst)}, {vr(vdst)}, {vr(vdst+1)}
    v_and_b32 {vr(vdst+2)}, {vr(vdst+2)}, {vr(vdst+3)}
    v_and_b32 {vr(vdst)}, {vr(vdst)}, {vr(vdst+4)}
    v_and_b32 {vr(vdst)}, {vr(vdst)}, {vr(vdst+2)}
    v_cmp_ne_u32 vcc, 1, {vr(vdst)}
    s_cbranch_vccz L2_fsok{tag}
    s_sub_u32 s41, s41, 1
    s_cmp_eq_u32 s41, 0
    s_cbranch_scc1 L2_fsok{tag}
    s_sleep 1
    buffer_load_dwordx4 {vr(vdst,4)}, {vr(vaddr)}, s[20:23], s39 offen sc1
    buffer_load_dword {vr(vdst+4)}, {vr(vaddr)}, s[20:23], s39 offen offset:16 sc1
    s_waitcnt vmcnt(0)
    s_branch L2_fs{tag}
    ''')
    A.label(f'L2_fsok{tag}')

def w23_dma_ops():
    res = []
    for b in range(4):
        for k in range(4):
            ops = []
            if k == 0:
                ops.append(op_s('s_mov_b32 m0, s33'))
                ops.append(op_s('s_nop 0'))
            ops.append(Op(f'buffer_load_dwordx4 {vr(T5)}, s[12:15], s33 offen offset:{k*1024} sc1 lds', 'vmem'))
            if k == 3: ops.append(op_s('s_add_u32 s33, s33, 4096'))
            res.append(ops)
    return res

def gen_k2(A, cfg=None, name='attn_kernel', stamp=0, flags=()):
    cfg = cfg or DEFAULT
    def st(i):
        if stamp: A(f's_memrealtime s[{44+2*i}:{45+2*i}]')
    A.raw(f'.globl {name}\n.p2align 8\n.type {name},@function')
    A.label(name)
    L = vr(LANE)
    A(f'''
    s_cmp_ge_u32 s2, 256
    s_cbranch_scc1 L2_done
    s_load_dwordx2 s[4:5], s[0:1], 88
    s_load_dwordx2 s[100:101], s[0:1], 80
    s_cmp_lt_u32 s2, 8
    s_cbranch_scc1 L_helper
    s_sub_u32 s3, s2, 12
    s_cmp_lt_u32 s3, 3
    s_cbranch_scc1 L2_done
    s_load_dwordx2 s[6:7], s[0:1], 0
    s_load_dwordx2 s[84:85], s[0:1], 24
    s_load_dwordx2 s[86:87], s[0:1], 72
    s_load_dwordx4 s[76:79], s[0:1], 40
    s_load_dwordx4 s[96:99], s[0:1], 8
    ''')
    for i in range(10): st(i)
    A(f'''
    v_lshrrev_b32 v1, 6, v0
    v_and_b32 v0, 63, v0
    v_mov_b32 {L}, v0
    s_mov_b32 s3, 0x33333334
    v_readfirstlane_b32 s26, v1
    s_lshr_b32 s33, s2, 3
    s_lshl_b32 s40, s33, 2
    s_sub_u32 s33, s33, 2
    s_mul_hi_u32 s24, s33, s3
    s_mul_i32 s3, s24, 5
    s_sub_u32 s25, s33, s3
    s_lshl_b32 s24, s24, 3
    s_and_b32 s3, s2, 7
    s_add_u32 s24, s24, s3
    s_min_u32 s3, s3, 4
    s_cmp_lt_u32 s2, 16
    s_cselect_b32 s24, 48, s24
    s_cselect_b32 s25, s3, s25
    v_and_b32 v2, 15, v0
    v_lshrrev_b32 v3, 4, v0
    v_lshlrev_b32 {vr(T5)}, 4, v0
    s_mul_i32 s72, s26, 5
    s_add_u32 s72, s72, 4
    s_sub_u32 s72, s72, s25
    s_lshl_b32 s3, s24, 4
    s_cmp_lt_u32 s72, 16
    s_cselect_b32 s82, 1, 0
    s_add_u32 s72, s72, s3
    s_cmp_eq_u32 s82, 1
    s_cselect_b32 s72, s72, 0x100000
    s_mul_i32 s73, s26, {GSIZE}
    s_add_u32 s73, s73, {GBASE}
    s_add_u32 s74, s73, 8192
    s_add_u32 s75, s73, 16384
    s_add_u32 s40, s40, s26
    s_sub_u32 s40, s40, 4
    ''')
    asmlib.code_prefetch(A, 'k2', name, 'L_code_end', 42, 40, 41, T5, 200)
    A('s_waitcnt lgkmcnt(0)')
    srd(A, 88, 76, 0, 32768)
    srd(A, 92, 78, 0, 32768)
    srd(A, 64, 4, WS_EDGE, NCH*CH*4+256)
    srd(A, 20, 4, WS_BND, WS_W23-WS_BND)
    dma_fn = lambda: phase_a.weights_dma(A, 26, 88, 92, lambda ii: ii >> 1)
    A('s_cmp_eq_u32 s82, 0')
    A('s_cbranch_scc1 L_binw')
    srd(A, 68, 6, 0, N*256)
    phase_a.owner_x_loads(A)
    dma_fn()
    srd(A, 8, 4, WS_H1, N*256)
    srd(A, 12, 4, WS_QF, 784*4096)
    phase_a.owner_compute(A, st)
    A('s_branch L_adone')
    A.label('L_binw')
    srd(A, 12, 96, 0, E*4)
    srd(A, 16, 98, 0, E*4)
    srd(A, 68, 4, WS_TAB, NCH*NBIN*4)
    phase_a.bin_wave(A, dma_fn)
    A.label('L_adone')
    st(9)
    srd(A, 96, 100, 0, 256)
    A('v_mov_b32 v10, 0')
    A('buffer_load_dword v11, v10, s[96:99], 0 offen sc1')
    srd(A, 8, 4, WS_H1, N*256)
    srd(A, 12, 4, WS_QF, 784*4096)
    srd(A, 16, 4, WS_OP, 5*784*4096)
    srd(A, 68, 4, WS_TAB, NCH*NBIN*4)
    def dma_tile(j):
        pre = [] if j == 0 else sum(next_off(), [])
        ops = pre + [op_s(f's_mov_b32 m0, s{28+slot(j)}'), op_s('s_nop 0')] + [op_dma(k) for k in range(4)]
        return ops
    A(f'''
    s_lshl_b32 s33, s26, 12
    v_add_u32 {vr(VDMA)}, s33, {vr(T5)}
    s_mul_i32 s88, s25, {SPLITB}
    s_cmp_eq_u32 s25, 4
    s_cselect_b32 s89, 37, 39
    s_lshl_b32 s89, s89, 14
    s_add_u32 s89, s89, s88
    s_add_u32 s91, s88, 65535
    s_lshr_b32 s91, s91, 16
    s_sub_u32 s27, s2, s91
    s_and_b32 s27, s27, 7
    s_add_u32 s91, s91, s27
    s_lshl_b32 s27, s91, 16
    s_sub_u32 s27, s27, s88
    s_add_u32 s27, s27, 16383
    s_and_b32 s27, s27, 0xffffc000
    s_add_u32 s27, s27, s88
    s_mov_b32 s90, s27
    s_add_u32 s28, s33, 0
    s_add_u32 s29, s33, 16384
    s_add_u32 s30, s33, 32768
    s_add_u32 s31, s33, 49152
    s_lshl_b32 s34, s24, 4
    s_lshl_b32 s35, s26, 2
    s_add_u32 s34, s34, s35
    s_lshl_b32 s35, s34, 12
    v_and_b32 v4, 7, {L}
    v_lshlrev_b32 v4, 1, v4
    v_lshrrev_b32 v5, 4, {L}
    v_xor_b32 v4, v4, v5
    v_and_b32 v6, 15, {L}
    v_lshlrev_b32 v7, 8, v6
    ''')
    for s in range(4):
        A(f'v_xor_b32 v8, {4*s}, v4')
        A(f'v_lshl_add_u32 {vr(KADDR+s)}, v8, 4, v7')
    A(f'''
    v_lshrrev_b32 v4, 2, {L}
    v_lshlrev_b32 v7, 8, v4
    v_and_b32 v4, 7, v4
    v_and_b32 v8, 3, {L}
    v_lshl_add_u32 v7, v8, 3, v7
    ''')
    for dt in range(8):
        A(f'v_xor_b32 v8, {dt}, v4')
        A(f'v_lshl_add_u32 {vr(VADDR+dt)}, v8, 5, v7')
        A(f'v_add_u32 {vr(VADDR2+dt)}, s74, {vr(VADDR+dt)}')
    A(f'''
    v_lshlrev_b32 v8, 1, v5
    v_xor_b32 v8, v8, v6
    v_lshlrev_b32 {vr(PC0)}, 4, v8
    v_xor_b32 {vr(PC1)}, 0x80, {vr(PC0)}
    v_bfe_u32 v8, {L}, 2, 2
    v_lshlrev_b32 v8, 4, v8
    v_bfe_u32 v9, {L}, 4, 1
    v_lshl_add_u32 v8, v9, 3, v8
    v_and_b32 v9, 3, {L}
    v_lshl_add_u32 v8, v9, 1, v8
    s_add_u32 s83, s73, 5120
    v_add_u32 {vr(SELW)}, s83, v8
    v_lshlrev_b32 v8, 6, v6
    v_lshl_add_u32 v8, v5, 4, v8
    v_add_u32 {vr(SELR)}, s83, v8
    v_mov_b32 {vr(ONE)}, 0x3f80
    ''')
    for r in range(32): A(f'v_accvgpr_write_b32 {ar(HS+r)}, 0')
    for r in range(4): A(f'v_accvgpr_write_b32 {ar(ZERO+r)}, 0')
    A('s_waitcnt vmcnt(0)')
    A('s_barrier')
    st(1)
    A('s_cmp_lg_u32 s26, 0')
    A('s_cbranch_scc1 L_depok')
    A('v_cmp_ne_u32 vcc, 1, v11')
    A('s_cbranch_vccz L_rsokm')
    phase_a.ready_spin(A, 'm', 11, 10)
    A(f'''
    s_lshl_b32 s40, s24, 8
    s_lshl_b32 s41, s25, 2
    s_add_u32 s41, s41, s40
    s_add_u32 s41, s41, {WS_FLAG-WS_BND+32}
    v_mov_b32 v11, 1
    s_mov_b64 exec, 1
    buffer_store_dword v11, v10, s[20:23], s41 offen sc1
    s_mov_b64 exec, -1
    s_lshl_b32 s41, s91, 8
    v_mov_b32 v12, s40
    v_mov_b32 v13, s41
    v_cmp_eq_u32 vcc, 1, {L}
    s_nop 1
    v_cndmask_b32 v12, v12, v13, vcc
    s_mov_b32 s39, {WS_FLAG-WS_BND+32}
    buffer_load_dwordx4 v[16:19], v12, s[20:23], s39 offen sc1
    buffer_load_dword v20, v12, s[20:23], s39 offen offset:16 sc1
    ''')
    flags_spin(A, 'a', 16, 12, 's_waitcnt vmcnt(0)')
    A.label('L_depok')
    A('s_barrier')
    st(2)
    emit(A, dma_tile(0))
    A(f'''
    s_add_u32 s36, s35, 4096
    s_add_u32 s37, s35, 8192
    s_add_u32 s38, s35, 12288
    s_lshl_b32 s39, s24, 10
    ''')
    for q in range(4):
        for s in range(4):
            A(f'buffer_load_dwordx4 {ar(QF+4*(q*4+s),4)}, {vr(T5)}, s[12:15], s{35+q} offen offset:{s*1024}{LDSC}')
    A(f'buffer_load_dwordx4 v[0:3], {vr(T5)}, s[20:23], s39 offen sc1')
    emit(A, dma_tile(1))
    A('s_waitcnt vmcnt(0)')
    A('s_barrier')
    emit(A, [op_kread(0, 0, s) for s in range(4)])
    A(f'''
    v_max3_f32 v0, v0, v1, v2
    v_max_f32 v0, v0, v3
    v_cmp_lt_f32 vcc, {hex(f32bits(THRESH))}, v0
    s_cbranch_vccnz L2_slow
    ''')
    pro = []
    dq = dma_tile(2)
    for n in range(16):
        kt = n // 4
        fill = []
        if n >= 2:
            fill = [[op_exp(n-2, 0)], [op_exp(n-2, 1)], [op_exp(n-2, 2)], [op_exp(n-2, 3), op_cvt(0, n-2, 0), op_cvt(0, n-2, 1)]]
        else:
            fill = [[], [], [], []]
        for s in range(4):
            pro.append(op_qk(n, s))
            pro += fill[s]
        ktn = kt + 1
        pro.append(op_kread(0 if ktn < 4 else 1, ktn % 4, n % 4))
        if n >= 12:
            pro += [op_vread(0, (n - 12) // 2, n % 2, x) for x in range(2)]
        if n < 8:
            while dq and dq[0].kind != 'vmem': pro.append(dq.pop(0))
            if dq: pro.append(dq.pop(0))
    pro += [op_exp(14, r) for r in range(4)] + [op_cvt(0, 14, 0), op_cvt(0, 14, 1)]
    pend0 = [(frozenset(regs('a', KF+4*s, 4)), -1) for s in range(4)]
    pro, pend = finalize(pro, pend0, 4)
    pend = [(w, -1) for w, _ in pend]
    it0, pend = finalize(build_iter(0, cfg, first_pv=True, dma=False), pend, 2)
    emit(A, fix_hazards(pro))
    st(3)
    full_check_issue(A, E8, E8+6)
    A('s_nop 3')
    emit(A, fix_hazards(it0))
    flags_spin(A, 'b', E8, E8+6, 's_waitcnt vmcnt(0)')
    emit(A, dma_tile(3) + dma_tile(4))
    table_loads(A)
    A('s_waitcnt lgkmcnt(0)')
    _, pend_ss = finalize(build_iter(3, cfg), [], 4)
    pend_ss = [(w, -1) for w, _ in pend_ss]
    it1, _ = finalize(build_iter(1, cfg), [], 8)
    emit(A, fix_hazards(it1))
    A('s_waitcnt vmcnt(4)')
    list_scan(A, 'a')
    list_loads(A, 'a')
    A('s_mov_b32 s32, 9')
    A('s_cmp_eq_u32 s25, 4')
    A('s_cselect_b32 s83, 1, 0')
    A('s_branch L2_body0' if stamp != 2 else 's_mov_b32 s78, 99')
    A.label('L2_hook')
    if stamp == 2:
        A('s_cmp_eq_u32 s32, 9')
        A('s_cbranch_scc1 L2_head')
        A('s_mov_b32 s78, 0')
    list_writes(A, 'a')
    gi = g_issue_reads(0)
    for k in range(8): gi += g_issue_dma(k, 0)
    A('s_waitcnt lgkmcnt(0)')
    gi, _ = finalize(gi, [], 0)
    emit(A, gi)
    for k in range(4): A(f'buffer_load_dword {vr(T4)}, {vr(T3)}, s[8:11], 0 offen')
    A.raw('.p2align 6')
    A.label('L2_head')
    if stamp == 2:
        A('s_memrealtime s[96:97]')
        A('s_memtime s[98:99]')
        A('s_waitcnt lgkmcnt(0)')
        A(f'v_mov_b32 {vr(T2)}, s96')
        A(f'v_mov_b32 {vr(T3)}, s98')
        A(f'v_cmp_eq_u32 vcc, s32, {vr(LANE)}')
        A('s_nop 1')
        A(f'v_cndmask_b32 {vr(T0)}, {vr(T0)}, {vr(T2)}, vcc')
        A(f'v_cndmask_b32 {vr(T1)}, {vr(T1)}, {vr(T3)}, vcc')
    A('s_cmp_eq_u32 s32, 1')
    A('s_cbranch_scc1 L2_body0')
    A('s_cmp_lt_u32 s78, s3')
    if 'nog' not in flags: A('s_cbranch_scc1 L2_gbody')
    body = []
    for p in range(4):
        ops, pe = finalize(build_iter(p + 2, cfg), pend_ss, 4)
        body += ops
        if p == 2:
            A('s_cmp_eq_u32 s32, s83')
            A('s_cbranch_scc1 L2_post2')
        A.label(f'L2_body{p}')
        emit(A, ops)
    if not XF: fix_hazards(body + body, fix=False)
    A('s_sub_u32 s32, s32, 1')
    A('s_cmp_eq_u32 s32, 8')
    A('s_cbranch_scc1 L2_hook')
    A('s_cmp_lg_u32 s32, 0')
    A('s_cbranch_scc1 L2_head')
    A('s_branch L2_post')
    A.raw('.p2align 6')
    A.label('L2_gbody')
    gbody = []
    for p in range(4):
        ops, pe = finalize(build_iter(p + 2, cfg, g_issue=(128 * (p + 1), (p + 1) % 2), g_cons=(128 * p, p % 2, 12)), pend_ss, 12)
        assert XF or [w for w, _ in pe] == [w for w, _ in pend_ss], (pe, pend_ss)
        gbody += ops
        emit(A, ops)
        A('s_add_u32 s78, s78, 1')
        if p < 3:
            A('s_cmp_ge_u32 s78, s3')
            A(f's_cbranch_scc1 L2_body{p+1}')
    if not XF: fix_hazards(gbody + gbody, fix=False); fix_hazards(gbody + body, fix=False); fix_hazards(it1 + gbody, fix=False)
    A(f'v_add_u32 {vr(LPI)}, 512, {vr(LPI)}')
    A(f'v_add_u32 {vr(LPC)}, 512, {vr(LPC)}')
    A('s_sub_u32 s32, s32, 1')
    A('s_cmp_lg_u32 s32, 0')
    A('s_cbranch_scc1 L2_head')
    A.label('L2_post')
    if stamp == 2:
        A('s_memrealtime s[96:97]')
        A('s_memtime s[98:99]')
        A('s_waitcnt lgkmcnt(0)')
        A(f'v_mov_b32 {vr(T2)}, s96')
        A(f'v_mov_b32 {vr(T3)}, s98')
        A(f'v_cmp_eq_u32 vcc, s32, {vr(LANE)}')
        A('s_nop 1')
        A(f'v_cndmask_b32 {vr(T0)}, {vr(T0)}, {vr(T2)}, vcc')
        A(f'v_cndmask_b32 {vr(T1)}, {vr(T1)}, {vr(T3)}, vcc')
        A(f'v_accvgpr_write_b32 a252, {vr(T0)}')
        A(f'v_accvgpr_write_b32 a253, {vr(T1)}')
    def store_setup():
        srd(A, 12, 4, WS_W23, 65536)
        A('s_lshl_b32 s33, s26, 14')
        A(f'v_lshlrev_b32 {vr(T5)}, 4, {L}')
        A(f'''
        s_mul_i32 s40, s25, {784*4096}
        s_add_u32 s40, s40, s35
        s_add_u32 s41, s40, 4096
        s_add_u32 s42, s40, 8192
        s_add_u32 s43, s40, 12288
        ''')
    def store_ops(w, q):
        d = 128 + 4 * (w * 4 + q) if False else SBUF + 4 * ((w * 4 + q) % 8)
        ops = []
        for h in range(2):
            b = O(2 * w + h, q)
            ops.append(Op(f'v_cvt_pk_bf16_f32 {vr(d+2*h)}, {vr(b)}, {vr(b+1)}', 'valu', rd=regs('v', b, 2), wr=[('v', d+2*h)]))
            ops.append(Op(f'v_cvt_pk_bf16_f32 {vr(d+2*h+1)}, {vr(b+2)}, {vr(b+3)}', 'valu', rd=regs('v', b+2, 2), wr=[('v', d+2*h+1)]))
        ops.append(Op(f'buffer_store_dwordx4 {vr(d,4)}, {vr(T5)}, s[16:19], s{40+q} offen offset:{w*1024} sc1', 'vmem'))
        return ops
    def lm_stores():
        A(f'''
        v_and_b32 {vr(T4)}, 15, {L}
        v_lshlrev_b32 {vr(T4)}, 3, {vr(T4)}
        s_mul_i32 s36, s25, {NPAD*8}
        s_lshl_b32 s37, s34, 7
        s_add_u32 s36, s36, s37
        s_add_u32 s36, s36, {WS_L-WS_BND}
        ''')
        for q in range(4):
            A(f'v_mov_b32 {vr(O(7,q)+2)}, {vr(O(7,q)+3)}')
            A(f'v_mov_b32 {vr(O(7,q)+3)}, {vr(T0+q)}')
        A('s_mov_b32 exec_lo, 0')
        A('s_mov_b32 exec_hi, 0xffff0000')
        for q in range(4):
            A(f'buffer_store_dwordx2 {vr(O(7,q)+2,2)}, {vr(T4)}, s[20:23], s36 offen offset:{128*q} sc1')
        A('s_mov_b64 exec, -1')
    def issue_ops(off, buf):
        ops = g_issue_reads(off)
        for k in range(8): ops += g_issue_dma(k, buf)
        return ops
    def consume_ops(off, buf, vm):
        ops = g_sel1(off) + g_sel2() + g_sel3()
        if vm is not None: ops.append(op_s(f's_waitcnt vmcnt({vm})'))
        ops += [g_tr(dt, x, buf) for dt in range(8) for x in range(2)] + [g_mfma(dt) for dt in range(8)]
        return ops
    def emit_g(ops):
        ops, pe = finalize(ops, [], 0)
        emit(A, fix_hazards(ops))
    def set_ptrs():
        A(f'''
        s_lshl_b32 s33, s78, 7
        s_add_u32 s33, s33, s73
        v_lshrrev_b32 {vr(LPI)}, 4, {L}
        v_lshl_add_u32 {vr(LPI)}, {vr(LPI)}, 2, s33
        v_and_b32 {vr(LPC)}, 31, {L}
        v_lshl_add_u32 {vr(LPC)}, {vr(LPC)}, 2, s33
        ''')
    def post(i0):
        set_ptrs()
        store_setup()
        it38, pe = finalize(build_iter(i0, cfg, nqk=8, next_k=False, next_v_us=(0,), bar=False, dma=False, g_issue=(128, 1)), pend_ss, 4)
        last, _ = finalize(build_iter(i0 + 1, cfg, nqk=0, pv_us=(0,), next_k=False, next_v_us=(), bar=False, dma=False, prev_tile=None), pe, 4)
        lastb = []
        nm = 0
        pendst = [(w, q) for w in range(3) for q in range(4)]
        for o in last:
            lastb.append(o)
            if o.kind == 'mfma':
                nm += 1
                if pendst and nm >= 8 * (pendst[0][0] + 1) + 2 and nm % 2 == 0:
                    lastb += store_ops(*pendst.pop(0))
        rest = []
        for wq in pendst + [(3, q) for q in range(4)]:
            rest += store_ops(*wq)
        emit(A, fix_hazards(body[-40:] + it38 + lastb + rest)[40:])
        st(4)
        A(f'v_mov_b32 {vr(T0)}, 0\nv_mov_b32 {vr(T1)}, 0\nv_mov_b32 {vr(T2)}, 0\nv_mov_b32 {vr(T3)}, 0')
    post(38)
    A('s_branch L2_lm')
    A.label('L2_post2')
    post(36)
    A('s_branch L2_lm')
    def generic_loop(tag, bound_sreg):
        A.label(f'L2_left{tag}')
        A(f's_cmp_ge_u32 s78, s{bound_sreg}')
        A(f's_cbranch_scc1 L2_leftdone{tag}')
        emit_g(issue_ops(0, 0) + consume_ops(0, 0, 0))
        A(f'v_add_u32 {vr(LPI)}, 128, {vr(LPI)}')
        A(f'v_add_u32 {vr(LPC)}, 128, {vr(LPC)}')
        A('s_add_u32 s78, s78, 1')
        A(f's_branch L2_left{tag}')
        A.label(f'L2_leftdone{tag}')
    A.label('L2_store')
    generic_loop('s', 3)
    emit_g(issue_ops(0, 0) + issue_ops(128, 1))
    store_setup()
    allst = []
    for w in range(4):
        for q in range(4): allst += store_ops(w, q)
    emit(A, allst)
    A.label('L2_lm')
    lm_stores()
    emit_g(consume_ops(0, 0, 20) + consume_ops(128, 1, None))
    A('s_waitcnt vmcnt(0)')
    A('s_barrier')
    st(5)
    A(f'''
    s_lshl_b32 s40, s24, 8
    s_add_u32 s40, s40, {WS_FLAG-WS_BND}
    s_cmp_lg_u32 s26, 0
    s_cbranch_scc1 L2_noflag
    s_lshl_b32 s41, s25, 2
    v_mov_b32 {vr(T0)}, s41
    v_mov_b32 {vr(T1)}, 1
    s_mov_b64 exec, 1
    buffer_store_dword {vr(T1)}, {vr(T0)}, s[20:23], s40 offen sc1
    s_mov_b64 exec, -1
    ''')
    A.label('L2_noflag')
    A('s_cmp_eq_u32 s82, 1')
    A('s_cbranch_scc1 L2_owner')
    for ops in w23_dma_ops(): emit(A, ops)
    A('s_waitcnt vmcnt(0)')
    A('s_barrier')
    A('s_branch L2_exit')
    A.label('L2_owner')
    if RT == 4: emit_g(issue_ops(256, 0) + issue_ops(384, 1))
    A(f'''
    v_min_u32 v8, 4, {L}
    v_lshlrev_b32 v8, 2, v8
    buffer_load_dword v9, v8, s[20:23], s40 offen sc1
    ''')
    X, DI = 106, 122
    srd(A, 68, 6, 0, N*256)
    srd(A, 88, 84, 0, N*2)
    srd(A, 92, 86, 0, N*256)
    A(f'''
    s_lshl_b32 s36, s72, 12
    v_and_b32 v1, 15, {L}
    v_lshrrev_b32 v2, 4, {L}
    v_lshlrev_b32 v6, 8, v1
    v_lshl_add_u32 v6, v2, 4, v6
    v_lshlrev_b32 v7, 1, v1
    s_lshl_b32 s37, s72, 5
    ''')
    A(f'buffer_load_ushort {vr(DI)}, v7, s[88:91], s37 offen')
    for ops in w23_dma_ops(): emit(A, ops)
    for w in range(4):
        A(f'buffer_load_dwordx4 {vr(X+4*w,4)}, v6, s[68:71], s36 offen offset:{w*64}')
    BF = 128
    HV = 176
    OPR, LM = 16, 96
    YR = [160, 164, 168, 172, 208, 212, 216, 124]
    WB = [0, 32]
    def part_loads():
        st(6)
        A(f's_lshl_b32 s38, s72, 7')
        A('s_lshl_b32 s36, s72, 12')
        for s in range(5):
            A(f's_add_u32 s39, s38, {s*NPAD*8+WS_L-WS_BND}')
            A(f'buffer_load_dwordx2 {vr(LM+2*s,2)}, v5, s[20:23], s39 offen sc1')
        for s in range(5):
            if s > 0: A(f's_add_u32 s39, s36, {s*784*4096}')
            for w in range(4):
                A(f'buffer_load_dwordx4 {vr(OPR+16*s+4*w,4)}, {vr(T5)}, s[16:19], s{36 if s == 0 else 39} offen offset:{w*1024} sc1')
        A('s_mov_b32 s83, 1')
    def poll(): A('buffer_load_dword v9, v8, s[20:23], s40 offen sc1')
    def check(tag):
        if tag == 1:
            A('s_waitcnt vmcnt(25)')
            A('s_cmp_eq_u32 s83, 1')
            A(f's_cbranch_scc1 L2_ck{tag}')
        A('s_waitcnt vmcnt(0)' if tag == 1 else 's_waitcnt vmcnt(20)')
        A('v_cmp_ne_u32 vcc, 1, v9')
        A(f's_cbranch_vccz L2_ckgo{tag}')
        poll()
        A(f's_branch L2_ck{tag}')
        A.label(f'L2_ckgo{tag}')
        part_loads()
        A.label(f'L2_ck{tag}')
    def gemm_half(k0, first):
        def wreads(p):
            for e in range(2):
                for ks in range(4):
                    A(f'ds_read_b128 {ar(WB[p%2]+16*e+4*ks,4)}, {vr(T5)} offset:{((2*p+e)*8+k0+ks)*1024}')
        if first: wreads(0)
        for p in range(4):
            if p < 3: wreads(p + 1)
            A(f's_waitcnt lgkmcnt({8 if p < 3 else 0})')
            for e in range(2):
                y = YR[2*p+e]
                for ks in range(4):
                    c = '0' if (first and ks == 0) else vr(y, 4)
                    A(f'v_mfma_f32_16x16x32_bf16 {vr(y,4)}, {ar(WB[p%2]+16*e+4*ks,4)}, {vr(BF+4*(k0+ks),4)}, {c}')
        return wreads
    A(f'''
    v_lshlrev_b32 v5, 3, v1
    s_mov_b32 s83, 0
    ''')
    if RT == 4:
        check(0)
        emit_g(consume_ops(256, 0, None) + consume_ops(384, 1, None))
    else:
        A('s_waitcnt vmcnt(20)')
    A.label('L2_more')
    A(f'''
    v_or3_b32 {vr(T0)}, {vr(TW[0])}, {vr(TW[1])}, {vr(TW[2])}
    v_or_b32 {vr(T0)}, {vr(T0)}, {vr(TW[3])}
    v_lshrrev_b32 {vr(T0)}, 16, {vr(T0)}
    v_cmp_ne_u32 vcc, 0, {vr(T0)}
    s_cbranch_vccz L2_nomore
    ''')
    list_scan(A, 'b')
    list_loads(A, 'b')
    A('s_waitcnt vmcnt(0)')
    list_writes(A, 'b')
    generic_loop('b', 77)
    A('s_branch L2_more')
    A.label('L2_nomore')
    A(f'v_lshlrev_b32 {vr(DI)}, 16, {vr(DI)}')
    A('s_nop 3')
    for k in range(32):
        A(f'v_accvgpr_read_b32 {vr(HV+k)}, {ar(HS+k)}')
    for k in range(32):
        A(f'v_mul_f32 {vr(HV+k)}, {vr(HV+k)}, {vr(DI)}')
    for k in range(16):
        A(f'v_cvt_pk_bf16_f32 {vr(BF+16+k)}, {vr(HV+2*k)}, {vr(HV+2*k+1)}')
    check(1)
    A('s_barrier')
    gemm_half(4, True)
    A('s_cmp_eq_u32 s83, 1')
    A('s_cbranch_scc1 L2_comb')
    A('s_mov_b32 s42, 0x20000')
    A.label('L2_spin')
    A(f'''
    s_waitcnt vmcnt(0)
    v_cmp_ne_u32 vcc, 1, v9
    s_cbranch_vccz L2_go
    s_sub_u32 s42, s42, 1
    s_cmp_eq_u32 s42, 0
    s_cbranch_scc1 L2_go
    s_sleep 1
    ''')
    poll()
    A('s_branch L2_spin')
    A.label('L2_go')
    part_loads()
    A.label('L2_comb')
    for e in range(2):
        for ks in range(4):
            A(f'ds_read_b128 {ar(WB[0]+16*e+4*ks,4)}, {vr(T5)} offset:{(e*8+ks)*1024}')
    A('s_lshl_b32 s36, s72, 12')
    LL = [LM + 2 * s for s in range(5)]
    MM = [LM + 2 * s + 1 for s in range(5)]
    A('s_waitcnt vmcnt(20)')
    A(f'v_max3_f32 v7, {vr(MM[0])}, {vr(MM[1])}, {vr(MM[2])}')
    A(f'v_max3_f32 v7, v7, {vr(MM[3])}, {vr(MM[4])}')
    for s in range(5): A(f'v_sub_f32 {vr(MM[s])}, {vr(MM[s])}, v7')
    for s in range(5): A(f'v_exp_f32 {vr(MM[s])}, {vr(MM[s])}')
    A('s_nop 0')
    A(f'v_mul_f32 v7, {vr(MM[0])}, {vr(LL[0])}')
    for s in range(1, 5): A(f'v_fmac_f32 v7, {vr(MM[s])}, {vr(LL[s])}')
    A('v_rcp_f32 v7, v7')
    for s in range(5):
        A(f'v_lshrrev_b32 {vr(LL[s])}, 16, {vr(MM[s])}')
        A(f'v_and_b32 {vr(MM[s])}, 0xffff0000, {vr(MM[s])}')
    G = 176
    for s in range(5):
        A(f's_waitcnt vmcnt({16-4*s})')
        for k in range(16):
            src = OPR + 16 * s + k
            c0 = '0' if s == 0 else vr(G + 2 * k)
            c1 = '0' if s == 0 else vr(G + 2 * k + 1)
            A(f'v_dot2_f32_bf16 {vr(G+2*k)}, {vr(src)}, {vr(LL[s])}, {c0}')
            A(f'v_dot2_f32_bf16 {vr(G+2*k+1)}, {vr(src)}, {vr(MM[s])}, {c1}')
    st(7)
    A('s_nop 2')
    for k in range(32): A(f'v_mul_f32 {vr(G+k)}, {vr(G+k)}, v7')
    for k in range(16): A(f'v_cvt_pk_bf16_f32 {vr(BF+k)}, {vr(G+2*k)}, {vr(G+2*k+1)}')
    gemm_half(0, False)
    A('s_nop 7')
    for w in range(4):
        for i in range(4):
            xr = X + 4 * w + i
            y = YR[2 * w + i // 2] + 2 * (i % 2)
            A(f'v_lshlrev_b32 v7, 16, {vr(xr)}')
            A(f'v_and_b32 v8, 0xffff0000, {vr(xr)}')
            A(f'v_add_f32 v7, v7, {vr(y)}')
            A(f'v_add_f32 v8, v8, {vr(y+1)}')
            A(f'v_cvt_pk_bf16_f32 {vr(xr)}, v7, v8')
        A(f'buffer_store_dwordx4 {vr(X+4*w,4)}, v6, s[92:95], s36 offen offset:{w*64}{OUTSC}')
    A.label('L2_exit')
    if stamp:
        A('s_waitcnt vmcnt(0)')
        st(8)
        A('s_waitcnt lgkmcnt(0)')
        for i in range(10): A(f'v_mov_b32 {vr(i)}, s{44+2*i}')
        A(f's_lshl_b32 s40, s2, 2')
        A(f's_add_u32 s40, s40, s26')
        A(f's_lshl_b32 s40, s40, 6')
        A(f's_add_u32 s40, s40, {WS_STAMP-WS_BND}')
        A(f's_mov_b32 s22, 0x7fffffff')
        if stamp == 2:
            A(f's_lshl_b32 s41, s2, 2')
            A(f's_add_u32 s41, s41, s26')
            A(f's_lshl_b32 s41, s41, 7')
            A(f's_add_u32 s41, s41, {WS_STAMP-WS_BND+0x80000}')
            A(f'v_lshlrev_b32 v20, 2, {vr(LANE)}')
            A(f's_mov_b64 exec, 0xffff')
            A(f'buffer_store_dword a252, v20, s[20:23], s41 offen')
            A(f'buffer_store_dword a253, v20, s[20:23], s41 offen offset:64')
            A(f's_mov_b64 exec, -1')
        A(f'v_mov_b32 v20, 0')
        A(f'v_mov_b32 v10, s82')
        A(f'v_mov_b32 v11, s77')
        A(f's_mov_b64 exec, 1')
        for i in range(3):
            A(f'buffer_store_dwordx4 v[{4*i}:{4*i+3}], v20, s[20:23], s40 offen offset:{16*i}')
    A.label('L2_done')
    A('s_endpgm')
    gen_slow(A)
    phase_a.helpers(A)

def gen_slow(A):
    L = vr(LANE)
    A.label('L2_slow')
    full_check_issue(A, E8, E8+6)
    flags_spin(A, 's', E8, E8+6, 's_waitcnt vmcnt(0) lgkmcnt(0)')
    table_loads(A)
    A('s_waitcnt vmcnt(0)')
    list_scan(A, 's')
    list_loads(A, 's')
    A('s_waitcnt vmcnt(0)')
    list_writes(A, 's')
    MX = [T0, T1, T2, T3]
    for q in range(4): A(f'v_mov_b32 {vr(MX[q])}, 0xf149f2ca')
    for r in range(128): A(f'v_mov_b32 {vr(r)}, 0')
    A(f'''
    s_mul_i32 s27, s25, {SPLITB}
    s_mul_i32 s40, s25, {79*32}
    s_add_u32 s41, s40, {79*32}
    s_min_u32 s41, s41, {N}
    v_lshrrev_b32 {vr(T4)}, 4, {L}
    v_lshlrev_b32 {vr(T4)}, 2, {vr(T4)}
    v_add_u32 {vr(T4)}, s40, {vr(T4)}
    s_mov_b32 s32, 40
    v_mov_b32 {vr(T5)}, 0xff800000
    ''')
    def S(kt, q): return 128 + 8 * ((kt // 2) * 4 + q) + 4 * (kt % 2)
    A.label('L2_sloop')
    A('s_barrier')
    A('s_mov_b32 m0, s28')
    A('s_nop 0')
    for k in range(4): A(op_dma(k).text)
    A('s_add_u32 s27, s27, 16384')
    A('s_waitcnt vmcnt(0)')
    A('s_barrier')
    for kt in range(4):
        for s in range(4):
            A(f'ds_read_b128 {ar(KF+4*s,4)}, {vr(KADDR+s)} offset:{kt*4096}')
        A('s_waitcnt lgkmcnt(0)')
        for q in range(4):
            for s in range(4):
                d = S(kt, q)
                A(f'v_mfma_f32_16x16x32_bf16 {vr(d,4)}, {ar(KF+4*s,4)}, {ar(QF+4*(q*4+s),4)}, {"0" if s == 0 else vr(d,4)}')
    A('s_nop 7')
    for kt in range(4):
        for r in range(4):
            A(f'v_add_u32 {vr(192)}, {16*kt+r}, {vr(T4)}')
            A(f'v_cmp_gt_u32 vcc, s41, {vr(192)}')
            A('s_nop 1')
            for q in range(4):
                A(f'v_cndmask_b32 {vr(S(kt,q)+r)}, {vr(T5)}, {vr(S(kt,q)+r)}, vcc')
    A(f'v_add_u32 {vr(T4)}, 64, {vr(T4)}')
    a, b, al = 192, 193, 194
    for q in range(4):
        vals = [S(kt, q) + r for kt in range(4) for r in range(4)]
        A(f'v_max_f32 {vr(a)}, {vr(vals[0])}, {vr(vals[1])}')
        for k in range(2, 16, 2):
            A(f'v_max3_f32 {vr(a)}, {vr(a)}, {vr(vals[k])}, {vr(vals[k+1])}')
        A(f'''
        v_mov_b32 {vr(b)}, {vr(a)}
        s_nop 1
        v_permlane16_swap_b32 {vr(a)}, {vr(b)}
        v_max_f32 {vr(a)}, {vr(a)}, {vr(b)}
        v_mov_b32 {vr(b)}, {vr(a)}
        s_nop 1
        v_permlane32_swap_b32 {vr(a)}, {vr(b)}
        v_max_f32 {vr(a)}, {vr(a)}, {vr(b)}
        v_ceil_f32 {vr(a)}, {vr(a)}
        v_max_f32 {vr(a)}, {vr(a)}, {vr(MX[q])}
        v_sub_f32 {vr(al)}, {vr(MX[q])}, {vr(a)}
        v_exp_f32 {vr(al)}, {vr(al)}
        v_mov_b32 {vr(MX[q])}, {vr(a)}
        ''')
        for v in vals:
            A(f'v_sub_f32 {vr(v)}, {vr(v)}, {vr(a)}')
        for v in vals:
            A(f'v_exp_f32 {vr(v)}, {vr(v)}')
        for dt in range(8):
            for r in range(4):
                A(f'v_mul_f32 {vr(O(dt,q)+r)}, {vr(O(dt,q)+r)}, {vr(al)}')
        for u in range(2):
            base = S(2 * u, q)
            for i in range(4):
                A(f'v_cvt_pk_bf16_f32 {vr(base+i)}, {vr(base+2*i)}, {vr(base+2*i+1)}')
    for dt in range(8):
        for u in range(2):
            for x in range(2):
                A(f'ds_read_b64_tr_b16 {ar(VF+4*u+2*x,2)}, {vr(VADDR+dt)} offset:{u*8192+x*4096}')
        A('s_waitcnt lgkmcnt(0)')
        for q in range(4):
            for u in range(2):
                A(f'v_mfma_f32_16x16x32_bf16 {vr(O(dt,q),4)}, {ar(VF+4*u,4)}, {vr(S(2*u,q),4)}, {vr(O(dt,q),4)}')
    A('s_nop 7')
    A('s_sub_u32 s32, s32, 1')
    A('s_cmp_lg_u32 s32, 0')
    A('s_cbranch_scc1 L2_sloop')
    A('s_branch L2_store')
```

```python
from asmlib import *
from layout import *
from k1 import srd, red_g, bcast_g3, wave_scan_incl, f32bits, BETA, CSC
import math

def weights_dma(A, swave, srd0, srd1, par1):
    A(f'''
    v_lshlrev_b32 v5, 1, v3
    v_xor_b32 v5, v5, v2
    v_lshlrev_b32 v5, 4, v5
    v_lshl_add_u32 v5, v3, 8, v5
    v_xor_b32 v6, 0x80, v5
    s_lshl_b32 s36, s{swave}, 13
    s_add_u32 s37, s36, 4096
    ''')
    for mat, sd in enumerate((srd0, srd1)):
        for half in range(2):
            A(f's_add_u32 m0, s{36+half}, {mat*32768}')
            A('s_nop 0')
            for ii in range(4):
                sel = (ii >> 1) if mat == 0 else par1(ii)
                A(f'buffer_load_dwordx4 {"v6" if sel else "v5"}, s[{sd}:{sd+3}], s{36+half} offen offset:{ii*1024} lds')

def owner_x_loads(A):
    A('s_lshl_b32 s38, s72, 12')
    A('v_lshlrev_b32 v4, 8, v2')
    A('v_lshl_add_u32 v4, v3, 4, v4')
    for s in range(4):
        A(f'buffer_load_dwordx4 {vr(8+4*s,4)}, v4, s[68:71], s38 offen offset:{64*s}')

def owner_compute(A, st):
    X = 8; F = 32; S, T = 24, 25
    A('s_waitcnt vmcnt(16)')
    for k in range(16):
        A(f'v_lshlrev_b32 {vr(F+2*k)}, 16, {vr(X+k)}')
        A(f'v_and_b32 {vr(F+2*k+1)}, 0xffff0000, {vr(X+k)}')
    def sum32(base, sq=False):
        if sq:
            A(f'v_mul_f32 {vr(S)}, {vr(base)}, {vr(base)}')
            A(f'v_mul_f32 {vr(26)}, {vr(base+1)}, {vr(base+1)}')
            for k in range(2, 32, 2):
                A(f'v_fmac_f32 {vr(S)}, {vr(base+k)}, {vr(base+k)}')
                A(f'v_fmac_f32 {vr(26)}, {vr(base+k+1)}, {vr(base+k+1)}')
        else:
            A(f'v_add_f32 {vr(S)}, {vr(base)}, {vr(base+1)}')
            A(f'v_add_f32 {vr(26)}, {vr(base+2)}, {vr(base+3)}')
            for k in range(4, 32, 2):
                A(f'v_add_f32 {vr(S)}, {vr(S)}, {vr(base+k)}')
                A(f'v_add_f32 {vr(26)}, {vr(26)}, {vr(base+k+1)}')
        A(f'v_add_f32 {vr(S)}, {vr(S)}, {vr(26)}')
        red_g(A, S, T)
    sum32(F)
    A(f'v_mul_f32 {vr(S)}, {hex(f32bits(1/128))}, {vr(S)}')
    for k in range(32): A(f'v_sub_f32 {vr(F+k)}, {vr(F+k)}, {vr(S)}')
    sum32(F, True)
    A(f'v_mov_b32 {vr(T)}, {hex(f32bits(1e-5))}')
    A(f'v_fmac_f32 {vr(T)}, {hex(f32bits(1/128))}, {vr(S)}')
    A(f'v_rsq_f32 {vr(S)}, {vr(T)}')
    A('s_nop 0')
    for k in range(32): A(f'v_mul_f32 {vr(F+k)}, {vr(F+k)}, {vr(S)}')
    HB = 8
    for k in range(16): A(f'v_cvt_pk_bf16_f32 {vr(HB+k)}, {vr(F+2*k)}, {vr(F+2*k+1)}')
    bcast_g3(A, S, F+31, T)
    A(f'v_mul_f32 {vr(S)}, {hex(f32bits(BETA))}, {vr(S)}')
    for k in range(32): A(f'v_add_f32 {vr(F+k)}, {vr(F+k)}, {vr(S)}')
    A(f'v_cmp_eq_u32 vcc, 3, v3')
    A('s_nop 1')
    A(f'v_cndmask_b32 {vr(F+31)}, {vr(F+31)}, 1.0, vcc')
    H = 64
    for k in range(16): A(f'v_cvt_pk_bf16_f32 {vr(H+k)}, {vr(F+2*k)}, {vr(F+2*k+1)}')
    A('''
    v_and_b32 v26, 7, v2
    v_lshlrev_b32 v26, 1, v26
    v_xor_b32 v26, v26, v3
    v_lshlrev_b32 v27, 8, v2
    ''')
    for s in range(4):
        A(f'v_xor_b32 v28, {4*s}, v26')
        A(f'v_lshl_add_u32 {vr(80+s)}, v28, 4, v27')
        A(f'buffer_store_dwordx4 {vr(H+4*s,4)}, {vr(80+s)}, s[8:11], s38 offen sc1')
    A('''
    v_bfe_u32 v26, v0, 2, 2
    v_and_b32 v27, 1, v3
    v_lshl_add_u32 v27, v27, 2, v26
    v_lshlrev_b32 v27, 1, v27
    v_and_b32 v28, 3, v0
    v_xor_b32 v27, v27, v28
    v_lshl_add_u32 v26, v3, 3, v26
    v_lshlrev_b32 v26, 8, v26
    ''')
    TA_ = 84
    for w in range(4):
        A(f'v_xor_b32 v28, {4*w}, v27')
        A(f'v_lshl_add_u32 {vr(TA_+w)}, v28, 4, v26')
    A('''
    v_lshrrev_b32 v26, 2, v2
    v_lshlrev_b32 v26, 3, v26
    v_and_b32 v28, 3, v2
    v_add_u32 v26, v26, v28
    v_lshlrev_b32 v26, 8, v26
    v_and_b32 v27, 7, v2
    v_lshlrev_b32 v27, 1, v27
    v_xor_b32 v27, v27, v3
    ''')
    TB_ = 88
    for w in range(4):
        A(f'v_xor_b32 v28, {4*w}, v27')
        A(f'v_lshl_add_u32 {vr(TB_+w)}, v28, 4, v26')
    A('s_waitcnt vmcnt(4)')
    A('s_barrier')
    AC = 96; AF = 0
    def g1_reads(et):
        for s in range(4):
            for x in range(2):
                A(f'ds_read_b64_tr_b16 {ar(AF+16*et+4*s+2*x,2)}, {vr(TA_+et//2)} offset:{s*8192+x*1024+8*(et%2)}')
    g1_reads(0); g1_reads(1)
    for et in range(8):
        A(f's_waitcnt lgkmcnt({8 if et < 7 else 0})')
        for s in range(4):
            c = '0' if s == 0 else vr(AC+4*et, 4)
            A(f'v_mfma_f32_16x16x32_bf16 {vr(AC+4*et,4)}, {ar(AF+16*et+4*s,4)}, {vr(HB+4*s,4)}, {c}')
        if et + 2 < 8: g1_reads(et + 2)
    def g2_reads(dt):
        for w in range(4):
            A(f'ds_read_b128 {ar(AF+16*dt+4*w,4)}, {vr(TB_+w)} offset:{32768+(dt//2)*8192+(dt%2)*1024}')
    g2_reads(0); g2_reads(1); g2_reads(2)
    QB = 8
    for w in range(4):
        for h in range(2):
            b = AC + 4 * (2 * w + h)
            A(f'v_cvt_pk_bf16_f32 {vr(QB+4*w+2*h)}, {vr(b)}, {vr(b+1)}')
            A(f'v_cvt_pk_bf16_f32 {vr(QB+4*w+2*h+1)}, {vr(b+2)}, {vr(b+3)}')
    TC = 32
    A('s_nop 1')
    for dt in range(8):
        rem = min(2, 7 - dt)
        A(f's_waitcnt lgkmcnt({4*rem})')
        for w in range(4):
            c = '0' if w == 0 else vr(TC+4*dt, 4)
            A(f'v_mfma_f32_16x16x32_bf16 {vr(TC+4*dt,4)}, {ar(AF+16*dt+4*w,4)}, {vr(QB+4*w,4)}, {c}')
        if dt + 3 < 8: g2_reads(dt + 3)
    A('s_nop 7')
    sum32(TC)
    bcast_g3(A, 26, TC+31, T)
    A(f'v_mul_f32 {vr(S)}, {hex(f32bits(1/math.sqrt(128)))}, {vr(S)}')
    A(f'v_sub_f32 {vr(S)}, {vr(26)}, {vr(S)}')
    A(f'v_mul_f32 {vr(S)}, {hex(f32bits(BETA*CSC))}, {vr(S)}')
    A(f's_mov_b32 s33, {hex(f32bits(CSC))}')
    for k in range(32): A(f'v_fma_f32 {vr(TC+k)}, {vr(TC+k)}, s33, {vr(S)}')
    A(f'v_cndmask_b32 {vr(TC+31)}, {vr(TC+31)}, 0, vcc')
    A(f'v_lshlrev_b32 v27, 4, v0')
    for w in range(4):
        for i in range(4):
            A(f'v_cvt_pk_bf16_f32 {vr(8+4*w+i)}, {vr(TC+8*w+2*i)}, {vr(TC+8*w+2*i+1)}')
        A(f'buffer_store_dwordx4 {vr(8+4*w,4)}, v27, s[12:15], s38 offen offset:{w*1024} sc1')
    sum32(TC, True)
    A('''
    s_lshl_b32 s33, s72, 6
    v_lshlrev_b32 v27, 2, v2
    s_mov_b64 exec, 0xffff
    ''')
    A(f'buffer_store_dword {vr(S)}, v27, s[20:23], s33 offen sc1')
    A('s_mov_b64 exec, -1')

def bin_wave(A, dma_fn):
    D, SR, RK, BA = 8, 40, 72, 104
    A('''
    s_lshl_b32 s38, s24, 2
    s_add_u32 s38, s38, s25         ; chunk
    s_lshl_b32 s39, s38, 13
    s_add_u32 s40, s39, 4096
    v_lshlrev_b32 v1, 4, v0
    ''')
    for k in range(8):
        A(f'buffer_load_dwordx4 {vr(D+4*k,4)}, v1, s[16:19], s{39 + k//4} offen offset:{(k%4)*1024}')
    dma_fn()
    for k in range(8):
        A(f'buffer_load_dwordx4 {vr(SR+4*k,4)}, v1, s[12:15], s{39 + k//4} offen offset:{(k%4)*1024}')
    A('''
    v_add_u32 v4, s73, v1
    v_mov_b32 v136, 0
    v_mov_b32 v137, 0
    v_mov_b32 v138, 0
    v_mov_b32 v139, 0
    v_mov_b32 v7, 1
    v_add_u32 v140, s39, v1
    v_mov_b32 v141, 16000
    ''')
    for j in range(4): A(f'ds_write_b128 v4, v[136:139] offset:{j*1024}')
    for k in range(8):
        A(f's_waitcnt vmcnt({31-k})')
        A(f'v_cmp_gt_u32 vcc, {E*4 - k*1024}, v140')
        A('s_nop 1')
        for j in range(4):
            n = 4 * k + j
            A(f'v_cndmask_b32 {vr(D+n)}, v141, {vr(D+n)}, vcc')
            A(f'v_lshrrev_b32 {vr(BA+n)}, 4, {vr(D+n)}')
            A(f'v_lshl_add_u32 {vr(BA+n)}, {vr(BA+n)}, 2, s73')
            A(f'ds_add_rtn_u32 {vr(RK+n)}, {vr(BA+n)}, v7')
    A('s_waitcnt vmcnt(8)')
    A('s_barrier')
    HV = 144
    for j in range(4): A(f'ds_read_b128 {vr(HV+4*j,4)}, v4 offset:{j*1024}')
    A('s_waitcnt vmcnt(0)')
    for n in range(32):
        A(f'v_and_b32 v5, 7, {vr(SR+n)}')
        A(f'v_lshlrev_b32 {vr(SR+n)}, 8, {vr(SR+n)}')
        A(f'v_lshl_or_b32 {vr(SR+n)}, v5, 5, {vr(SR+n)}')
        A(f'v_and_or_b32 {vr(SR+n)}, {vr(D+n)}, 15, {vr(SR+n)}')
    A('s_waitcnt lgkmcnt(0)')
    ST = 160
    A(f'v_mov_b32 {vr(ST)}, 0')
    for i in range(1, 16): A(f'v_add_u32 {vr(ST+i)}, {vr(ST+i-1)}, {vr(HV+i-1)}')
    A(f'v_add_u32 v5, {vr(ST+15)}, {vr(HV+15)}')
    A('v_mov_b32 v6, v5')
    wave_scan_incl(A, 6)
    A('v_sub_u32 v6, v6, v5')
    for i in range(16): A(f'v_add_u32 {vr(ST+i)}, {vr(ST+i)}, v6')
    for j in range(4): A(f'ds_write_b128 v4, {vr(ST+4*j,4)} offset:{j*1024}')
    for n in range(32): A(f'ds_read_b32 {vr(BA+n)}, {vr(BA+n)}')
    for i in range(16): A(f'v_lshl_or_b32 {vr(HV+i)}, {vr(HV+i)}, 16, {vr(ST+i)}')
    A(f's_mul_i32 s33, s38, {NBIN*4}')
    for j in range(3): A(f'buffer_store_dwordx4 {vr(HV+4*j,4)}, v1, s[68:71], s33 offen offset:{j*1024} sc1')
    A('s_mov_b64 exec, 15')
    A(f'buffer_store_dwordx4 {vr(HV+12,4)}, v1, s[68:71], s33 offen offset:3072 sc1')
    A('s_mov_b64 exec, -1')
    A('s_waitcnt lgkmcnt(0)')
    for n in range(32):
        A(f'v_add_u32 {vr(BA+n)}, {vr(BA+n)}, {vr(RK+n)}')
        A(f'v_lshl_add_u32 {vr(BA+n)}, {vr(BA+n)}, 2, s73')
        A(f'ds_write_b32 {vr(BA+n)}, {vr(SR+n)} offset:4096')
    for k in range(8): A(f'ds_read_b128 {vr(D+4*k,4)}, v4 offset:{4096+1024*k}')
    for k in range(8):
        A(f's_waitcnt lgkmcnt({7-k})')
        A(f'buffer_store_dwordx4 {vr(D+4*k,4)}, v1, s[64:67], s{39 + k//4} offen offset:{(k%4)*1024} sc1')

def ready_spin(A, tag, vd, vz):
    A('s_mov_b32 s41, 0x20000')
    A.label(f'L_rs{tag}')
    A(f'''
    buffer_load_dword {vr(vd)}, {vr(vz)}, s[96:99], 0 offen sc1
    s_waitcnt vmcnt(0)
    v_cmp_ne_u32 vcc, 1, {vr(vd)}
    s_cbranch_vccz L_rsok{tag}
    s_sub_u32 s41, s41, 1
    s_cmp_lg_u32 s41, 0
    s_cbranch_scc1 L_rs{tag}
    ''')
    A.label(f'L_rsok{tag}')

def helpers(A):
    A.label('L_helper')
    A(f'''
    s_sub_u32 s3, s2, 4
    s_cmp_lt_u32 s3, 3
    s_cbranch_scc1 L2_done
    s_and_b32 s35, s2, 3
    s_cmp_eq_u32 s2, 7
    s_cselect_b32 s35, 0, s35
    s_load_dwordx2 s[6:7], s[0:1], 64
    s_load_dwordx2 s[24:25], s[0:1], 56
    s_load_dwordx2 s[26:27], s[0:1], 32
    v_lshrrev_b32 v1, 6, v0
    v_mov_b32 v30, v0
    v_and_b32 v0, 63, v0
    v_readfirstlane_b32 s3, v1
    v_and_b32 v2, 15, v0
    v_lshrrev_b32 v3, 4, v0
    s_and_b32 s28, s35, 1
    s_lshr_b32 s29, s35, 1
    v_mov_b32 v8, 0
    s_waitcnt lgkmcnt(0)
    ''')
    srd(A, 96, 100, 0, 256)
    srd(A, 20, 4, WS_FLAG, 16384)
    A('s_cmp_lg_u32 s2, 0')
    A('s_cbranch_scc1 L_w23')
    A(f'''
    v_lshrrev_b32 v9, 2, v30
    v_lshlrev_b32 v9, 8, v9
    v_and_b32 v10, 3, v30
    v_lshl_add_u32 v9, v10, 4, v9
    v_cmp_eq_u32 vcc, {49*4+3}, v30
    v_mov_b32 v13, 0
    v_mov_b32 v14, 0
    v_mov_b32 v15, 0
    v_cndmask_b32 v12, 0, 1, vcc
    buffer_store_dwordx4 v[12:15], v9, s[20:23], 0 offen sc1
    s_waitcnt vmcnt(0)
    s_barrier
    s_cmp_lg_u32 s3, 0
    s_cbranch_scc1 L2_done
    v_mov_b32 v9, 1
    s_mov_b64 exec, 1
    buffer_store_dword v9, v8, s[96:99], 0 offen sc1
    s_endpgm
    ''')
    A.label('L_w23')
    A('''
    s_cmp_eq_u32 s28, 0
    s_cselect_b32 s24, s24, s26
    s_cselect_b32 s25, s25, s27
    ''')
    srd(A, 8, 6, 0, 32768)
    srd(A, 12, 24, 0, 32768)
    srd(A, 16, 4, WS_W23, 65536)
    weights_dma(A, 3, 8, 12, lambda ii: ii & 1)
    A('''
    v_bfe_u32 v26, v0, 2, 2
    v_and_b32 v27, 1, v3
    v_lshl_add_u32 v27, v27, 2, v26
    v_lshlrev_b32 v27, 1, v27
    v_and_b32 v28, 3, v0
    v_xor_b32 v27, v27, v28
    v_lshl_add_u32 v26, v3, 3, v26
    v_lshlrev_b32 v26, 8, v26
    s_lshl_b32 s33, s3, 2
    v_xor_b32 v28, s33, v27
    v_lshl_add_u32 v7, v28, 4, v26
    s_lshl_b32 s33, s29, 3
    v_add_u32 v7, s33, v7
    v_and_b32 v26, 7, v2
    v_lshlrev_b32 v26, 1, v26
    v_xor_b32 v26, v26, v3
    v_lshlrev_b32 v27, 8, v2
    ''')
    for s in range(4):
        A(f'v_xor_b32 v28, {4*s}, v26')
        A(f'v_lshl_add_u32 {vr(12+s)}, v28, 4, v27')
    A('s_waitcnt vmcnt(0)')
    A('s_barrier')
    AF = 128; BFR = 32; C = 64
    for s in range(4):
        for x in range(2):
            A(f'ds_read_b64_tr_b16 {vr(BFR+4*s+2*x,2)}, v7 offset:{s*8192+x*1024}')
    def areads(dt):
        for s in range(4):
            A(f'ds_read_b128 {vr(AF+16*dt+4*s,4)}, {vr(12+s)} offset:{32768+dt*4096}')
    areads(0); areads(1)
    for dt in range(8):
        if dt + 2 < 8: areads(dt + 2)
        A(f's_waitcnt lgkmcnt({4*min(2, 7-dt)})')
        for s in range(4):
            d = C + 4 * dt
            c = '0' if s == 0 else vr(d, 4)
            A(f'v_mfma_f32_16x16x32_bf16 {vr(d,4)}, {vr(AF+16*dt+4*s,4)}, {vr(BFR+4*s,4)}, {c}')
    A('s_nop 7')
    A('''
    v_cmp_eq_u32 vcc, 3, v3
    v_lshlrev_b32 v27, 4, v0
    s_lshl_b32 s33, s3, 14
    s_lshl_b32 s34, s28, 12
    s_add_u32 s33, s33, s34
    s_lshl_b32 s34, s29, 13
    s_add_u32 s33, s33, s34
    ''')
    b = C
    A(f'v_add_f32 v24, {vr(b)}, {vr(b+1)}')
    A(f'v_add_f32 v29, {vr(b+2)}, {vr(b+3)}')
    for k in range(4, 32, 2):
        A(f'v_add_f32 v24, v24, {vr(b+k)}')
        A(f'v_add_f32 v29, v29, {vr(b+k+1)}')
    A('v_add_f32 v24, v24, v29')
    red_g(A, 24, 25)
    bcast_g3(A, 26, b + 31, 25)
    A(f'v_mul_f32 v24, {hex(f32bits(1/math.sqrt(128)))}, v24')
    A(f'v_sub_f32 v24, v26, v24')
    A(f'v_mul_f32 v24, {hex(f32bits(BETA))}, v24')
    for k in range(32): A(f'v_add_f32 {vr(b+k)}, {vr(b+k)}, v24')
    A(f'v_cndmask_b32 {vr(b+31)}, {vr(b+31)}, 0, vcc')
    for w in range(4):
        o = 128 + 4 * w
        for i in range(4):
            A(f'v_cvt_pk_bf16_f32 {vr(o+i)}, {vr(b+8*w+2*i)}, {vr(b+8*w+2*i+1)}')
        A(f'buffer_store_dwordx4 {vr(o,4)}, v27, s[16:19], s33 offen offset:{w*1024} sc1')
    A('s_waitcnt vmcnt(0)')
    A('s_barrier')
    A('s_cmp_lg_u32 s3, 0')
    A('s_cbranch_scc1 L2_done')
    ready_spin(A, 'h', 9, 8)
    A(f'''
    s_lshl_b32 s33, s35, 2
    s_add_u32 s33, s33, {49*256+32}
    v_mov_b32 v9, 1
    s_mov_b64 exec, 1
    buffer_store_dword v9, v8, s[20:23], s33 offen sc1
    s_endpgm
    ''')
```

```python
from asmlib import *
import asmlib
from layout import *
from k1 import srd, wave_scan_incl, f32bits
import re
import phase_a

PB = [128, 160]
SB = 192
KADDR = 208
VADDR = 212
VDMA = 220
LANE = 221
E8 = 222
VADDR2 = 230
PC0, PC1 = 238, 239
LPI, LPC, SELW, SELR, ONE, ETMP = 240, 241, 242, 243, 244, 245
TA, TB, ADA, ADB = 246, 247, 248, 249
T0, T1, T2, T3, T4, T5 = 250, 251, 252, 253, 254, 255
QF, KF, VF = 0, 64, 96
HS, GF, SEL, ZERO, ENT = 128, 160, 192, 196, 200
OFFS = 2
SBUF = 128
CAP = 1024
SPLITB = 79 * 8192
GBASE = 65536
GSIZE = 24576
THRESH = 72.0

XF = ()
SPSLEEP = 's_sleep 1'
SCNT, SWA, SRA, SRD_ = 250, 251, 254, 255
SPINS = []
SYNCB = 65536 + 4992
GMASK = '-16'
GHACK = None
TSC = ' sc1'
FSC = ' sc1'
FOFF = 0
SPINB = 0x20000
LDSC = ' sc1'
OUTSC = ''
def slot(j): return (j + OFFS) % 4
def O(dt, q): return 4 * (dt * 4 + q)

class Op:
    def __init__(self, text, kind, rd=(), wr=(), tag=None):
        self.text, self.kind, self.rd, self.wr, self.tag = text, kind, set(rd), set(wr), tag
def regs(kind, b, n): return [(kind, b + i) for i in range(n)]

def op_qk(n, s):
    kt, q = n // 4, n % 4
    d = SB + 4 * (n % 4)
    a = KF + 16 * (kt % 2) + 4 * s
    b = QF + 4 * (q * 4 + s)
    c = '0' if s == 0 else vr(d, 4)
    return Op(f'v_mfma_f32_16x16x32_bf16 {vr(d,4)}, {ar(a,4)}, {ar(b,4)}, {c}', 'mfma',
              rd=regs('a', a, 4) + regs('a', b, 4), wr=regs('v', d, 4))
def op_pv(pb, dt, q, u, first=False):
    o = O(dt, q)
    a = VF + 8 * (dt % 4) + 4 * u
    p = PB[pb] + 4 * (u * 4 + q)
    return Op(f'v_mfma_f32_16x16x32_bf16 {vr(o,4)}, {ar(a,4)}, {vr(p,4)}, {"0" if first else vr(o,4)}', 'mfma',
              rd=regs('a', a, 4) + regs('v', p, 4), wr=regs('v', o, 4))
def op_kread(j, kt, s):
    a = KF + 16 * (kt % 2) + 4 * s
    return Op(f'ds_read_b128 {ar(a,4)}, {vr(KADDR+s)} offset:{slot(j)*16384+kt*4096}', 'lds', wr=regs('a', a, 4), tag=slot(j))
def op_vread(j, dt, u, x):
    a = VF + 8 * (dt % 4) + 4 * u + 2 * x
    return Op(f'ds_read_b64_tr_b16 {ar(a,2)}, {vr(VADDR+dt)} offset:{slot(j)*16384+u*8192+x*4096}', 'lds', wr=regs('a', a, 2), tag=slot(j))
def op_exp(n, r):
    d = SB + 4 * (n % 4) + r
    return Op(f'v_exp_f32 {vr(d)}, {vr(d)}', 'trans', rd=[('v', d)], wr=[('v', d)])
def op_cvt(pb, n, half):
    kt, q = n // 4, n % 4
    s = SB + 4 * (n % 4) + 2 * half
    d = PB[pb] + 4 * ((kt // 2) * 4 + q) + 2 * (kt % 2) + half
    return Op(f'v_cvt_pk_bf16_f32 {vr(d)}, {vr(s)}, {vr(s+1)}', 'valu', rd=[('v', s), ('v', s + 1)], wr=[('v', d)])
def op_dma(k):
    return Op(f'buffer_load_dwordx4 {vr(VDMA)}, s[8:11], s27 offen offset:{k*1024}{LDSC} lds', 'vmem')
def op_s(text): return Op(text, 'salu')
def next_off():
    return [[op_s('s_add_u32 s27, s27, 16384')], [op_s('s_cmp_eq_u32 s27, s89'), op_s('s_cselect_b32 s27, s88, s27')],
            [op_s('s_cmp_eq_u32 s27, s90'), op_s('s_cselect_b32 s27, s89, s27')]]

def g_issue_reads(loff):
    return [Op(f'ds_read2_b32 {vr(E8+2*i,2)}, {vr(LPI)} offset0:{loff//4+8*i} offset1:{loff//4+8*i+4}', 'lds', wr=regs('v', E8+2*i, 2), tag=-2) for i in range(4)]
def g_issue_dma(i, buf):
    ops = []
    ops.append(op_s(f's_mov_b32 m0, s{74+buf}') if i == 0 else op_s(f's_add_u32 m0, s{74+buf}, {i*1024}'))
    ops.append(Op(f'v_bitop3_b32 {vr(E8+i)}, {vr(E8+i)}, {GMASK}, {vr(PC0 if i%2==0 else PC1)} bitop3:0x6a', 'valu', rd=[('v', E8+i)], wr=[('v', E8+i)]))
    if 'nogdma' not in XF: ops.append(Op(f'buffer_load_dwordx4 {vr(E8+i) if "gsame" not in XF else vr(VDMA)}, s[8:11], 0 offen{LDSC} lds', 'vmem'))
    return ops
def g_issue_dma2(i):
    j = i % 4
    so = ['s36', 's37', 's38', '0'][j]
    return [Op(f'v_bitop3_b32 {vr(E8+i)}, {vr(E8+i)}, -16, {vr(PC0 if i%2==0 else PC1)} bitop3:0x6a', 'valu', rd=[('v', E8+i)], wr=[('v', E8+i)]),
            Op(f'buffer_load_dwordx4 {vr(E8+i)}, s[92:95], {so} offen offset:{j*1024}{LDSC} lds', 'vmem')]
def g_sel1(loff):
    return [Op(f'ds_read_b32 {vr(ETMP)}, {vr(LPC)} offset:{loff}', 'lds', wr=[('v', ETMP)], tag=-2),
            Op(f'ds_write_b128 {vr(SELR)}, {ar(ZERO,4)}', 'lds', tag=-2)]
def g_sel2():
    return [Op(f'v_and_b32 {vr(ETMP)}, 31, {vr(ETMP)}', 'valu', rd=[('v', ETMP)], wr=[('v', ETMP)]),
            Op(f'v_lshl_add_u32 {vr(ETMP)}, {vr(ETMP)}, 6, {vr(SELW)}', 'valu', rd=[('v', ETMP)], wr=[('v', ETMP)])]
def g_sel3():
    return [Op(f'ds_write_b16 {vr(ETMP)}, {vr(ONE)}', 'lds', tag=-2),
            Op(f'ds_read_b128 {ar(SEL,4)}, {vr(SELR)}', 'lds', wr=regs('a', SEL, 4), tag=-2)]
def g_tr(dt, x, buf):
    a = GF + 4 * dt + 2 * x
    return Op(f'ds_read_b64_tr_b16 {ar(a,2)}, {vr(VADDR2+dt)} offset:{buf*8192+x*4096}', 'lds', wr=regs('a', a, 2), tag=-2)
def g_mfma(dt):
    return Op(f'v_mfma_f32_16x16x32_bf16 {ar(HS+4*dt,4)}, {ar(GF+4*dt,4)}, {ar(SEL,4)}, {ar(HS+4*dt,4)}', 'mfma',
              rd=regs('a', GF+4*dt, 4) + regs('a', SEL, 4), wr=regs('a', HS+4*dt, 4))

EE = [['e0'], ['e1'], ['e2'], ['e3']]
GP_OLD = {(0,6):['r0'], (0,7):['r1','r2'], (1,6):['r3'], (2,3):['D0'], (2,7):['D1'], (3,3):['D2'], (3,7):['D3'], (4,3):['D4'], (4,7):['D5'], (5,3):['D6'], (5,7):['D7'],
          (5,6):['sa'], (6,6):['sb'], (6,7):['s2'], (7,7):['s3'], (7,3):['vw','t0'], (7,6):['t1'], (8,3):['t2'], (8,6):['t3'], (9,3):['t4','M0'], (9,6):['t5'], (9,7):['M1'],
          (10,3):['t6','M2'], (10,6):['t7'], (10,7):['M3'], (11,3):['M4'], (11,7):['M5'], (12,3):['M6'], (12,7):['M7']}
GP1 = {(0,7):['r0','r1'], (1,7):['r2'], (2,6):['r3','sa'], (2,7):['D0'], (3,6):['D1'], (3,7):['sb'], (4,7):['D2'], (5,3):['D3'], (6,3):['s2'], (6,7):['D4'],
      (7,3):['D5'], (7,7):['s3'], (8,3):['vw','t0'], (8,5):['t1'], (8,7):['D6'], (9,3):['M0','t2'], (9,7):['M1','t3'], (10,3):['M2','t4'], (10,7):['D7'],
      (11,3):['M3','t5'], (11,7):['M4','t6'], (12,3):['M5','t7'], (13,3):['M6'], (13,7):['M7']}
SOFT = dict(Frd=(0,7), m0=(1,7), Fck=(2,7), Fbr=(3,6), dma=[(4,7),(6,6),(6,7),(7,6)], a1=(5,7), vm=(7,7), wr1=(8,7), Lrd=(10,6), Lck=(11,6), Lbr=(11,7),
            a2=(12,7), wr2=(13,7), sadd3=[(10,7),(14,6),(14,7)])
SOFT['dma_g'] = [(4,7),(5,7),(6,7),(7,6)]
GPS = {(1,7):['km0'], (0,7):['sa'], (2,6):['sb','r0'], (3,3):['s2'], (3,6):['r1'], (3,7):['r2'], (4,3):['s3'], (5,3):['vw','t0'], (5,5):['t1'], (6,3):['M0','t2'], (6,5):['M1','t3'],
     (7,3):['M2','t4'], (7,5):['M3','t5'], (8,3):['M4','t6','gm0a'], (8,5):['M5','t7'], (8,7):['r3'], (9,3):['M6','D0'], (9,7):['M7','D1'], (10,3):['D2'], (11,3):['D3','gm0b'], (12,3):['D4'], (13,3):['D5'], (14,3):['D6'], (15,6):['D7']}
DEFAULT = dict(gplan=GP1, soft=SOFT, gplan_soft=GPS, use_soft=True,
    slots4=[EE + [['c0','c1'], ['v','v'], ['k','k'], []], EE + [['c0','c1'], ['v','v'], ['k','k'], ['w']],
            EE + [['c0','c1'], ['v','v'], [], []], EE + [['c0','c1'], ['v','v'], [], ['w']]],
    bar_group=12, bar_slot=5,
    dma=[(12,7),(14,6),(14,7),(15,6)], m0=(11,6), sadd3=[(6,6),(7,6),(10,6)], pvrev=True,
)

def build_iter(i, cfg, nqk=16, pv_us=(0, 1), first_pv=False, next_k=True, next_v_us=(0, 1), bar=True, dma=True,
               prev_tile=15, g_issue=None, g_cons=None, soft=None):
    ops = []
    pbN, pbC = (i + 1) % 2, i % 2
    extra = {}
    def add(g, s, o): extra.setdefault((g, s), []).extend(o)
    gp = cfg['gplan']
    items = {}
    if soft is not None:
        bar = False; dma = False
        isg = g_cons is not None
        sp = cfg['soft']
        gp = cfg['gplan_soft']
        kpos = sp.get('dma_g', sp['dma']) if isg else sp['dma']
        dpos = sorted(pos for pos in gp for it in gp[pos] if it[0] == 'D') if isg else []
        nL = sum(1 for p_ in kpos if p_ < sp['vm']) + sum(1 for p_ in dpos if p_ > kpos[3]) + sum(1 for p_ in dpos if p_ < sp['vm'])
        def ck(nm):
            SPINS.append(f'{soft}{nm}')
            return [Op(f'v_cmp_lt_u32 vcc, {vr(SRD_)}, {vr(SCNT)}', 'valu', rd=[('v', SRD_)]), op_s(f's_cbranch_vccnz L2_sp{soft}{nm}'), Op(f'L2_spr{soft}{nm}:', 'label')]
        rdop = lambda: [Op(f'ds_read_b32 {vr(SRD_)}, {vr(SRA)}', 'lds', wr=[('v', SRD_)], tag=-2)]
        addop = lambda: [Op(f'v_add_u32 {vr(SCNT)}, 1, {vr(SCNT)}', 'valu')]
        wrop = lambda: [Op(f'ds_write_b32 {vr(SWA)}, {vr(SCNT)}', 'lds', tag=-2)]
        c_ = ck('F'); add(*sp['Frd'], rdop()); add(*sp['Fck'], c_[:1]); add(*sp.get('Fbr', sp['Fck']), c_[1:])
        m0op = op_s(f's_mov_b32 m0, s{28 + slot(i+3)}')
        if not isg: add(*sp['m0'], [m0op])
        else: items['km0'] = [m0op]
        for k in range(4):
            add(*kpos[k], [op_dma(k)])
        add(*sp['a1'], addop()); add(*sp['vm'], [op_s(f's_waitcnt vmcnt({nL})')]); add(*sp.get('wr1', sp['vm']), wrop())
        c_ = ck('L'); add(*sp['Lrd'], rdop()); add(*sp['Lck'], c_[:1]); add(*sp.get('Lbr', sp['Lck']), c_[1:])
        add(*sp['a2'], addop()); add(*sp['wr2'], wrop())
        for k, pos in enumerate(sp['sadd3']): add(*pos, next_off()[k])
    if g_issue is not None:
        loff, buf = g_issue
        rd = g_issue_reads(loff)
        for k in range(4): items[f'r{k}'] = [rd[k]]
        for k in range(8): items[f'D{k}'] = g_issue_dma(k, buf) if soft is None else g_issue_dma2(k)
        items['gm0a'] = [op_s(f's_mov_b32 m0, s{74+buf}')]
        items['gm0b'] = [op_s(f's_add_u32 m0, s{74+buf}, 4096')]
    if g_cons is not None:
        loff, buf, vm = g_cons
        items['sa'] = g_sel1(loff)[:1]; items['sb'] = g_sel1(loff)[1:]
        items['s2'] = g_sel2(); items['s3'] = g_sel3()
        order = [it for pos in sorted(gp) for it in gp[pos]]
        nd = sum(1 for it in order[:order.index('vw')] if it[0] == 'D')
        nk = 4
        if soft is not None:
            vwpos = [pos for pos in gp if 'vw' in gp[pos]][0]
            nk = sum(1 for p_ in kpos if p_ <= vwpos) + sum(1 for p_ in kpos if p_ > dpos[-1])
        items['vw'] = [op_s(f's_waitcnt vmcnt({nk + nd})')]
        for dt in range(8):
            items[f't{dt}'] = [g_tr(dt, 0, buf), g_tr(dt, 1, buf)]
            items[f'M{dt}'] = [g_mfma(dt)]
    for pos in sorted(gp):
        for it in gp[pos]:
            if it in items: add(pos[0], pos[1], items[it])
    kq = []
    for n in range(16):
        dt = n // 2
        q0 = 2 * (n % 2)
        slots = cfg['slots4'][n % 4] if 'slots4' in cfg else cfg['slots']
        mf = [op_qk(n, s) if n < nqk else None for s in range(4)]
        for q in (q0, q0 + 1):
            us = (1, 0) if (cfg.get('pvrev') and q == q0 + 1 and len(pv_us) == 2) else (0, 1)
            for u in us:
                mf.append(op_pv(pbC, dt, q, u, first=(first_pv and u == us[0])) if u in pv_us else None)
        dtn = dt + 2
        jv = i if dtn < 8 else i + 1
        uu = n % 2
        v_ok = (uu in pv_us) if dtn < 8 else (uu in next_v_us)
        vq = [op_vread(jv, dtn % 8, uu, x) for x in range(2)]
        kt = n // 4
        ktn = kt + 1
        jk = i + 1 if ktn < 4 else i + 2
        k_ok = (4 * ktn < nqk) if ktn < 4 else next_k
        if n % 4 == 0:
            assert not kq
            kq = [op_kread(jk, ktn % 4, s) for s in range(4)]
        for m in range(8):
            if mf[m] is not None: ops.append(mf[m])
            for f in slots[m]:
                if ('no' + f[0]) in XF and 2 <= i <= 5:
                    if f == 'k': kq.pop(0)
                    continue
                if f[0] == 'e' or f[0] == 'c':
                    if n == 0:
                        if prev_tile is not None:
                            ops.append(op_exp(prev_tile, int(f[1])) if f[0] == 'e' else op_cvt(pbC, prev_tile, int(f[1])))
                    elif n - 1 < nqk:
                        ops.append(op_exp(n - 1, int(f[1])) if f[0] == 'e' else op_cvt(pbN, n - 1, int(f[1])))
                elif f == 'v':
                    o = vq.pop(0)
                    if v_ok: ops.append(o)
                elif f == 'k':
                    o = kq.pop(0)
                    if k_ok: ops.append(o)
                elif f == 'w':
                    need = set()
                    for nn in (n + 1, n + 2):
                        n2 = nn % 16
                        need |= set(regs('a', KF + 16 * ((n2 // 4) % 2), 16)) if n2 // 4 != kt or nn >= 16 else set()
                        if n2 // 2 != dt: need |= set(regs('a', VF + 8 * ((n2 // 2) % 4), 8))
                    ops.append(Op('WAIT', 'wait', rd=need))
            ops.extend(extra.get((n, m), []))
            if m == 7 and cfg.get('stall'):
                ops.append(op_s(f's_nop {cfg["stall"]-1}'))
            if bar and 'nobar' not in XF and n == cfg['bar_group'] and m == cfg['bar_slot']:
                ops.append(Op('BARRIER', 'bar', tag=slot(i)))
            if dma and 'nokv' not in XF:
                for k, (g, sl) in enumerate(cfg['dma']):
                    if g == n and sl == m:
                        ops.append(op_dma(k))
                if cfg['m0'] == (n, m): ops.append(op_s(f's_mov_b32 m0, s{28 + slot(i+4)}'))
                for k, pos in enumerate(cfg['sadd3']):
                    if pos == (n, m): ops.extend(next_off()[k])
    return ops

def finalize(ops, pending_in, vm_wait):
    pend = list(pending_in)
    out = []
    for o in ops:
        if o.kind == 'bar':
            need = -1
            for idx, (w, tg) in enumerate(pend):
                if tg == o.tag: need = idx
            if need >= 0:
                cnt = len(pend) - 1 - need
                out.append(Op(f's_waitcnt vmcnt({vm_wait}) lgkmcnt({min(cnt,15)})', 'salu'))
                pend = pend[need + 1:]
            else:
                out.append(Op(f's_waitcnt vmcnt({vm_wait})', 'salu'))
            out.append(Op('s_barrier', 'salu'))
            if 'bar2' in XF: out.append(Op('s_barrier', 'salu'))
            continue
        if o.kind in ('mfma', 'valu', 'trans', 'wait'):
            need = -1
            for idx, (w, tg) in enumerate(pend):
                if w & o.rd: need = idx
            if need >= 0:
                cnt = len(pend) - 1 - need
                out.append(Op(f's_waitcnt lgkmcnt({min(cnt,15)})', 'salu'))
                pend = pend[need + 1:]
        if o.kind == 'lds':
            pend.append((frozenset(o.wr), o.tag))
        if o.kind != 'wait': out.append(o)
    return out, pend

def fix_hazards(ops, fix=True):
    pos = 0
    lm = {}; lv = {}; lt = {}
    out = []
    for o in ops:
        need = 0
        if o.kind in ('valu', 'trans'):
            for r in o.rd | o.wr:
                if r in lm: need = max(need, 8 - (pos - lm[r] - 1))
            if o.kind == 'valu':
                for r in o.rd:
                    if r in lt: need = max(need, 1 - (pos - lt[r] - 1))
        if o.kind == 'mfma':
            for r in o.rd | o.wr:
                if r in lv: need = max(need, 2 - (pos - lv[r] - 1))
            for r in o.rd:
                if r in lm: need = max(need, 8 - (pos - lm[r] - 1))
        if need > 0:
            if not fix: raise Exception(f'hazard at {o.text} need {need}')
            out.append(op_s(f's_nop {need-1}')); pos += need
        if o.kind == 'mfma':
            for r in o.wr: lm[r] = pos
        if o.kind in ('valu', 'trans'):
            for r in o.wr:
                lv[r] = pos
                if o.kind == 'trans': lt[r] = pos
                else: lt.pop(r, None)
        m = re.match(r's_nop (\d+)', o.text)
        pos += (int(m.group(1)) + 1) if m else (0 if o.kind == 'label' else 1)
        out.append(o)
    return out

def emit(A, ops):
    for o in ops:
        if o.kind == 'label': A.raw(o.text)
        else: A(o.text)

TW = [TA, TB, ADA, ADB]
CN = [E8, E8+1, E8+2, E8+3]
LA = [E8+4, E8+5, E8+6, E8+7]
ENTR = [160, 176, 200, 216]
LIM = 16
RT = 4
def list_scan(A, tag):
    A(f's_mov_b32 s79, {LIM}')
    A.label(f'L2_retry{tag}')
    for k in range(4):
        A(f'v_lshrrev_b32 {vr(CN[k])}, 16, {vr(TW[k])}')
        A(f'v_min_u32 {vr(CN[k])}, s79, {vr(CN[k])}')
    A(f'''
    v_lshl_or_b32 {vr(T0)}, {vr(CN[1])}, 16, {vr(CN[0])}
    v_lshl_or_b32 {vr(T1)}, {vr(CN[3])}, 16, {vr(CN[2])}
    v_mov_b32 {vr(T2)}, {vr(T0)}
    v_mov_b32 {vr(T3)}, {vr(T1)}
    s_nop 0
    ''')
    for mod in ('row_shr:1 row_mask:0xf', 'row_shr:2 row_mask:0xf', 'row_shr:4 row_mask:0xf', 'row_shr:8 row_mask:0xf', 'row_bcast:15 row_mask:0xa', 'row_bcast:31 row_mask:0xc'):
        A(f'v_add_u32_dpp {vr(T2)}, {vr(T2)}, {vr(T2)} {mod} bank_mask:0xf')
        A(f'v_add_u32_dpp {vr(T3)}, {vr(T3)}, {vr(T3)} {mod} bank_mask:0xf')
        A('s_nop 0')
    A(f'''
    v_readlane_b32 s80, {vr(T2)}, 63
    v_readlane_b32 s81, {vr(T3)}, 63
    s_and_b32 s36, s80, 0xffff
    s_lshr_b32 s37, s80, 16
    s_add_u32 s37, s37, s36
    s_and_b32 s38, s81, 0xffff
    s_add_u32 s38, s38, s37
    s_lshr_b32 s76, s81, 16
    s_add_u32 s76, s76, s38
    s_cmp_le_u32 s76, {CAP}
    s_cbranch_scc1 L2_ok{tag}
    s_mov_b32 s79, 4
    s_branch L2_retry{tag}
    ''')
    A.label(f'L2_ok{tag}')
    A(f'''
    v_sub_u32 {vr(T2)}, {vr(T2)}, {vr(T0)}
    v_sub_u32 {vr(T3)}, {vr(T3)}, {vr(T1)}
    v_and_b32 {vr(LA[0])}, 0xffff, {vr(T2)}
    v_lshrrev_b32 {vr(LA[1])}, 16, {vr(T2)}
    v_add_u32 {vr(LA[1])}, s36, {vr(LA[1])}
    v_and_b32 {vr(LA[2])}, 0xffff, {vr(T3)}
    v_add_u32 {vr(LA[2])}, s37, {vr(LA[2])}
    v_lshrrev_b32 {vr(LA[3])}, 16, {vr(T3)}
    v_add_u32 {vr(LA[3])}, s38, {vr(LA[3])}
    s_add_u32 s77, s76, 31
    s_lshr_b32 s77, s77, 5
    s_mov_b32 s78, 0
    s_max_u32 s3, s77, {RT-1}
    s_sub_u32 s3, s3, {RT-1}
    s_and_b32 s3, s3, -2
    v_lshlrev_b32 {vr(T1)}, 13, {vr(LANE)}
    ''')
    for k in range(4):
        A(f'v_lshlrev_b32 {vr(LA[k])}, 2, {vr(LA[k])}')
        A(f'v_add_u32 {vr(LA[k])}, s73, {vr(LA[k])}')

def list_loads(A, tag):
    for st in range(4):
        A(f'v_and_b32 {vr(T0)}, 0xffff, {vr(TW[st])}')
        A(f'v_lshl_add_u32 {vr(T0)}, {vr(T0)}, 2, {vr(T1)}')
        A(f's_mov_b32 s36, {st*64*CH*4}')
        for qd in range(LIM // 4):
            A(f'v_cmp_lt_u32 vcc, {4*qd}, {vr(CN[st])}')
            A('s_mov_b64 exec, vcc')
            A(f's_cbranch_execz L2_ld{tag}_{st}')
            A(f'buffer_load_dwordx4 {ar(ENTR[st]+4*qd,4)}, {vr(T0)}, s[64:67], s36 offen offset:{16*qd} sc1')
        A.label(f'L2_ld{tag}_{st}')
        A('s_mov_b64 exec, -1')

def list_writes(A, tag):
    for st in range(4):
        for qd in range(LIM // 4 - 1, -1, -1):
            A(f'v_cmp_lt_u32 vcc, {4*qd}, {vr(CN[st])}')
            A('s_mov_b64 exec, vcc')
            A(f's_cbranch_execz L2_w{tag}_{st}_{qd}')
            for j in range(3, -1, -1):
                A(f'ds_write_b32 {vr(LA[st])}, {ar(ENTR[st]+4*qd+j)} offset:{4*(4*qd+j)}')
            A.label(f'L2_w{tag}_{st}_{qd}')
            A('s_mov_b64 exec, -1')
    A(f'''
    v_add_u32 {vr(T2)}, s76, {vr(LANE)}
    v_lshlrev_b32 {vr(T2)}, 2, {vr(T2)}
    v_add_u32 {vr(T2)}, s73, {vr(T2)}
    v_mov_b32 {vr(T3)}, 0x7ffffff0
    ds_write_b32 {vr(T2)}, {vr(T3)}
    ds_write_b32 {vr(T2)}, {vr(T3)} offset:256
    ds_write_b32 {vr(T2)}, {vr(T3)} offset:512
    ''')
    for k in range(4):
        A(f'v_add_u32 {vr(TW[k])}, {vr(TW[k])}, {vr(CN[k])}')
        A(f'v_lshlrev_b32 {vr(CN[k])}, 16, {vr(CN[k])}')
        A(f'v_sub_u32 {vr(TW[k])}, {vr(TW[k])}, {vr(CN[k])}')
    A(f'''
    v_lshrrev_b32 {vr(LPI)}, 4, {vr(LANE)}
    v_lshlrev_b32 {vr(LPI)}, 2, {vr(LPI)}
    v_add_u32 {vr(LPI)}, s73, {vr(LPI)}
    v_and_b32 {vr(LPC)}, 31, {vr(LANE)}
    v_lshlrev_b32 {vr(LPC)}, 2, {vr(LPC)}
    v_add_u32 {vr(LPC)}, s73, {vr(LPC)}
    ''')

def table_loads(A):
    A(f'v_mov_b32 {vr(T4)}, {NBIN*4}')
    A(f'v_mul_u32_u24 {vr(T4)}, {vr(T4)}, {vr(LANE)}')
    A('s_lshl_b32 s80, s72, 2')
    for k in range(4):
        A(f'buffer_load_dword {vr(TW[k])}, {vr(T4)}, s[68:71], s80 offen sc1')
        if k < 3: A(f's_add_u32 s80, s80, {64*NBIN*4}')

def full_check_issue(A, vdst, vaddr):
    A(f'v_min_u32 {vr(vaddr)}, 49, {vr(LANE)}')
    A(f'v_lshlrev_b32 {vr(vaddr)}, 8, {vr(vaddr)}')
    A(f's_mov_b32 s39, {WS_FLAG-WS_BND+32}')
    A(f'buffer_load_dwordx4 {vr(vdst,4)}, {vr(vaddr)}, s[20:23], s39 offen sc1')
    A(f'buffer_load_dword {vr(vdst+4)}, {vr(vaddr)}, s[20:23], s39 offen offset:16 sc1')

def flags_spin(A, tag, vdst, vaddr, first_wait):
    A('s_mov_b32 s41, 0x20000')
    A(first_wait)
    A.label(f'L2_fs{tag}')
    A(f'''
    v_and_b32 {vr(vdst)}, {vr(vdst)}, {vr(vdst+1)}
    v_and_b32 {vr(vdst+2)}, {vr(vdst+2)}, {vr(vdst+3)}
    v_and_b32 {vr(vdst)}, {vr(vdst)}, {vr(vdst+4)}
    v_and_b32 {vr(vdst)}, {vr(vdst)}, {vr(vdst+2)}
    v_cmp_ne_u32 vcc, 1, {vr(vdst)}
    s_cbranch_vccz L2_fsok{tag}
    s_sub_u32 s41, s41, 1
    s_cmp_eq_u32 s41, 0
    s_cbranch_scc1 L2_fsok{tag}
    s_sleep 1
    buffer_load_dwordx4 {vr(vdst,4)}, {vr(vaddr)}, s[20:23], s39 offen sc1
    buffer_load_dword {vr(vdst+4)}, {vr(vaddr)}, s[20:23], s39 offen offset:16 sc1
    s_waitcnt vmcnt(0)
    s_branch L2_fs{tag}
    ''')
    A.label(f'L2_fsok{tag}')

def w23_dma_ops():
    res = []
    for b in range(4):
        for k in range(4):
            ops = []
            if k == 0:
                ops.append(op_s('s_mov_b32 m0, s33'))
                ops.append(op_s('s_nop 0'))
            ops.append(Op(f'buffer_load_dwordx4 {vr(T5)}, s[12:15], s33 offen offset:{k*1024} sc1 lds', 'vmem'))
            if k == 3: ops.append(op_s('s_add_u32 s33, s33, 4096'))
            res.append(ops)
    return res

def gen_k2(A, cfg=None, name='attn_kernel', stamp=0, flags=()):
    cfg = cfg or DEFAULT
    def st(i):
        if stamp: A(f's_memrealtime s[{44+2*i}:{45+2*i}]')
    A.raw(f'.globl {name}\n.p2align 8\n.type {name},@function')
    A.label(name)
    L = vr(LANE)
    A(f'''
    s_cmp_ge_u32 s2, 256
    s_cbranch_scc1 L2_done
    s_load_dwordx2 s[4:5], s[0:1], 88
    s_load_dwordx2 s[100:101], s[0:1], 80
    s_cmp_lt_u32 s2, 8
    s_cbranch_scc1 L_helper
    s_sub_u32 s3, s2, 12
    s_cmp_lt_u32 s3, 3
    s_cbranch_scc1 L2_done
    s_load_dwordx2 s[6:7], s[0:1], 0
    s_load_dwordx2 s[84:85], s[0:1], 24
    s_load_dwordx2 s[86:87], s[0:1], 72
    s_load_dwordx4 s[76:79], s[0:1], 40
    s_load_dwordx4 s[96:99], s[0:1], 8
    ''')
    for i in range(10): st(i)
    A(f'''
    v_lshrrev_b32 v1, 6, v0
    v_and_b32 v0, 63, v0
    v_mov_b32 {L}, v0
    s_mov_b32 s3, 0x33333334
    v_readfirstlane_b32 s26, v1
    s_lshr_b32 s33, s2, 3
    s_lshl_b32 s40, s33, 2
    s_sub_u32 s33, s33, 2
    s_mul_hi_u32 s24, s33, s3
    s_mul_i32 s3, s24, 5
    s_sub_u32 s25, s33, s3
    s_lshl_b32 s24, s24, 3
    s_and_b32 s3, s2, 7
    s_add_u32 s24, s24, s3
    s_min_u32 s3, s3, 4
    s_cmp_lt_u32 s2, 16
    s_cselect_b32 s24, 48, s24
    s_cselect_b32 s25, s3, s25
    v_and_b32 v2, 15, v0
    v_lshrrev_b32 v3, 4, v0
    v_lshlrev_b32 {vr(T5)}, 4, v0
    s_mul_i32 s72, s26, 5
    s_add_u32 s72, s72, 4
    s_sub_u32 s72, s72, s25
    s_lshl_b32 s3, s24, 4
    s_cmp_lt_u32 s72, 16
    s_cselect_b32 s82, 1, 0
    s_add_u32 s72, s72, s3
    s_cmp_eq_u32 s82, 1
    s_cselect_b32 s72, s72, 0x100000
    s_mul_i32 s73, s26, {GSIZE}
    s_add_u32 s73, s73, {GBASE}
    s_add_u32 s74, s73, 8192
    s_add_u32 s75, s73, 16384
    s_add_u32 s40, s40, s26
    s_sub_u32 s40, s40, 4
    ''')
    asmlib.code_prefetch(A, 'k2', name, 'L_code_end', 42, 40, 41, T5, 200)
    A('s_waitcnt lgkmcnt(0)')
    srd(A, 88, 76, 0, 32768)
    srd(A, 92, 78, 0, 32768)
    srd(A, 64, 4, WS_EDGE, NCH*CH*4+256)
    srd(A, 20, 4, WS_BND, WS_W23-WS_BND)
    dma_fn = lambda: phase_a.weights_dma(A, 26, 88, 92, lambda ii: ii >> 1)
    A('s_cmp_eq_u32 s82, 0')
    A('s_cbranch_scc1 L_binw')
    srd(A, 68, 6, 0, N*256)
    phase_a.owner_x_loads(A)
    dma_fn()
    srd(A, 8, 4, WS_H1, N*256)
    srd(A, 12, 4, WS_QF, 784*4096)
    phase_a.owner_compute(A, st)
    A('s_branch L_adone')
    A.label('L_binw')
    srd(A, 12, 96, 0, E*4)
    srd(A, 16, 98, 0, E*4)
    srd(A, 68, 4, WS_TAB, NCH*NBIN*4)
    phase_a.bin_wave(A, dma_fn)
    A.label('L_adone')
    st(9)
    srd(A, 96, 100, 0, 256)
    A('v_mov_b32 v10, 0')
    A('buffer_load_dword v11, v10, s[96:99], 0 offen sc1')
    srd(A, 8, 4, WS_H1, N*256)
    srd(A, 12, 4, WS_QF, 784*4096)
    srd(A, 16, 4, WS_OP, 5*784*4096)
    srd(A, 68, 4, WS_TAB, NCH*NBIN*4)
    def dma_tile(j):
        pre = [] if j == 0 else sum(next_off(), [])
        ops = pre + [op_s(f's_mov_b32 m0, s{28+slot(j)}'), op_s('s_nop 0')] + [op_dma(k) for k in range(4)]
        return ops
    A(f'''
    s_lshl_b32 s33, s26, 12
    v_add_u32 {vr(VDMA)}, s33, {vr(T5)}
    s_mul_i32 s88, s25, {SPLITB}
    s_cmp_eq_u32 s25, 4
    s_cselect_b32 s89, 37, 39
    s_lshl_b32 s89, s89, 14
    s_add_u32 s89, s89, s88
    s_add_u32 s91, s88, 65535
    s_lshr_b32 s91, s91, 16
    s_sub_u32 s27, s2, s91
    s_and_b32 s27, s27, 7
    s_add_u32 s91, s91, s27
    s_lshl_b32 s27, s91, 16
    s_sub_u32 s27, s27, s88
    s_add_u32 s27, s27, 16383
    s_and_b32 s27, s27, 0xffffc000
    s_add_u32 s27, s27, s88
    s_mov_b32 s90, s27
    s_add_u32 s28, s33, 0
    s_add_u32 s29, s33, 16384
    s_add_u32 s30, s33, 32768
    s_add_u32 s31, s33, 49152
    s_lshl_b32 s34, s24, 4
    s_lshl_b32 s35, s26, 2
    s_add_u32 s34, s34, s35
    s_lshl_b32 s35, s34, 12
    v_and_b32 v4, 7, {L}
    v_lshlrev_b32 v4, 1, v4
    v_lshrrev_b32 v5, 4, {L}
    v_xor_b32 v4, v4, v5
    v_and_b32 v6, 15, {L}
    v_lshlrev_b32 v7, 8, v6
    ''')
    for s in range(4):
        A(f'v_xor_b32 v8, {4*s}, v4')
        A(f'v_lshl_add_u32 {vr(KADDR+s)}, v8, 4, v7')
    A(f'''
    v_lshrrev_b32 v4, 2, {L}
    v_lshlrev_b32 v7, 8, v4
    v_and_b32 v4, 7, v4
    v_and_b32 v8, 3, {L}
    v_lshl_add_u32 v7, v8, 3, v7
    ''')
    for dt in range(8):
        A(f'v_xor_b32 v8, {dt}, v4')
        A(f'v_lshl_add_u32 {vr(VADDR+dt)}, v8, 5, v7')
        A(f'v_add_u32 {vr(VADDR2+dt)}, s74, {vr(VADDR+dt)}')
    A(f'''
    v_lshlrev_b32 v8, 1, v5
    v_xor_b32 v8, v8, v6
    v_lshlrev_b32 {vr(PC0)}, 4, v8
    v_xor_b32 {vr(PC1)}, 0x80, {vr(PC0)}
    v_bfe_u32 v8, {L}, 2, 2
    v_lshlrev_b32 v8, 4, v8
    v_bfe_u32 v9, {L}, 4, 1
    v_lshl_add_u32 v8, v9, 3, v8
    v_and_b32 v9, 3, {L}
    v_lshl_add_u32 v8, v9, 1, v8
    s_add_u32 s83, s73, 5120
    v_add_u32 {vr(SELW)}, s83, v8
    v_lshlrev_b32 v8, 6, v6
    v_lshl_add_u32 v8, v5, 4, v8
    v_add_u32 {vr(SELR)}, s83, v8
    v_mov_b32 {vr(ONE)}, 0x3f80
    ''')
    if GHACK is not None:
        A(f's_mov_b32 s92, {GHACK}')
        A(f'v_lshlrev_b32 v8, 5, v5')
        A(f'v_and_b32 v8, s92, v8')
        A(f'v_lshlrev_b32 v9, 4, v6')
        A(f'v_xor_b32 {vr(PC0)}, v8, v9')
        A(f'v_and_b32 v8, 0x80, s92' if False else f's_and_b32 s93, s92, 0x80')
        A(f'v_xor_b32 {vr(PC1)}, s93, {vr(PC0)}')
    for r in range(32): A(f'v_accvgpr_write_b32 {ar(HS+r)}, 0')
    for r in range(4): A(f'v_accvgpr_write_b32 {ar(ZERO+r)}, 0')
    A('s_waitcnt vmcnt(0)')
    A('s_barrier')
    st(1)
    A('s_cmp_lg_u32 s26, 0')
    A('s_cbranch_scc1 L_depok')
    A('v_cmp_ne_u32 vcc, 1, v11')
    A('s_cbranch_vccz L_rsokm')
    phase_a.ready_spin(A, 'm', 11, 10)
    A(f'''
    s_lshl_b32 s40, s24, 8
    s_lshl_b32 s41, s25, 2
    s_add_u32 s41, s41, s40
    s_add_u32 s41, s41, {WS_FLAG-WS_BND+32}
    v_mov_b32 v11, 1
    s_mov_b64 exec, 1
    buffer_store_dword v11, v10, s[20:23], s41 offen sc1
    s_mov_b64 exec, -1
    s_lshl_b32 s41, s91, 8
    v_mov_b32 v12, s40
    v_mov_b32 v13, s41
    v_cmp_eq_u32 vcc, 1, {L}
    s_nop 1
    v_cndmask_b32 v12, v12, v13, vcc
    s_mov_b32 s39, {WS_FLAG-WS_BND+32}
    buffer_load_dwordx4 v[16:19], v12, s[20:23], s39 offen sc1
    buffer_load_dword v20, v12, s[20:23], s39 offen offset:16 sc1
    ''')
    flags_spin(A, 'a', 16, 12, 's_waitcnt vmcnt(0)')
    A.label('L_depok')
    A('s_barrier')
    st(2)
    emit(A, dma_tile(0))
    A(f'''
    s_add_u32 s36, s35, 4096
    s_add_u32 s37, s35, 8192
    s_add_u32 s38, s35, 12288
    s_lshl_b32 s39, s24, 10
    ''')
    for q in range(4):
        for s in range(4):
            A(f'buffer_load_dwordx4 {ar(QF+4*(q*4+s),4)}, {vr(T5)}, s[12:15], s{35+q} offen offset:{s*1024}{LDSC}')
    A(f'buffer_load_dwordx4 v[0:3], {vr(T5)}, s[20:23], s39 offen sc1')
    emit(A, dma_tile(1))
    A('s_waitcnt vmcnt(0)')
    A('s_barrier')
    emit(A, [op_kread(0, 0, s) for s in range(4)])
    A(f'''
    v_max3_f32 v0, v0, v1, v2
    v_max_f32 v0, v0, v3
    v_cmp_lt_f32 vcc, {hex(f32bits(THRESH))}, v0
    s_cbranch_vccnz L2_slow
    ''')
    pro = []
    dq = dma_tile(2)
    for n in range(16):
        kt = n // 4
        fill = []
        if n >= 2:
            fill = [[op_exp(n-2, 0)], [op_exp(n-2, 1)], [op_exp(n-2, 2)], [op_exp(n-2, 3), op_cvt(0, n-2, 0), op_cvt(0, n-2, 1)]]
        else:
            fill = [[], [], [], []]
        for s in range(4):
            pro.append(op_qk(n, s))
            pro += fill[s]
        ktn = kt + 1
        pro.append(op_kread(0 if ktn < 4 else 1, ktn % 4, n % 4))
        if n >= 12:
            pro += [op_vread(0, (n - 12) // 2, n % 2, x) for x in range(2)]
        if n < 8:
            while dq and dq[0].kind != 'vmem': pro.append(dq.pop(0))
            if dq: pro.append(dq.pop(0))
    pro += [op_exp(14, r) for r in range(4)] + [op_cvt(0, 14, 0), op_cvt(0, 14, 1)]
    pend0 = [(frozenset(regs('a', KF+4*s, 4)), -1) for s in range(4)]
    pro, pend = finalize(pro, pend0, 4)
    pend = [(w, -1) for w, _ in pend]
    it0, pend = finalize(build_iter(0, cfg, first_pv=True, dma=False), pend, 2)
    emit(A, fix_hazards(pro))
    st(3)
    full_check_issue(A, E8, E8+6)
    A('s_nop 3')
    emit(A, fix_hazards(it0))
    flags_spin(A, 'b', E8, E8+6, 's_waitcnt vmcnt(0)')
    emit(A, dma_tile(3) + dma_tile(4))
    table_loads(A)
    A('s_waitcnt lgkmcnt(0)')
    _, pend_ss = finalize(build_iter(3, cfg), [], 4)
    pend_ss = [(w, -1) for w, _ in pend_ss]
    US = cfg['use_soft']
    del SPINS[:]
    def sync_regs():
        A(f's_lshl_b32 s33, s26, 2')
        A(f's_add_u32 s33, s33, {SYNCB}')
        A(f'v_mov_b32 {vr(SWA)}, s33')
        A(f'v_mov_b32 {vr(SCNT)}, 0')
        A(f'v_and_b32 {vr(SRA)}, 3, {L}')
        A(f'v_lshlrev_b32 {vr(SRA)}, 2, {vr(SRA)}')
        A(f'v_add_u32 {vr(SRA)}, {SYNCB}, {vr(SRA)}')
    if US:
        sync_regs()
        A(f'ds_write_b32 {vr(SWA)}, {vr(SCNT)}')
        A('s_waitcnt lgkmcnt(0)')
    it1, _ = finalize(build_iter(1, cfg, dma=not US), [], 8)
    emit(A, fix_hazards(it1))
    A('s_waitcnt vmcnt(0)' if US else 's_waitcnt vmcnt(4)')
    list_scan(A, 'a')
    list_loads(A, 'a')
    if US:
        sync_regs()
        emit(A, sum(next_off(), []))
    A('s_mov_b32 s32, 9')
    A('s_cmp_eq_u32 s25, 4')
    A('s_cselect_b32 s83, 1, 0')
    A('s_branch L2_body0' if stamp != 2 else 's_mov_b32 s78, 99')
    A.label('L2_hook')
    if stamp == 2:
        A('s_cmp_eq_u32 s32, 9')
        A('s_cbranch_scc1 L2_head')
        A('s_mov_b32 s78, 0')
    list_writes(A, 'a')
    A(f'''
    s_sub_u32 s92, s8, 3072
    s_subb_u32 s93, s9, 0
    s_mov_b32 s94, {N*256+3072}
    s_mov_b32 s95, 0x20000
    s_mov_b32 s36, 3072
    s_mov_b32 s37, 2048
    s_mov_b32 s38, 1024
    ''')
    gi = g_issue_reads(0)
    for k in range(8): gi += g_issue_dma(k, 0)
    A('s_waitcnt lgkmcnt(0)')
    gi, _ = finalize(gi, [], 0)
    emit(A, gi)
    if not US:
        for k in range(4): A(f'buffer_load_dword {vr(T4)}, {vr(T3)}, s[8:11], 0 offen')
    A.raw('.p2align 6')
    A.label('L2_head')
    if stamp == 2:
        A('s_memrealtime s[96:97]')
        A('s_memtime s[98:99]')
        A('s_waitcnt lgkmcnt(0)')
        A(f'v_cmp_eq_u32 vcc, s32, {vr(LANE)}')
        for sreg, areg in ((96, 252), (98, 253)):
            A(f'v_mov_b32 {vr(T2)}, s{sreg}')
            A(f'v_accvgpr_read_b32 {vr(T3)}, a{areg}')
            A(f'v_cndmask_b32 {vr(T3)}, {vr(T3)}, {vr(T2)}, vcc')
            A(f'v_accvgpr_write_b32 a{areg}, {vr(T3)}')
    A('s_cmp_eq_u32 s32, 1')
    A('s_cbranch_scc1 L2_body0')
    A('s_cmp_lt_u32 s78, s3')
    if 'nog' not in flags: A('s_cbranch_scc1 L2_gbody')
    body = []
    for p in range(4):
        ops, pe = finalize(build_iter(p + 2, cfg, soft=(f'p{p}' if US else None)), pend_ss, 4)
        while pe and not pe[0][0]: pe = pe[1:]
        assert XF or [w for w, _ in pe] == [w for w, _ in pend_ss], (pe, pend_ss)
        body += ops
        if p == 2:
            A('s_cmp_eq_u32 s32, s83')
            A('s_cbranch_scc1 L2_post2')
        A.label(f'L2_body{p}')
        emit(A, ops)
    if not XF: fix_hazards(body + body, fix=False)
    A('s_sub_u32 s32, s32, 1')
    A('s_cmp_eq_u32 s32, 8')
    A('s_cbranch_scc1 L2_hook')
    A('s_cmp_lg_u32 s32, 0')
    A('s_cbranch_scc1 L2_head')
    A('s_branch L2_post')
    A.raw('.p2align 6')
    A.label('L2_gbody')
    gbody = []
    for p in range(4):
        ops, pe = finalize(build_iter(p + 2, cfg, g_issue=(128 * (p + 1), (p + 1) % 2), g_cons=(128 * p, p % 2, 12), soft=(f'g{p}' if US else None)), pend_ss, 12)
        while pe and not pe[0][0]: pe = pe[1:]
        assert XF or [w for w, _ in pe] == [w for w, _ in pend_ss], (pe, pend_ss)
        gbody += ops
        emit(A, ops)
        A('s_add_u32 s78, s78, 1')
        if p < 3:
            A('s_cmp_ge_u32 s78, s3')
            A(f's_cbranch_scc1 L2_body{p+1}')
    if not XF: fix_hazards(gbody + gbody, fix=False); fix_hazards(gbody + body, fix=False); fix_hazards(it1 + gbody, fix=False)
    A(f'v_add_u32 {vr(LPI)}, 512, {vr(LPI)}')
    A(f'v_add_u32 {vr(LPC)}, 512, {vr(LPC)}')
    A('s_sub_u32 s32, s32, 1')
    A('s_cmp_lg_u32 s32, 0')
    A('s_cbranch_scc1 L2_head')
    A.label('L2_post')
    if stamp == 2:
        A('s_memrealtime s[96:97]')
        A('s_memtime s[98:99]')
        A('s_waitcnt lgkmcnt(0)')
        A(f'v_cmp_eq_u32 vcc, s32, {vr(LANE)}')
        for sreg, areg in ((96, 252), (98, 253)):
            A(f'v_mov_b32 {vr(T2)}, s{sreg}')
            A(f'v_accvgpr_read_b32 {vr(T3)}, a{areg}')
            A(f'v_cndmask_b32 {vr(T3)}, {vr(T3)}, {vr(T2)}, vcc')
            A(f'v_accvgpr_write_b32 a{areg}, {vr(T3)}')
    def store_setup():
        srd(A, 12, 4, WS_W23, 65536)
        A('s_lshl_b32 s33, s26, 14')
        A(f'v_lshlrev_b32 {vr(T5)}, 4, {L}')
        A(f'''
        s_mul_i32 s40, s25, {784*4096}
        s_add_u32 s40, s40, s35
        s_add_u32 s41, s40, 4096
        s_add_u32 s42, s40, 8192
        s_add_u32 s43, s40, 12288
        ''')
    def store_ops(w, q):
        d = 128 + 4 * (w * 4 + q) if False else SBUF + 4 * ((w * 4 + q) % 8)
        ops = []
        for h in range(2):
            b = O(2 * w + h, q)
            ops.append(Op(f'v_cvt_pk_bf16_f32 {vr(d+2*h)}, {vr(b)}, {vr(b+1)}', 'valu', rd=regs('v', b, 2), wr=[('v', d+2*h)]))
            ops.append(Op(f'v_cvt_pk_bf16_f32 {vr(d+2*h+1)}, {vr(b+2)}, {vr(b+3)}', 'valu', rd=regs('v', b+2, 2), wr=[('v', d+2*h+1)]))
        ops.append(Op(f'buffer_store_dwordx4 {vr(d,4)}, {vr(T5)}, s[16:19], s{40+q} offen offset:{w*1024}{TSC}', 'vmem'))
        return ops
    def lm_stores():
        A(f'''
        v_and_b32 {vr(T4)}, 15, {L}
        v_lshlrev_b32 {vr(T4)}, 3, {vr(T4)}
        s_mul_i32 s36, s25, {NPAD*8}
        s_lshl_b32 s37, s34, 7
        s_add_u32 s36, s36, s37
        s_add_u32 s36, s36, {WS_L-WS_BND}
        ''')
        for q in range(4):
            A(f'v_mov_b32 {vr(O(7,q)+2)}, {vr(O(7,q)+3)}')
            A(f'v_mov_b32 {vr(O(7,q)+3)}, {vr(T0+q)}')
        A('s_mov_b32 exec_lo, 0')
        A('s_mov_b32 exec_hi, 0xffff0000')
        for q in range(4):
            A(f'buffer_store_dwordx2 {vr(O(7,q)+2,2)}, {vr(T4)}, s[20:23], s36 offen offset:{128*q}{TSC}')
        A('s_mov_b64 exec, -1')
    def issue_ops(off, buf):
        ops = g_issue_reads(off)
        for k in range(8): ops += g_issue_dma(k, buf)
        return ops
    def consume_ops(off, buf, vm):
        ops = g_sel1(off) + g_sel2() + g_sel3()
        if vm is not None: ops.append(op_s(f's_waitcnt vmcnt({vm})'))
        ops += [g_tr(dt, x, buf) for dt in range(8) for x in range(2)] + [g_mfma(dt) for dt in range(8)]
        return ops
    def emit_g(ops):
        ops, pe = finalize(ops, [], 0)
        emit(A, fix_hazards(ops))
    def set_ptrs():
        A(f'''
        s_lshl_b32 s33, s78, 7
        s_add_u32 s33, s33, s73
        v_lshrrev_b32 {vr(LPI)}, 4, {L}
        v_lshl_add_u32 {vr(LPI)}, {vr(LPI)}, 2, s33
        v_and_b32 {vr(LPC)}, 31, {L}
        v_lshl_add_u32 {vr(LPC)}, {vr(LPC)}, 2, s33
        ''')
    def post(i0):
        set_ptrs()
        store_setup()
        it38, pe = finalize(build_iter(i0, cfg, nqk=8, next_k=False, next_v_us=(0,), bar=False, dma=False, g_issue=(128, 1)), pend_ss, 4)
        last, _ = finalize(build_iter(i0 + 1, cfg, nqk=0, pv_us=(0,), next_k=False, next_v_us=(), bar=False, dma=False, prev_tile=None), pe, 4)
        lastb = []
        nm = 0
        pendst = [(w, q) for w in range(3) for q in range(4)]
        for o in last:
            lastb.append(o)
            if o.kind == 'mfma':
                nm += 1
                if pendst and nm >= 8 * (pendst[0][0] + 1) + 2 and nm % 2 == 0:
                    lastb += store_ops(*pendst.pop(0))
        rest = []
        for wq in pendst + [(3, q) for q in range(4)]:
            rest += store_ops(*wq)
        emit(A, fix_hazards(body[-40:] + it38 + lastb + rest)[40:])
        st(4)
        A(f'v_mov_b32 {vr(T0)}, 0\nv_mov_b32 {vr(T1)}, 0\nv_mov_b32 {vr(T2)}, 0\nv_mov_b32 {vr(T3)}, 0')
    post(38)
    A('s_branch L2_lm')
    A.label('L2_post2')
    post(36)
    A('s_branch L2_lm')
    def generic_loop(tag, bound_sreg):
        A.label(f'L2_left{tag}')
        A(f's_cmp_ge_u32 s78, s{bound_sreg}')
        A(f's_cbranch_scc1 L2_leftdone{tag}')
        emit_g(issue_ops(0, 0) + consume_ops(0, 0, 0))
        A(f'v_add_u32 {vr(LPI)}, 128, {vr(LPI)}')
        A(f'v_add_u32 {vr(LPC)}, 128, {vr(LPC)}')
        A('s_add_u32 s78, s78, 1')
        A(f's_branch L2_left{tag}')
        A.label(f'L2_leftdone{tag}')
    A.label('L2_store')
    generic_loop('s', 3)
    emit_g(issue_ops(0, 0) + issue_ops(128, 1))
    store_setup()
    allst = []
    for w in range(4):
        for q in range(4): allst += store_ops(w, q)
    emit(A, allst)
    A.label('L2_lm')
    lm_stores()
    emit_g(consume_ops(0, 0, 20) + consume_ops(128, 1, None))
    A('s_waitcnt vmcnt(0)')
    A('s_barrier')
    st(5)
    A(f'''
    s_lshl_b32 s40, s24, 8
    s_add_u32 s40, s40, {WS_FLAG-WS_BND+FOFF}
    s_cmp_lg_u32 s26, 0
    s_cbranch_scc1 L2_noflag
    s_lshl_b32 s41, s25, 2
    v_mov_b32 {vr(T0)}, s41
    v_mov_b32 {vr(T1)}, 1
    s_mov_b64 exec, 1
    buffer_store_dword {vr(T1)}, {vr(T0)}, s[20:23], s40 offen{FSC}
    s_mov_b64 exec, -1
    ''')
    A.label('L2_noflag')
    A('s_cmp_eq_u32 s82, 1')
    A('s_cbranch_scc1 L2_owner')
    for ops in w23_dma_ops(): emit(A, ops)
    A('s_waitcnt vmcnt(0)')
    A('s_barrier')
    A('s_branch L2_exit')
    A.label('L2_owner')
    if RT == 4: emit_g(issue_ops(256, 0) + issue_ops(384, 1))
    A(f'''
    v_min_u32 v8, 4, {L}
    v_lshlrev_b32 v8, 2, v8
    buffer_load_dword v9, v8, s[20:23], s40 offen sc1
    ''')
    X, DI = 106, 122
    srd(A, 68, 6, 0, N*256)
    srd(A, 88, 84, 0, N*2)
    srd(A, 92, 86, 0, N*256)
    A(f'''
    s_lshl_b32 s36, s72, 12
    v_and_b32 v1, 15, {L}
    v_lshrrev_b32 v2, 4, {L}
    v_lshlrev_b32 v6, 8, v1
    v_lshl_add_u32 v6, v2, 4, v6
    v_lshlrev_b32 v7, 1, v1
    s_lshl_b32 s37, s72, 5
    ''')
    A(f'buffer_load_ushort {vr(DI)}, v7, s[88:91], s37 offen')
    for ops in w23_dma_ops(): emit(A, ops)
    for w in range(4):
        A(f'buffer_load_dwordx4 {vr(X+4*w,4)}, v6, s[68:71], s36 offen offset:{w*64}')
    BF = 128
    HV = 176
    OPR, LM = 16, 96
    YR = [160, 164, 168, 172, 208, 212, 216, 124]
    WB = [0, 32]
    def part_loads():
        st(6)
        A(f's_lshl_b32 s38, s72, 7')
        A('s_lshl_b32 s36, s72, 12')
        for s in range(5):
            A(f's_add_u32 s39, s38, {s*NPAD*8+WS_L-WS_BND}')
            A(f'buffer_load_dwordx2 {vr(LM+2*s,2)}, v5, s[20:23], s39 offen sc1')
        for s in range(5):
            if s > 0: A(f's_add_u32 s39, s36, {s*784*4096}')
            for w in range(4):
                A(f'buffer_load_dwordx4 {vr(OPR+16*s+4*w,4)}, {vr(T5)}, s[16:19], s{36 if s == 0 else 39} offen offset:{w*1024} sc1')
        A('s_mov_b32 s83, 1')
    def poll(): A('buffer_load_dword v9, v8, s[20:23], s40 offen sc1')
    def check(tag):
        if tag == 1:
            A('s_waitcnt vmcnt(25)')
            A('s_cmp_eq_u32 s83, 1')
            A(f's_cbranch_scc1 L2_ck{tag}')
        A('s_waitcnt vmcnt(0)' if tag == 1 else 's_waitcnt vmcnt(20)')
        A('v_cmp_ne_u32 vcc, 1, v9')
        A(f's_cbranch_vccz L2_ckgo{tag}')
        poll()
        A(f's_branch L2_ck{tag}')
        A.label(f'L2_ckgo{tag}')
        part_loads()
        A.label(f'L2_ck{tag}')
    def gemm_half(k0, first):
        def wreads(p):
            for e in range(2):
                for ks in range(4):
                    A(f'ds_read_b128 {ar(WB[p%2]+16*e+4*ks,4)}, {vr(T5)} offset:{((2*p+e)*8+k0+ks)*1024}')
        if first: wreads(0)
        for p in range(4):
            if p < 3: wreads(p + 1)
            A(f's_waitcnt lgkmcnt({8 if p < 3 else 0})')
            for e in range(2):
                y = YR[2*p+e]
                for ks in range(4):
                    c = '0' if (first and ks == 0) else vr(y, 4)
                    A(f'v_mfma_f32_16x16x32_bf16 {vr(y,4)}, {ar(WB[p%2]+16*e+4*ks,4)}, {vr(BF+4*(k0+ks),4)}, {c}')
        return wreads
    A(f'''
    v_lshlrev_b32 v5, 3, v1
    s_mov_b32 s83, 0
    ''')
    if RT == 4:
        check(0)
        emit_g(consume_ops(256, 0, None) + consume_ops(384, 1, None))
    else:
        A('s_waitcnt vmcnt(20)')
    A.label('L2_more')
    A(f'''
    v_or3_b32 {vr(T0)}, {vr(TW[0])}, {vr(TW[1])}, {vr(TW[2])}
    v_or_b32 {vr(T0)}, {vr(T0)}, {vr(TW[3])}
    v_lshrrev_b32 {vr(T0)}, 16, {vr(T0)}
    v_cmp_ne_u32 vcc, 0, {vr(T0)}
    s_cbranch_vccz L2_nomore
    ''')
    list_scan(A, 'b')
    list_loads(A, 'b')
    A('s_waitcnt vmcnt(0)')
    list_writes(A, 'b')
    generic_loop('b', 77)
    A('s_branch L2_more')
    A.label('L2_nomore')
    A(f'v_lshlrev_b32 {vr(DI)}, 16, {vr(DI)}')
    A('s_nop 3')
    for k in range(32):
        A(f'v_accvgpr_read_b32 {vr(HV+k)}, {ar(HS+k)}')
    for k in range(32):
        A(f'v_mul_f32 {vr(HV+k)}, {vr(HV+k)}, {vr(DI)}')
    for k in range(16):
        A(f'v_cvt_pk_bf16_f32 {vr(BF+16+k)}, {vr(HV+2*k)}, {vr(HV+2*k+1)}')
    check(1)
    A('s_barrier')
    gemm_half(4, True)
    A('s_cmp_eq_u32 s83, 1')
    A('s_cbranch_scc1 L2_comb')
    A(f's_mov_b32 s42, {SPINB}')
    A.label('L2_spin')
    A(f'''
    s_waitcnt vmcnt(0)
    v_cmp_ne_u32 vcc, 1, v9
    s_cbranch_vccz L2_go
    s_sub_u32 s42, s42, 1
    s_cmp_eq_u32 s42, 0
    s_cbranch_scc1 L2_go
    s_sleep 1
    ''')
    poll()
    A('s_branch L2_spin')
    A.label('L2_go')
    part_loads()
    A.label('L2_comb')
    for e in range(2):
        for ks in range(4):
            A(f'ds_read_b128 {ar(WB[0]+16*e+4*ks,4)}, {vr(T5)} offset:{(e*8+ks)*1024}')
    A('s_lshl_b32 s36, s72, 12')
    LL = [LM + 2 * s for s in range(5)]
    MM = [LM + 2 * s + 1 for s in range(5)]
    A('s_waitcnt vmcnt(20)')
    A(f'v_max3_f32 v7, {vr(MM[0])}, {vr(MM[1])}, {vr(MM[2])}')
    A(f'v_max3_f32 v7, v7, {vr(MM[3])}, {vr(MM[4])}')
    for s in range(5): A(f'v_sub_f32 {vr(MM[s])}, {vr(MM[s])}, v7')
    for s in range(5): A(f'v_exp_f32 {vr(MM[s])}, {vr(MM[s])}')
    A('s_nop 0')
    A(f'v_mul_f32 v7, {vr(MM[0])}, {vr(LL[0])}')
    for s in range(1, 5): A(f'v_fmac_f32 v7, {vr(MM[s])}, {vr(LL[s])}')
    A('v_rcp_f32 v7, v7')
    for s in range(5):
        A(f'v_lshrrev_b32 {vr(LL[s])}, 16, {vr(MM[s])}')
        A(f'v_and_b32 {vr(MM[s])}, 0xffff0000, {vr(MM[s])}')
    G = 176
    for s in range(5):
        A(f's_waitcnt vmcnt({16-4*s})')
        for k in range(16):
            src = OPR + 16 * s + k
            c0 = '0' if s == 0 else vr(G + 2 * k)
            c1 = '0' if s == 0 else vr(G + 2 * k + 1)
            A(f'v_dot2_f32_bf16 {vr(G+2*k)}, {vr(src)}, {vr(LL[s])}, {c0}')
            A(f'v_dot2_f32_bf16 {vr(G+2*k+1)}, {vr(src)}, {vr(MM[s])}, {c1}')
    st(7)
    A('s_nop 2')
    for k in range(32): A(f'v_mul_f32 {vr(G+k)}, {vr(G+k)}, v7')
    for k in range(16): A(f'v_cvt_pk_bf16_f32 {vr(BF+k)}, {vr(G+2*k)}, {vr(G+2*k+1)}')
    gemm_half(0, False)
    A('s_nop 7')
    for w in range(4):
        for i in range(4):
            xr = X + 4 * w + i
            y = YR[2 * w + i // 2] + 2 * (i % 2)
            A(f'v_lshlrev_b32 v7, 16, {vr(xr)}')
            A(f'v_and_b32 v8, 0xffff0000, {vr(xr)}')
            A(f'v_add_f32 v7, v7, {vr(y)}')
            A(f'v_add_f32 v8, v8, {vr(y+1)}')
            A(f'v_cvt_pk_bf16_f32 {vr(xr)}, v7, v8')
        A(f'buffer_store_dwordx4 {vr(X+4*w,4)}, v6, s[92:95], s36 offen offset:{w*64}{OUTSC}')
    A.label('L2_exit')
    if stamp:
        A('s_waitcnt vmcnt(0)')
        st(8)
        A('s_waitcnt lgkmcnt(0)')
        for i in range(10): A(f'v_mov_b32 {vr(i)}, s{44+2*i}')
        A(f's_lshl_b32 s40, s2, 2')
        A(f's_add_u32 s40, s40, s26')
        A(f's_lshl_b32 s40, s40, 6')
        A(f's_add_u32 s40, s40, {WS_STAMP-WS_BND}')
        A(f's_mov_b32 s22, 0x7fffffff')
        if stamp == 2:
            A(f's_lshl_b32 s41, s2, 2')
            A(f's_add_u32 s41, s41, s26')
            A(f's_lshl_b32 s41, s41, 7')
            A(f's_add_u32 s41, s41, {WS_STAMP-WS_BND+0x80000}')
            A(f'v_lshlrev_b32 v20, 2, {vr(LANE)}')
            A(f's_mov_b64 exec, 0xffff')
            A(f'buffer_store_dword a252, v20, s[20:23], s41 offen')
            A(f'buffer_store_dword a253, v20, s[20:23], s41 offen offset:64')
            A(f's_mov_b64 exec, -1')
        A(f'v_mov_b32 v20, 0')
        A(f'v_mov_b32 v10, s82')
        A(f'v_mov_b32 v11, s77')
        A(f's_mov_b64 exec, 1')
        for i in range(3):
            A(f'buffer_store_dwordx4 v[{4*i}:{4*i+3}], v20, s[20:23], s40 offen offset:{16*i}')
    if stamp == 3:
        A('s_mov_b64 exec, -1')
        srd(A, 96, 100, 0, 256)
        A('s_cmp_lg_u32 s26, 0')
        A('s_cbranch_scc1 L2_done')
        A('s_mov_b32 s40, 0x1000')
        for i, w in enumerate((16, 20, 23)):
            A(f's_cmp_eq_u32 s2, {w}')
            A(f's_cselect_b32 s40, {16+16*i}, s40')
        A('v_mov_b32 v0, s44\nv_mov_b32 v1, s50\nv_mov_b32 v2, s52\nv_mov_b32 v3, s60\nv_mov_b32 v20, 0')
        A('s_mov_b64 exec, 1')
        A('buffer_store_dwordx4 v[0:3], v20, s[96:99], s40 offen')
    A.label('L2_done')
    A('s_endpgm')
    for nm in SPINS:
        A.label(f'L2_sp{nm}')
        A('s_mov_b32 s41, 0x40000')
        A.label(f'L2_spl{nm}')
        A(f'''
        {SPSLEEP}
        ds_read_b32 {vr(SRD_)}, {vr(SRA)}
        s_sub_u32 s41, s41, 1
        s_cmp_eq_u32 s41, 0
        s_cbranch_scc1 L2_spr{nm}
        s_waitcnt lgkmcnt(0)
        v_cmp_lt_u32 vcc, {vr(SRD_)}, {vr(SCNT)}
        s_cbranch_vccnz L2_spl{nm}
        s_branch L2_spr{nm}
        ''')
    gen_slow(A)
    phase_a.helpers(A)

def gen_slow(A):
    L = vr(LANE)
    A.label('L2_slow')
    full_check_issue(A, E8, E8+6)
    flags_spin(A, 's', E8, E8+6, 's_waitcnt vmcnt(0) lgkmcnt(0)')
    table_loads(A)
    A('s_waitcnt vmcnt(0)')
    list_scan(A, 's')
    list_loads(A, 's')
    A('s_waitcnt vmcnt(0)')
    list_writes(A, 's')
    MX = [T0, T1, T2, T3]
    for q in range(4): A(f'v_mov_b32 {vr(MX[q])}, 0xf149f2ca')
    for r in range(128): A(f'v_mov_b32 {vr(r)}, 0')
    A(f'''
    s_mul_i32 s27, s25, {SPLITB}
    s_mul_i32 s40, s25, {79*32}
    s_add_u32 s41, s40, {79*32}
    s_min_u32 s41, s41, {N}
    v_lshrrev_b32 {vr(T4)}, 4, {L}
    v_lshlrev_b32 {vr(T4)}, 2, {vr(T4)}
    v_add_u32 {vr(T4)}, s40, {vr(T4)}
    s_mov_b32 s32, 40
    v_mov_b32 {vr(T5)}, 0xff800000
    ''')
    def S(kt, q): return 128 + 8 * ((kt // 2) * 4 + q) + 4 * (kt % 2)
    A.label('L2_sloop')
    A('s_barrier')
    A('s_mov_b32 m0, s28')
    A('s_nop 0')
    for k in range(4): A(op_dma(k).text)
    A('s_add_u32 s27, s27, 16384')
    A('s_waitcnt vmcnt(0)')
    A('s_barrier')
    for kt in range(4):
        for s in range(4):
            A(f'ds_read_b128 {ar(KF+4*s,4)}, {vr(KADDR+s)} offset:{kt*4096}')
        A('s_waitcnt lgkmcnt(0)')
        for q in range(4):
            for s in range(4):
                d = S(kt, q)
                A(f'v_mfma_f32_16x16x32_bf16 {vr(d,4)}, {ar(KF+4*s,4)}, {ar(QF+4*(q*4+s),4)}, {"0" if s == 0 else vr(d,4)}')
    A('s_nop 7')
    for kt in range(4):
        for r in range(4):
            A(f'v_add_u32 {vr(192)}, {16*kt+r}, {vr(T4)}')
            A(f'v_cmp_gt_u32 vcc, s41, {vr(192)}')
            A('s_nop 1')
            for q in range(4):
                A(f'v_cndmask_b32 {vr(S(kt,q)+r)}, {vr(T5)}, {vr(S(kt,q)+r)}, vcc')
    A(f'v_add_u32 {vr(T4)}, 64, {vr(T4)}')
    a, b, al = 192, 193, 194
    for q in range(4):
        vals = [S(kt, q) + r for kt in range(4) for r in range(4)]
        A(f'v_max_f32 {vr(a)}, {vr(vals[0])}, {vr(vals[1])}')
        for k in range(2, 16, 2):
            A(f'v_max3_f32 {vr(a)}, {vr(a)}, {vr(vals[k])}, {vr(vals[k+1])}')
        A(f'''
        v_mov_b32 {vr(b)}, {vr(a)}
        s_nop 1
        v_permlane16_swap_b32 {vr(a)}, {vr(b)}
        v_max_f32 {vr(a)}, {vr(a)}, {vr(b)}
        v_mov_b32 {vr(b)}, {vr(a)}
        s_nop 1
        v_permlane32_swap_b32 {vr(a)}, {vr(b)}
        v_max_f32 {vr(a)}, {vr(a)}, {vr(b)}
        v_ceil_f32 {vr(a)}, {vr(a)}
        v_max_f32 {vr(a)}, {vr(a)}, {vr(MX[q])}
        v_sub_f32 {vr(al)}, {vr(MX[q])}, {vr(a)}
        v_exp_f32 {vr(al)}, {vr(al)}
        v_mov_b32 {vr(MX[q])}, {vr(a)}
        ''')
        for v in vals:
            A(f'v_sub_f32 {vr(v)}, {vr(v)}, {vr(a)}')
        for v in vals:
            A(f'v_exp_f32 {vr(v)}, {vr(v)}')
        for dt in range(8):
            for r in range(4):
                A(f'v_mul_f32 {vr(O(dt,q)+r)}, {vr(O(dt,q)+r)}, {vr(al)}')
        for u in range(2):
            base = S(2 * u, q)
            for i in range(4):
                A(f'v_cvt_pk_bf16_f32 {vr(base+i)}, {vr(base+2*i)}, {vr(base+2*i+1)}')
    for dt in range(8):
        for u in range(2):
            for x in range(2):
                A(f'ds_read_b64_tr_b16 {ar(VF+4*u+2*x,2)}, {vr(VADDR+dt)} offset:{u*8192+x*4096}')
        A('s_waitcnt lgkmcnt(0)')
        for q in range(4):
            for u in range(2):
                A(f'v_mfma_f32_16x16x32_bf16 {vr(O(dt,q),4)}, {ar(VF+4*u,4)}, {vr(S(2*u,q),4)}, {vr(O(dt,q),4)}')
    A('s_nop 7')
    A('s_sub_u32 s32, s32, 1')
    A('s_cmp_lg_u32 s32, 0')
    A('s_cbranch_scc1 L2_sloop')
    A('s_branch L2_store')
```

```python
from asmlib import *
from layout import *
from k1 import srd, red_g, bcast_g3, wave_scan_incl, f32bits, BETA, CSC
import math

def weights_dma(A, swave, srd0, srd1, par1):
    A(f'''
    v_lshlrev_b32 v5, 1, v3
    v_xor_b32 v5, v5, v2
    v_lshlrev_b32 v5, 4, v5
    v_lshl_add_u32 v5, v3, 8, v5
    v_xor_b32 v6, 0x80, v5
    s_lshl_b32 s36, s{swave}, 13
    s_add_u32 s37, s36, 4096
    ''')
    for mat, sd in enumerate((srd0, srd1)):
        for half in range(2):
            A(f's_add_u32 m0, s{36+half}, {mat*32768}')
            A('s_nop 0')
            for ii in range(4):
                sel = (ii >> 1) if mat == 0 else par1(ii)
                A(f'buffer_load_dwordx4 {"v6" if sel else "v5"}, s[{sd}:{sd+3}], s{36+half} offen offset:{ii*1024} lds')

def owner_x_loads(A):
    A('s_lshl_b32 s38, s72, 12')
    A('v_lshlrev_b32 v4, 8, v2')
    A('v_lshl_add_u32 v4, v3, 4, v4')
    for s in range(4):
        A(f'buffer_load_dwordx4 {vr(8+4*s,4)}, v4, s[68:71], s38 offen offset:{64*s}')

def owner_compute(A, st):
    X = 8; F = 32; S, T = 24, 25
    A('s_waitcnt vmcnt(16)')
    for k in range(16):
        A(f'v_lshlrev_b32 {vr(F+2*k)}, 16, {vr(X+k)}')
        A(f'v_and_b32 {vr(F+2*k+1)}, 0xffff0000, {vr(X+k)}')
    def sum32(base, sq=False):
        if sq:
            A(f'v_mul_f32 {vr(S)}, {vr(base)}, {vr(base)}')
            A(f'v_mul_f32 {vr(26)}, {vr(base+1)}, {vr(base+1)}')
            for k in range(2, 32, 2):
                A(f'v_fmac_f32 {vr(S)}, {vr(base+k)}, {vr(base+k)}')
                A(f'v_fmac_f32 {vr(26)}, {vr(base+k+1)}, {vr(base+k+1)}')
        else:
            A(f'v_add_f32 {vr(S)}, {vr(base)}, {vr(base+1)}')
            A(f'v_add_f32 {vr(26)}, {vr(base+2)}, {vr(base+3)}')
            for k in range(4, 32, 2):
                A(f'v_add_f32 {vr(S)}, {vr(S)}, {vr(base+k)}')
                A(f'v_add_f32 {vr(26)}, {vr(26)}, {vr(base+k+1)}')
        A(f'v_add_f32 {vr(S)}, {vr(S)}, {vr(26)}')
        red_g(A, S, T)
    sum32(F)
    A(f'v_mul_f32 {vr(S)}, {hex(f32bits(1/128))}, {vr(S)}')
    for k in range(32): A(f'v_sub_f32 {vr(F+k)}, {vr(F+k)}, {vr(S)}')
    sum32(F, True)
    A(f'v_mov_b32 {vr(T)}, {hex(f32bits(1e-5))}')
    A(f'v_fmac_f32 {vr(T)}, {hex(f32bits(1/128))}, {vr(S)}')
    A(f'v_rsq_f32 {vr(S)}, {vr(T)}')
    A('s_nop 0')
    for k in range(32): A(f'v_mul_f32 {vr(F+k)}, {vr(F+k)}, {vr(S)}')
    HB = 8
    for k in range(16): A(f'v_cvt_pk_bf16_f32 {vr(HB+k)}, {vr(F+2*k)}, {vr(F+2*k+1)}')
    bcast_g3(A, S, F+31, T)
    A(f'v_mul_f32 {vr(S)}, {hex(f32bits(BETA))}, {vr(S)}')
    for k in range(32): A(f'v_add_f32 {vr(F+k)}, {vr(F+k)}, {vr(S)}')
    A(f'v_cmp_eq_u32 vcc, 3, v3')
    A('s_nop 1')
    A(f'v_cndmask_b32 {vr(F+31)}, {vr(F+31)}, 1.0, vcc')
    H = 64
    for k in range(16): A(f'v_cvt_pk_bf16_f32 {vr(H+k)}, {vr(F+2*k)}, {vr(F+2*k+1)}')
    A('''
    v_and_b32 v26, 7, v2
    v_lshlrev_b32 v26, 1, v26
    v_xor_b32 v26, v26, v3
    v_lshlrev_b32 v27, 8, v2
    ''')
    for s in range(4):
        A(f'v_xor_b32 v28, {4*s}, v26')
        A(f'v_lshl_add_u32 {vr(80+s)}, v28, 4, v27')
        A(f'buffer_store_dwordx4 {vr(H+4*s,4)}, {vr(80+s)}, s[8:11], s38 offen sc1')
    A('''
    v_bfe_u32 v26, v0, 2, 2
    v_and_b32 v27, 1, v3
    v_lshl_add_u32 v27, v27, 2, v26
    v_lshlrev_b32 v27, 1, v27
    v_and_b32 v28, 3, v0
    v_xor_b32 v27, v27, v28
    v_lshl_add_u32 v26, v3, 3, v26
    v_lshlrev_b32 v26, 8, v26
    ''')
    TA_ = 84
    for w in range(4):
        A(f'v_xor_b32 v28, {4*w}, v27')
        A(f'v_lshl_add_u32 {vr(TA_+w)}, v28, 4, v26')
    A('''
    v_lshrrev_b32 v26, 2, v2
    v_lshlrev_b32 v26, 3, v26
    v_and_b32 v28, 3, v2
    v_add_u32 v26, v26, v28
    v_lshlrev_b32 v26, 8, v26
    v_and_b32 v27, 7, v2
    v_lshlrev_b32 v27, 1, v27
    v_xor_b32 v27, v27, v3
    ''')
    TB_ = 88
    for w in range(4):
        A(f'v_xor_b32 v28, {4*w}, v27')
        A(f'v_lshl_add_u32 {vr(TB_+w)}, v28, 4, v26')
    A('s_waitcnt vmcnt(4)')
    A('s_barrier')
    AC = 96; AF = 0
    def g1_reads(et):
        for s in range(4):
            for x in range(2):
                A(f'ds_read_b64_tr_b16 {ar(AF+16*et+4*s+2*x,2)}, {vr(TA_+et//2)} offset:{s*8192+x*1024+8*(et%2)}')
    g1_reads(0); g1_reads(1)
    for et in range(8):
        A(f's_waitcnt lgkmcnt({8 if et < 7 else 0})')
        for s in range(4):
            c = '0' if s == 0 else vr(AC+4*et, 4)
            A(f'v_mfma_f32_16x16x32_bf16 {vr(AC+4*et,4)}, {ar(AF+16*et+4*s,4)}, {vr(HB+4*s,4)}, {c}')
        if et + 2 < 8: g1_reads(et + 2)
    def g2_reads(dt):
        for w in range(4):
            A(f'ds_read_b128 {ar(AF+16*dt+4*w,4)}, {vr(TB_+w)} offset:{32768+(dt//2)*8192+(dt%2)*1024}')
    g2_reads(0); g2_reads(1); g2_reads(2)
    QB = 8
    for w in range(4):
        for h in range(2):
            b = AC + 4 * (2 * w + h)
            A(f'v_cvt_pk_bf16_f32 {vr(QB+4*w+2*h)}, {vr(b)}, {vr(b+1)}')
            A(f'v_cvt_pk_bf16_f32 {vr(QB+4*w+2*h+1)}, {vr(b+2)}, {vr(b+3)}')
    TC = 32
    A('s_nop 1')
    for dt in range(8):
        rem = min(2, 7 - dt)
        A(f's_waitcnt lgkmcnt({4*rem})')
        for w in range(4):
            c = '0' if w == 0 else vr(TC+4*dt, 4)
            A(f'v_mfma_f32_16x16x32_bf16 {vr(TC+4*dt,4)}, {ar(AF+16*dt+4*w,4)}, {vr(QB+4*w,4)}, {c}')
        if dt + 3 < 8: g2_reads(dt + 3)
    A('s_nop 7')
    sum32(TC)
    bcast_g3(A, 26, TC+31, T)
    A(f'v_mul_f32 {vr(S)}, {hex(f32bits(1/math.sqrt(128)))}, {vr(S)}')
    A(f'v_sub_f32 {vr(S)}, {vr(26)}, {vr(S)}')
    A(f'v_mul_f32 {vr(S)}, {hex(f32bits(BETA*CSC))}, {vr(S)}')
    A(f's_mov_b32 s33, {hex(f32bits(CSC))}')
    for k in range(32): A(f'v_fma_f32 {vr(TC+k)}, {vr(TC+k)}, s33, {vr(S)}')
    A(f'v_cndmask_b32 {vr(TC+31)}, {vr(TC+31)}, 0, vcc')
    A(f'v_lshlrev_b32 v27, 4, v0')
    for w in range(4):
        for i in range(4):
            A(f'v_cvt_pk_bf16_f32 {vr(8+4*w+i)}, {vr(TC+8*w+2*i)}, {vr(TC+8*w+2*i+1)}')
        A(f'buffer_store_dwordx4 {vr(8+4*w,4)}, v27, s[12:15], s38 offen offset:{w*1024} sc1')
    sum32(TC, True)
    A('''
    s_lshl_b32 s33, s72, 6
    v_lshlrev_b32 v27, 2, v2
    s_mov_b64 exec, 0xffff
    ''')
    A(f'buffer_store_dword {vr(S)}, v27, s[20:23], s33 offen sc1')
    A('s_mov_b64 exec, -1')

def bin_wave(A, dma_fn):
    D, SR, RK, BA = 8, 40, 72, 104
    A('''
    s_lshl_b32 s38, s24, 2
    s_add_u32 s38, s38, s25         ; chunk
    s_lshl_b32 s39, s38, 13
    s_add_u32 s40, s39, 4096
    v_lshlrev_b32 v1, 4, v0
    ''')
    for k in range(8):
        A(f'buffer_load_dwordx4 {vr(D+4*k,4)}, v1, s[16:19], s{39 + k//4} offen offset:{(k%4)*1024}')
    dma_fn()
    for k in range(8):
        A(f'buffer_load_dwordx4 {vr(SR+4*k,4)}, v1, s[12:15], s{39 + k//4} offen offset:{(k%4)*1024}')
    A('''
    v_add_u32 v4, s73, v1
    v_mov_b32 v136, 0
    v_mov_b32 v137, 0
    v_mov_b32 v138, 0
    v_mov_b32 v139, 0
    v_mov_b32 v7, 1
    v_add_u32 v140, s39, v1
    v_mov_b32 v141, 16000
    ''')
    for j in range(4): A(f'ds_write_b128 v4, v[136:139] offset:{j*1024}')
    for k in range(8):
        A(f's_waitcnt vmcnt({31-k})')
        A(f'v_cmp_gt_u32 vcc, {E*4 - k*1024}, v140')
        A('s_nop 1')
        for j in range(4):
            n = 4 * k + j
            A(f'v_cndmask_b32 {vr(D+n)}, v141, {vr(D+n)}, vcc')
            A(f'v_lshrrev_b32 {vr(BA+n)}, 4, {vr(D+n)}')
            A(f'v_lshl_add_u32 {vr(BA+n)}, {vr(BA+n)}, 2, s73')
            A(f'ds_add_rtn_u32 {vr(RK+n)}, {vr(BA+n)}, v7')
    A('s_waitcnt vmcnt(8)')
    A('s_barrier')
    HV = 144
    for j in range(4): A(f'ds_read_b128 {vr(HV+4*j,4)}, v4 offset:{j*1024}')
    A('s_waitcnt vmcnt(0)')
    for n in range(32):
        A(f'v_and_b32 v5, 7, {vr(SR+n)}')
        A(f'v_lshlrev_b32 {vr(SR+n)}, 8, {vr(SR+n)}')
        A(f'v_lshl_or_b32 {vr(SR+n)}, v5, 5, {vr(SR+n)}')
        A(f'v_and_or_b32 {vr(SR+n)}, {vr(D+n)}, 15, {vr(SR+n)}')
    A('s_waitcnt lgkmcnt(0)')
    ST = 160
    A(f'v_mov_b32 {vr(ST)}, 0')
    for i in range(1, 16): A(f'v_add_u32 {vr(ST+i)}, {vr(ST+i-1)}, {vr(HV+i-1)}')
    A(f'v_add_u32 v5, {vr(ST+15)}, {vr(HV+15)}')
    A('v_mov_b32 v6, v5')
    wave_scan_incl(A, 6)
    A('v_sub_u32 v6, v6, v5')
    for i in range(16): A(f'v_add_u32 {vr(ST+i)}, {vr(ST+i)}, v6')
    for j in range(4): A(f'ds_write_b128 v4, {vr(ST+4*j,4)} offset:{j*1024}')
    for n in range(32): A(f'ds_read_b32 {vr(BA+n)}, {vr(BA+n)}')
    for i in range(16): A(f'v_lshl_or_b32 {vr(HV+i)}, {vr(HV+i)}, 16, {vr(ST+i)}')
    A(f's_mul_i32 s33, s38, {NBIN*4}')
    for j in range(3): A(f'buffer_store_dwordx4 {vr(HV+4*j,4)}, v1, s[68:71], s33 offen offset:{j*1024} sc1')
    A('s_mov_b64 exec, 15')
    A(f'buffer_store_dwordx4 {vr(HV+12,4)}, v1, s[68:71], s33 offen offset:3072 sc1')
    A('s_mov_b64 exec, -1')
    A('s_waitcnt lgkmcnt(0)')
    for n in range(32):
        A(f'v_add_u32 {vr(BA+n)}, {vr(BA+n)}, {vr(RK+n)}')
        A(f'v_lshl_add_u32 {vr(BA+n)}, {vr(BA+n)}, 2, s73')
        A(f'ds_write_b32 {vr(BA+n)}, {vr(SR+n)} offset:4096')
    for k in range(8): A(f'ds_read_b128 {vr(D+4*k,4)}, v4 offset:{4096+1024*k}')
    for k in range(8):
        A(f's_waitcnt lgkmcnt({7-k})')
        A(f'buffer_store_dwordx4 {vr(D+4*k,4)}, v1, s[64:67], s{39 + k//4} offen offset:{(k%4)*1024} sc1')

def ready_spin(A, tag, vd, vz):
    A('s_mov_b32 s41, 0x20000')
    A.label(f'L_rs{tag}')
    A(f'''
    buffer_load_dword {vr(vd)}, {vr(vz)}, s[96:99], 0 offen sc1
    s_waitcnt vmcnt(0)
    v_cmp_ne_u32 vcc, 1, {vr(vd)}
    s_cbranch_vccz L_rsok{tag}
    s_sub_u32 s41, s41, 1
    s_cmp_lg_u32 s41, 0
    s_cbranch_scc1 L_rs{tag}
    ''')
    A.label(f'L_rsok{tag}')

def helpers(A):
    A.label('L_helper')
    A(f'''
    s_sub_u32 s3, s2, 4
    s_cmp_lt_u32 s3, 3
    s_cbranch_scc1 L2_done
    s_and_b32 s35, s2, 3
    s_cmp_eq_u32 s2, 7
    s_cselect_b32 s35, 0, s35
    s_load_dwordx2 s[6:7], s[0:1], 64
    s_load_dwordx2 s[24:25], s[0:1], 56
    s_load_dwordx2 s[26:27], s[0:1], 32
    v_lshrrev_b32 v1, 6, v0
    v_mov_b32 v30, v0
    v_and_b32 v0, 63, v0
    v_readfirstlane_b32 s3, v1
    v_and_b32 v2, 15, v0
    v_lshrrev_b32 v3, 4, v0
    s_and_b32 s28, s35, 1
    s_lshr_b32 s29, s35, 1
    v_mov_b32 v8, 0
    s_waitcnt lgkmcnt(0)
    ''')
    srd(A, 96, 100, 0, 256)
    srd(A, 20, 4, WS_FLAG, 16384)
    A('s_cmp_lg_u32 s2, 0')
    A('s_cbranch_scc1 L_w23')
    A(f'''
    v_lshrrev_b32 v9, 2, v30
    v_lshlrev_b32 v9, 8, v9
    v_and_b32 v10, 3, v30
    v_lshl_add_u32 v9, v10, 4, v9
    v_cmp_eq_u32 vcc, {49*4+3}, v30
    v_mov_b32 v13, 0
    v_mov_b32 v14, 0
    v_mov_b32 v15, 0
    v_cndmask_b32 v12, 0, 1, vcc
    buffer_store_dwordx4 v[12:15], v9, s[20:23], 0 offen sc1
    v_mov_b32 v16, 0
    v_mov_b32 v17, 0
    v_mov_b32 v18, 0
    v_mov_b32 v19, 0
    buffer_store_dwordx4 v[16:19], v9, s[20:23], 0 offen offset:128 sc1
    s_waitcnt vmcnt(0)
    s_barrier
    s_cmp_lg_u32 s3, 0
    s_cbranch_scc1 L2_done
    v_mov_b32 v9, 1
    s_mov_b64 exec, 1
    buffer_store_dword v9, v8, s[96:99], 0 offen sc1
    s_endpgm
    ''')
    A.label('L_w23')
    A('''
    s_cmp_eq_u32 s28, 0
    s_cselect_b32 s24, s24, s26
    s_cselect_b32 s25, s25, s27
    ''')
    srd(A, 8, 6, 0, 32768)
    srd(A, 12, 24, 0, 32768)
    srd(A, 16, 4, WS_W23, 65536)
    weights_dma(A, 3, 8, 12, lambda ii: ii & 1)
    A('''
    v_bfe_u32 v26, v0, 2, 2
    v_and_b32 v27, 1, v3
    v_lshl_add_u32 v27, v27, 2, v26
    v_lshlrev_b32 v27, 1, v27
    v_and_b32 v28, 3, v0
    v_xor_b32 v27, v27, v28
    v_lshl_add_u32 v26, v3, 3, v26
    v_lshlrev_b32 v26, 8, v26
    s_lshl_b32 s33, s3, 2
    v_xor_b32 v28, s33, v27
    v_lshl_add_u32 v7, v28, 4, v26
    s_lshl_b32 s33, s29, 3
    v_add_u32 v7, s33, v7
    v_and_b32 v26, 7, v2
    v_lshlrev_b32 v26, 1, v26
    v_xor_b32 v26, v26, v3
    v_lshlrev_b32 v27, 8, v2
    ''')
    for s in range(4):
        A(f'v_xor_b32 v28, {4*s}, v26')
        A(f'v_lshl_add_u32 {vr(12+s)}, v28, 4, v27')
    A('s_waitcnt vmcnt(0)')
    A('s_barrier')
    AF = 128; BFR = 32; C = 64
    for s in range(4):
        for x in range(2):
            A(f'ds_read_b64_tr_b16 {vr(BFR+4*s+2*x,2)}, v7 offset:{s*8192+x*1024}')
    def areads(dt):
        for s in range(4):
            A(f'ds_read_b128 {vr(AF+16*dt+4*s,4)}, {vr(12+s)} offset:{32768+dt*4096}')
    areads(0); areads(1)
    for dt in range(8):
        if dt + 2 < 8: areads(dt + 2)
        A(f's_waitcnt lgkmcnt({4*min(2, 7-dt)})')
        for s in range(4):
            d = C + 4 * dt
            c = '0' if s == 0 else vr(d, 4)
            A(f'v_mfma_f32_16x16x32_bf16 {vr(d,4)}, {vr(AF+16*dt+4*s,4)}, {vr(BFR+4*s,4)}, {c}')
    A('s_nop 7')
    A('''
    v_cmp_eq_u32 vcc, 3, v3
    v_lshlrev_b32 v27, 4, v0
    s_lshl_b32 s33, s3, 14
    s_lshl_b32 s34, s28, 12
    s_add_u32 s33, s33, s34
    s_lshl_b32 s34, s29, 13
    s_add_u32 s33, s33, s34
    ''')
    b = C
    A(f'v_add_f32 v24, {vr(b)}, {vr(b+1)}')
    A(f'v_add_f32 v29, {vr(b+2)}, {vr(b+3)}')
    for k in range(4, 32, 2):
        A(f'v_add_f32 v24, v24, {vr(b+k)}')
        A(f'v_add_f32 v29, v29, {vr(b+k+1)}')
    A('v_add_f32 v24, v24, v29')
    red_g(A, 24, 25)
    bcast_g3(A, 26, b + 31, 25)
    A(f'v_mul_f32 v24, {hex(f32bits(1/math.sqrt(128)))}, v24')
    A(f'v_sub_f32 v24, v26, v24')
    A(f'v_mul_f32 v24, {hex(f32bits(BETA))}, v24')
    for k in range(32): A(f'v_add_f32 {vr(b+k)}, {vr(b+k)}, v24')
    A(f'v_cndmask_b32 {vr(b+31)}, {vr(b+31)}, 0, vcc')
    for w in range(4):
        o = 128 + 4 * w
        for i in range(4):
            A(f'v_cvt_pk_bf16_f32 {vr(o+i)}, {vr(b+8*w+2*i)}, {vr(b+8*w+2*i+1)}')
        A(f'buffer_store_dwordx4 {vr(o,4)}, v27, s[16:19], s33 offen offset:{w*1024} sc1')
    A('s_waitcnt vmcnt(0)')
    A('s_barrier')
    A('s_cmp_lg_u32 s3, 0')
    A('s_cbranch_scc1 L2_done')
    ready_spin(A, 'h', 9, 8)
    A(f'''
    s_lshl_b32 s33, s35, 2
    s_add_u32 s33, s33, {49*256+32}
    v_mov_b32 v9, 1
    s_mov_b64 exec, 1
    buffer_store_dword v9, v8, s[20:23], s33 offen sc1
    s_endpgm
    ''')
```

```python
from asmlib import *
import asmlib
from layout import *
from k1 import srd, wave_scan_incl, f32bits
import re
import phase_a

PB = [128, 160]
SB = 192
KADDR = 208
VADDR = 212
VDMA = 220
LANE = 221
E8 = 222
VADDR2 = 230
PC0, PC1 = 238, 239
LPI, LPC, SELW, SELR, ONE, ETMP = 240, 241, 242, 243, 244, 245
TA, TB, ADA, ADB = 246, 247, 248, 249
T0, T1, T2, T3, T4, T5 = 250, 251, 252, 253, 254, 255
QF, KF, VF = 0, 64, 96
HS, GF, SEL, ZERO, ENT = 128, 160, 192, 196, 200
OFFS = 2
SBUF = 128
CAP = 1024
SPLITB = 79 * 8192
GBASE = 65536
GSIZE = 24576
THRESH = 72.0

XF = ()
HOOKP = 7
SPSLEEP = 's_sleep 1'
SCNT, SWA, SRA, SRD_ = 250, 251, 254, 255
SPINS = []
SYNCB = 65536 + 4992
GMASK = '-16'
GHACK = None
TSC = ' sc1'
FSC = ' sc1'
FOFF = 0
SPINB = 0x20000
LDSC = ' sc1'
OUTSC = ''
def slot(j): return (j + OFFS) % 4
def O(dt, q): return 4 * (dt * 4 + q)

class Op:
    def __init__(self, text, kind, rd=(), wr=(), tag=None):
        self.text, self.kind, self.rd, self.wr, self.tag = text, kind, set(rd), set(wr), tag
def regs(kind, b, n): return [(kind, b + i) for i in range(n)]

def op_qk(n, s):
    kt, q = n // 4, n % 4
    d = SB + 4 * (n % 4)
    a = KF + 16 * (kt % 2) + 4 * s
    b = QF + 4 * (q * 4 + s)
    c = '0' if s == 0 else vr(d, 4)
    return Op(f'v_mfma_f32_16x16x32_bf16 {vr(d,4)}, {ar(a,4)}, {ar(b,4)}, {c}', 'mfma',
              rd=regs('a', a, 4) + regs('a', b, 4), wr=regs('v', d, 4))
def op_pv(pb, dt, q, u, first=False):
    o = O(dt, q)
    a = VF + 8 * (dt % 4) + 4 * u
    p = PB[pb] + 4 * (u * 4 + q)
    return Op(f'v_mfma_f32_16x16x32_bf16 {vr(o,4)}, {ar(a,4)}, {vr(p,4)}, {"0" if first else vr(o,4)}', 'mfma',
              rd=regs('a', a, 4) + regs('v', p, 4), wr=regs('v', o, 4))
def op_kread(j, kt, s):
    a = KF + 16 * (kt % 2) + 4 * s
    return Op(f'ds_read_b128 {ar(a,4)}, {vr(KADDR+s)} offset:{slot(j)*16384+kt*4096}', 'lds', wr=regs('a', a, 4), tag=slot(j))
def op_vread(j, dt, u, x):
    a = VF + 8 * (dt % 4) + 4 * u + 2 * x
    return Op(f'ds_read_b64_tr_b16 {ar(a,2)}, {vr(VADDR+dt)} offset:{slot(j)*16384+u*8192+x*4096}', 'lds', wr=regs('a', a, 2), tag=slot(j))
def op_exp(n, r):
    d = SB + 4 * (n % 4) + r
    return Op(f'v_exp_f32 {vr(d)}, {vr(d)}', 'trans', rd=[('v', d)], wr=[('v', d)])
def op_cvt(pb, n, half):
    kt, q = n // 4, n % 4
    s = SB + 4 * (n % 4) + 2 * half
    d = PB[pb] + 4 * ((kt // 2) * 4 + q) + 2 * (kt % 2) + half
    return Op(f'v_cvt_pk_bf16_f32 {vr(d)}, {vr(s)}, {vr(s+1)}', 'valu', rd=[('v', s), ('v', s + 1)], wr=[('v', d)])
def op_dma(k):
    return Op(f'buffer_load_dwordx4 {vr(VDMA)}, s[8:11], s27 offen offset:{k*1024}{LDSC} lds', 'vmem')
def op_s(text): return Op(text, 'salu')
def next_off():
    return [[op_s('s_add_u32 s27, s27, 16384')], [op_s('s_cmp_eq_u32 s27, s89'), op_s('s_cselect_b32 s27, s88, s27')],
            [op_s('s_cmp_eq_u32 s27, s90'), op_s('s_cselect_b32 s27, s89, s27')]]

def g_issue_reads(loff):
    return [Op(f'ds_read2_b32 {vr(E8+2*i,2)}, {vr(LPI)} offset0:{loff//4+8*i} offset1:{loff//4+8*i+4}', 'lds', wr=regs('v', E8+2*i, 2), tag=-2) for i in range(4)]
def g_issue_dma(i, buf):
    ops = []
    ops.append(op_s(f's_mov_b32 m0, s{74+buf}') if i == 0 else op_s(f's_add_u32 m0, s{74+buf}, {i*1024}'))
    ops.append(Op(f'v_bitop3_b32 {vr(E8+i)}, {vr(E8+i)}, {GMASK}, {vr(PC0 if i%2==0 else PC1)} bitop3:0x6a', 'valu', rd=[('v', E8+i)], wr=[('v', E8+i)]))
    if 'nogdma' not in XF: ops.append(Op(f'buffer_load_dwordx4 {vr(E8+i) if "gsame" not in XF else vr(VDMA)}, s[8:11], 0 offen{LDSC} lds', 'vmem'))
    return ops
def g_issue_dma2(i):
    j = i % 4
    so = ['s36', 's37', 's38', '0'][j]
    return [Op(f'v_bitop3_b32 {vr(E8+i)}, {vr(E8+i)}, -16, {vr(PC0 if i%2==0 else PC1)} bitop3:0x6a', 'valu', rd=[('v', E8+i)], wr=[('v', E8+i)]),
            Op(f'buffer_load_dwordx4 {vr(E8+i)}, s[92:95], {so} offen offset:{j*1024}{LDSC} lds', 'vmem')]
def g_sel1(loff):
    return [Op(f'ds_read_b32 {vr(ETMP)}, {vr(LPC)} offset:{loff}', 'lds', wr=[('v', ETMP)], tag=-2),
            Op(f'ds_write_b128 {vr(SELR)}, {ar(ZERO,4)}', 'lds', tag=-2)]
def g_sel2():
    return [Op(f'v_and_b32 {vr(ETMP)}, 31, {vr(ETMP)}', 'valu', rd=[('v', ETMP)], wr=[('v', ETMP)]),
            Op(f'v_lshl_add_u32 {vr(ETMP)}, {vr(ETMP)}, 6, {vr(SELW)}', 'valu', rd=[('v', ETMP)], wr=[('v', ETMP)])]
def g_sel3():
    return [Op(f'ds_write_b16 {vr(ETMP)}, {vr(ONE)}', 'lds', tag=-2),
            Op(f'ds_read_b128 {ar(SEL,4)}, {vr(SELR)}', 'lds', wr=regs('a', SEL, 4), tag=-2)]
def g_tr(dt, x, buf):
    a = GF + 4 * dt + 2 * x
    return Op(f'ds_read_b64_tr_b16 {ar(a,2)}, {vr(VADDR2+dt)} offset:{buf*8192+x*4096}', 'lds', wr=regs('a', a, 2), tag=-2)
def g_mfma(dt):
    return Op(f'v_mfma_f32_16x16x32_bf16 {ar(HS+4*dt,4)}, {ar(GF+4*dt,4)}, {ar(SEL,4)}, {ar(HS+4*dt,4)}', 'mfma',
              rd=regs('a', GF+4*dt, 4) + regs('a', SEL, 4), wr=regs('a', HS+4*dt, 4))

EE = [['e0'], ['e1'], ['e2'], ['e3']]
GP_OLD = {(0,6):['r0'], (0,7):['r1','r2'], (1,6):['r3'], (2,3):['D0'], (2,7):['D1'], (3,3):['D2'], (3,7):['D3'], (4,3):['D4'], (4,7):['D5'], (5,3):['D6'], (5,7):['D7'],
          (5,6):['sa'], (6,6):['sb'], (6,7):['s2'], (7,7):['s3'], (7,3):['vw','t0'], (7,6):['t1'], (8,3):['t2'], (8,6):['t3'], (9,3):['t4','M0'], (9,6):['t5'], (9,7):['M1'],
          (10,3):['t6','M2'], (10,6):['t7'], (10,7):['M3'], (11,3):['M4'], (11,7):['M5'], (12,3):['M6'], (12,7):['M7']}
GP1 = {(0,7):['r0','r1'], (1,7):['r2'], (2,6):['r3','sa'], (2,7):['D0'], (3,6):['D1'], (3,7):['sb'], (4,7):['D2'], (5,3):['D3'], (6,3):['s2'], (6,7):['D4'],
      (7,3):['D5'], (7,7):['s3'], (8,3):['vw','t0'], (8,5):['t1'], (8,7):['D6'], (9,3):['M0','t2'], (9,7):['M1','t3'], (10,3):['M2','t4'], (10,7):['D7'],
      (11,3):['M3','t5'], (11,7):['M4','t6'], (12,3):['M5','t7'], (13,3):['M6'], (13,7):['M7']}
SOFT = dict(Frd=(0,7), m0=(1,7), Fck=(2,7), Fbr=(3,6), dma=[(4,7),(6,6),(6,7),(7,6)], a1=(5,7), vm=(7,7), wr1=(8,7), Lrd=(10,6), Lck=(11,6), Lbr=(11,7),
            a2=(12,7), wr2=(13,7), sadd3=[(10,7),(14,6),(14,7)])
SOFT['dma_g'] = [(4,7),(5,7),(6,7),(7,6)]
GPS = {(1,7):['km0'], (0,7):['sa'], (2,6):['sb','r0'], (3,3):['s2'], (3,6):['r1'], (3,7):['r2'], (4,3):['s3'], (5,3):['vw','t0'], (5,5):['t1'], (6,3):['M0','t2'], (6,5):['M1','t3'],
     (7,3):['M2','t4'], (7,5):['M3','t5'], (8,3):['M4','t6','gm0a'], (8,5):['M5','t7'], (8,7):['r3'], (9,3):['M6','D0'], (9,7):['M7','D1'], (10,3):['D2'], (11,3):['D3','gm0b'], (12,3):['D4'], (13,3):['D5'], (14,3):['D6'], (15,6):['D7']}
GPX = {(1,7):['km0'], (8,3):['r0','r1'], (8,7):['gm0a'], (9,3):['r2','r3'], (9,7):['D0'], (10,3):['D1'], (11,3):['D2'], (12,3):['D3','gm0b'], (13,3):['D4'], (14,3):['D5'], (15,3):['D6'], (15,6):['D7']}
DEFAULT = dict(gplan=GP1, gplan_x=GPX, soft=SOFT, gplan_soft=GPS, use_soft=True,
    slots4=[EE + [['c0','c1'], ['v','v'], ['k','k'], []], EE + [['c0','c1'], ['v','v'], ['k','k'], ['w']],
            EE + [['c0','c1'], ['v','v'], [], []], EE + [['c0','c1'], ['v','v'], [], ['w']]],
    bar_group=12, bar_slot=5,
    dma=[(12,7),(14,6),(14,7),(15,6)], m0=(11,6), sadd3=[(6,6),(7,6),(10,6)], pvrev=True,
)

def build_iter(i, cfg, nqk=16, pv_us=(0, 1), first_pv=False, next_k=True, next_v_us=(0, 1), bar=True, dma=True,
               prev_tile=15, g_issue=None, g_cons=None, soft=None, hookcmp=False):
    ops = []
    pbN, pbC = (i + 1) % 2, i % 2
    extra = {}
    def add(g, s, o): extra.setdefault((g, s), []).extend(o)
    gp = cfg['gplan']
    items = {}
    if soft is not None:
        bar = False; dma = False
        isg = g_issue is not None
        sp = cfg['soft']
        gp = cfg['gplan_soft'] if g_cons is not None or not isg else cfg['gplan_x']
        kpos = sp.get('dma_g', sp['dma']) if isg else sp['dma']
        dpos = sorted(pos for pos in gp for it in gp[pos] if it[0] == 'D') if isg else []
        nL = sum(1 for p_ in kpos if p_ < sp['vm']) + sum(1 for p_ in dpos if p_ > kpos[3]) + sum(1 for p_ in dpos if p_ < sp['vm'])
        if isg and g_cons is None: nL = sum(1 for p_ in kpos if p_ < sp['vm'])
        if hookcmp: add(15, 6, [op_s(f's_cmp_eq_u32 s32, {HOOKP}')])
        def ck(nm):
            SPINS.append(f'{soft}{nm}')
            return [Op(f'v_cmp_lt_u32 vcc, {vr(SRD_)}, {vr(SCNT)}', 'valu', rd=[('v', SRD_)]), op_s(f's_cbranch_vccnz L2_sp{soft}{nm}'), Op(f'L2_spr{soft}{nm}:', 'label')]
        rdop = lambda: [Op(f'ds_read_b32 {vr(SRD_)}, {vr(SRA)}', 'lds', wr=[('v', SRD_)], tag=-2)]
        addop = lambda: [Op(f'v_add_u32 {vr(SCNT)}, 1, {vr(SCNT)}', 'valu')]
        wrop = lambda: [Op(f'ds_write_b32 {vr(SWA)}, {vr(SCNT)}', 'lds', tag=-2)]
        c_ = ck('F'); add(*sp['Frd'], rdop()); add(*sp['Fck'], c_[:1]); add(*sp.get('Fbr', sp['Fck']), c_[1:])
        m0op = op_s(f's_mov_b32 m0, s{28 + slot(i+3)}')
        if not isg: add(*sp['m0'], [m0op])
        else: items['km0'] = [m0op]
        for k in range(4):
            add(*kpos[k], [op_dma(k)])
        add(*sp['a1'], addop()); add(*sp['vm'], [op_s(f's_waitcnt vmcnt({nL})')]); add(*sp.get('wr1', sp['vm']), wrop())
        c_ = ck('L'); add(*sp['Lrd'], rdop()); add(*sp['Lck'], c_[:1]); add(*sp.get('Lbr', sp['Lck']), c_[1:])
        add(*sp['a2'], addop()); add(*sp['wr2'], wrop())
        for k, pos in enumerate(sp['sadd3']): add(*pos, next_off()[k])
    if g_issue is not None:
        loff, buf = g_issue
        rd = g_issue_reads(loff)
        for k in range(4): items[f'r{k}'] = [rd[k]]
        for k in range(8): items[f'D{k}'] = g_issue_dma(k, buf) if soft is None else g_issue_dma2(k)
        items['gm0a'] = [op_s(f's_mov_b32 m0, s{74+buf}')]
        items['gm0b'] = [op_s(f's_add_u32 m0, s{74+buf}, 4096')]
    if g_cons is not None:
        loff, buf, vm = g_cons
        items['sa'] = g_sel1(loff)[:1]; items['sb'] = g_sel1(loff)[1:]
        items['s2'] = g_sel2(); items['s3'] = g_sel3()
        order = [it for pos in sorted(gp) for it in gp[pos]]
        nd = sum(1 for it in order[:order.index('vw')] if it[0] == 'D')
        nk = 4
        if soft is not None:
            vwpos = [pos for pos in gp if 'vw' in gp[pos]][0]
            nk = sum(1 for p_ in kpos if p_ <= vwpos) + sum(1 for p_ in kpos if p_ > dpos[-1])
        items['vw'] = [op_s(f's_waitcnt vmcnt({nk + nd})')]
        for dt in range(8):
            items[f't{dt}'] = [g_tr(dt, 0, buf), g_tr(dt, 1, buf)]
            items[f'M{dt}'] = [g_mfma(dt)]
    for pos in sorted(gp):
        for it in gp[pos]:
            if it in items: add(pos[0], pos[1], items[it])
    kq = []
    for n in range(16):
        dt = n // 2
        q0 = 2 * (n % 2)
        slots = cfg['slots4'][n % 4] if 'slots4' in cfg else cfg['slots']
        mf = [op_qk(n, s) if n < nqk else None for s in range(4)]
        for q in (q0, q0 + 1):
            us = (1, 0) if (cfg.get('pvrev') and q == q0 + 1 and len(pv_us) == 2) else (0, 1)
            for u in us:
                mf.append(op_pv(pbC, dt, q, u, first=(first_pv and u == us[0])) if u in pv_us else None)
        dtn = dt + 2
        jv = i if dtn < 8 else i + 1
        uu = n % 2
        v_ok = (uu in pv_us) if dtn < 8 else (uu in next_v_us)
        vq = [op_vread(jv, dtn % 8, uu, x) for x in range(2)]
        kt = n // 4
        ktn = kt + 1
        jk = i + 1 if ktn < 4 else i + 2
        k_ok = (4 * ktn < nqk) if ktn < 4 else next_k
        if n % 4 == 0:
            assert not kq
            kq = [op_kread(jk, ktn % 4, s) for s in range(4)]
        for m in range(8):
            if mf[m] is not None: ops.append(mf[m])
            for f in slots[m]:
                if ('no' + f[0]) in XF and 2 <= i <= 5:
                    if f == 'k': kq.pop(0)
                    continue
                if f[0] == 'e' or f[0] == 'c':
                    if n == 0:
                        if prev_tile is not None:
                            ops.append(op_exp(prev_tile, int(f[1])) if f[0] == 'e' else op_cvt(pbC, prev_tile, int(f[1])))
                    elif n - 1 < nqk:
                        ops.append(op_exp(n - 1, int(f[1])) if f[0] == 'e' else op_cvt(pbN, n - 1, int(f[1])))
                elif f == 'v':
                    o = vq.pop(0)
                    if v_ok: ops.append(o)
                elif f == 'k':
                    o = kq.pop(0)
                    if k_ok: ops.append(o)
                elif f == 'w':
                    need = set()
                    for nn in (n + 1, n + 2):
                        n2 = nn % 16
                        need |= set(regs('a', KF + 16 * ((n2 // 4) % 2), 16)) if n2 // 4 != kt or nn >= 16 else set()
                        if n2 // 2 != dt: need |= set(regs('a', VF + 8 * ((n2 // 2) % 4), 8))
                    ops.append(Op('WAIT', 'wait', rd=need))
            ops.extend(extra.get((n, m), []))
            if m == 7 and cfg.get('stall'):
                ops.append(op_s(f's_nop {cfg["stall"]-1}'))
            if bar and 'nobar' not in XF and n == cfg['bar_group'] and m == cfg['bar_slot']:
                ops.append(Op('BARRIER', 'bar', tag=slot(i)))
            if dma and 'nokv' not in XF:
                for k, (g, sl) in enumerate(cfg['dma']):
                    if g == n and sl == m:
                        ops.append(op_dma(k))
                if cfg['m0'] == (n, m): ops.append(op_s(f's_mov_b32 m0, s{28 + slot(i+4)}'))
                for k, pos in enumerate(cfg['sadd3']):
                    if pos == (n, m): ops.extend(next_off()[k])
    return ops

def finalize(ops, pending_in, vm_wait):
    pend = list(pending_in)
    out = []
    for o in ops:
        if o.kind == 'bar':
            need = -1
            for idx, (w, tg) in enumerate(pend):
                if tg == o.tag: need = idx
            if need >= 0:
                cnt = len(pend) - 1 - need
                out.append(Op(f's_waitcnt vmcnt({vm_wait}) lgkmcnt({min(cnt,15)})', 'salu'))
                pend = pend[need + 1:]
            else:
                out.append(Op(f's_waitcnt vmcnt({vm_wait})', 'salu'))
            out.append(Op('s_barrier', 'salu'))
            if 'bar2' in XF: out.append(Op('s_barrier', 'salu'))
            continue
        if o.kind in ('mfma', 'valu', 'trans', 'wait'):
            need = -1
            for idx, (w, tg) in enumerate(pend):
                if w & o.rd: need = idx
            if need >= 0:
                cnt = len(pend) - 1 - need
                out.append(Op(f's_waitcnt lgkmcnt({min(cnt,15)})', 'salu'))
                pend = pend[need + 1:]
        if o.kind == 'lds':
            pend.append((frozenset(o.wr), o.tag))
        if o.kind != 'wait': out.append(o)
    return out, pend

def fix_hazards(ops, fix=True):
    pos = 0
    lm = {}; lv = {}; lt = {}
    out = []
    for o in ops:
        need = 0
        if o.kind in ('valu', 'trans'):
            for r in o.rd | o.wr:
                if r in lm: need = max(need, 8 - (pos - lm[r] - 1))
            if o.kind == 'valu':
                for r in o.rd:
                    if r in lt: need = max(need, 1 - (pos - lt[r] - 1))
        if o.kind == 'mfma':
            for r in o.rd | o.wr:
                if r in lv: need = max(need, 2 - (pos - lv[r] - 1))
            for r in o.rd:
                if r in lm: need = max(need, 8 - (pos - lm[r] - 1))
        if need > 0:
            if not fix: raise Exception(f'hazard at {o.text} need {need}')
            out.append(op_s(f's_nop {need-1}')); pos += need
        if o.kind == 'mfma':
            for r in o.wr: lm[r] = pos
        if o.kind in ('valu', 'trans'):
            for r in o.wr:
                lv[r] = pos
                if o.kind == 'trans': lt[r] = pos
                else: lt.pop(r, None)
        m = re.match(r's_nop (\d+)', o.text)
        pos += (int(m.group(1)) + 1) if m else (0 if o.kind == 'label' else 1)
        out.append(o)
    return out

def emit(A, ops):
    for o in ops:
        if o.kind == 'label': A.raw(o.text)
        else: A(o.text)

TW = TA
RT = 4
CAPQ = 192
def hflag_load(A, n=NH, line=50, E8=E8):
    A(f'v_min_u32 {vr(E8+1)}, {n-1}, {vr(LANE)}')
    A(f'v_lshlrev_b32 {vr(E8+1)}, 2, {vr(E8+1)}')
    A(f's_mov_b32 s39, {WS_FLAG-WS_BND+line*256}')
    A(f'buffer_load_dword {vr(E8)}, {vr(E8+1)}, s[20:23], s39 offen sc1')
def hflag_check(A, tag, E8=E8):
    A('s_mov_b32 s41, 0x20000')
    A.label(f'L2_hf{tag}')
    A(f'''
    v_cmp_ne_u32 vcc, 1, {vr(E8)}
    s_cbranch_vccz L2_hfok{tag}
    s_sub_u32 s41, s41, 1
    s_cmp_eq_u32 s41, 0
    s_cbranch_scc1 L2_hfok{tag}
    s_sleep 2
    buffer_load_dword {vr(E8)}, {vr(E8+1)}, s[20:23], s39 offen sc1
    s_waitcnt vmcnt(0)
    s_branch L2_hf{tag}
    ''')
    A.label(f'L2_hfok{tag}')
def table_load(A):
    A(f'''
    v_lshlrev_b32 {vr(E8+1)}, 2, {vr(LANE)}
    v_mov_b32 {vr(E8+2)}, 0x7ffffff0
    v_cmp_gt_u32 vcc, {NH}, {vr(LANE)}
    s_lshl_b32 s80, s72, 6
    s_nop 0
    v_cndmask_b32 {vr(E8+1)}, {vr(E8+2)}, {vr(E8+1)}, vcc
    buffer_load_dword {vr(TW)}, {vr(E8+1)}, s[68:71], s80 offen sc1
    ''')
def list_build(A, tag):
    C, I, PK, L16 = E8, E8+1, E8+2, E8+3
    A('s_mov_b32 s79, 63')
    A.label(f'L2_retry{tag}')
    A(f'''
    v_lshrrev_b32 {vr(C)}, 16, {vr(TW)}
    v_min_u32 {vr(C)}, s79, {vr(C)}
    v_mov_b32 {vr(I)}, {vr(C)}
    ''')
    for sh in (1, 2, 4, 8):
        A('s_nop 1')
        A(f'v_add_u32_dpp {vr(I)}, {vr(I)}, {vr(I)} row_shr:{sh} row_mask:0xf bank_mask:0xf')
    A(f'''
    s_nop 0
    v_readlane_b32 s76, {vr(I)}, 15
    s_cmp_le_u32 s76, {CAPQ}
    s_cbranch_scc1 L2_ok{tag}
    s_mov_b32 s79, 16
    s_branch L2_retry{tag}
    ''')
    A.label(f'L2_ok{tag}')
    A(f'''
    v_sub_u32 {vr(I)}, {vr(I)}, {vr(C)}
    v_lshl_add_u32 {vr(I)}, {vr(I)}, 4, s73
    v_mov_b32 {vr(PK)}, {CHS}
    v_mul_u32_u24 {vr(PK)}, {vr(PK)}, {vr(LANE)}
    v_and_b32 {vr(L16)}, 0xffff, {vr(TW)}
    v_lshl_add_u32 {vr(PK)}, {vr(L16)}, 4, {vr(PK)}
    v_lshlrev_b32 {vr(L16)}, 4, {vr(LANE)}
    s_lshl_b32 s76, s76, 2
    s_cbranch_scc0 L2_lb{tag}
    ''')
    SG = [36, 37, 38, 39, 33, 42, 43, 79, 80, 81, 91, 77]
    for c0 in range(0, NH, 4):
        cs = list(range(c0, min(c0 + 4, NH)))
        for k, c in enumerate(cs): A(f'v_readlane_b32 s{SG[k]}, {vr(PK)}, {c}')
        for k, c in enumerate(cs): A(f'v_readlane_b32 s{SG[4+k]}, {vr(I)}, {c}')
        for k, c in enumerate(cs): A(f'v_readlane_b32 s{SG[8+k]}, {vr(C)}, {c}')
        for k, c in enumerate(cs):
            A(f's_mov_b32 m0, s{SG[4+k]}')
            A(f's_bfm_b64 exec, s{SG[8+k]}, 0')
            A(f'buffer_load_dwordx4 {vr(L16)}, s[64:67], s{SG[k]} offen sc1 lds')
    A.label(f'L2_lb{tag}')
    A(f'''
    s_mov_b64 exec, -1
    v_add_u32 {vr(I)}, s76, {vr(LANE)}
    v_lshl_add_u32 {vr(I)}, {vr(I)}, 2, s73
    v_mov_b32 {vr(PK)}, 0x7ffffff0
    ds_write_b32 {vr(I)}, {vr(PK)}
    ds_write_b32 {vr(I)}, {vr(PK)} offset:256
    ds_write_b32 {vr(I)}, {vr(PK)} offset:512
    v_add_u32 {vr(TW)}, {vr(TW)}, {vr(C)}
    v_lshlrev_b32 {vr(C)}, 16, {vr(C)}
    v_sub_u32 {vr(TW)}, {vr(TW)}, {vr(C)}
    s_add_u32 s77, s76, 31
    s_lshr_b32 s77, s77, 5
    s_mov_b32 s78, 0
    s_max_u32 s3, s77, {RT-1}
    s_sub_u32 s3, s3, {RT-1}
    s_and_b32 s3, s3, -2
    v_lshrrev_b32 {vr(LPI)}, 4, {vr(LANE)}
    v_lshl_add_u32 {vr(LPI)}, {vr(LPI)}, 2, s73
    v_and_b32 {vr(LPC)}, 31, {vr(LANE)}
    v_lshl_add_u32 {vr(LPC)}, {vr(LPC)}, 2, s73
    ''')

def full_check_issue(A, vdst, vaddr):
    A(f'v_min_u32 {vr(vaddr)}, 48, {vr(LANE)}')
    A(f'v_lshlrev_b32 {vr(vaddr)}, 8, {vr(vaddr)}')
    A(f's_mov_b32 s39, {WS_FLAG-WS_BND+32}')
    A(f'buffer_load_dwordx4 {vr(vdst,4)}, {vr(vaddr)}, s[20:23], s39 offen sc1')
    A(f'buffer_load_dword {vr(vdst+4)}, {vr(vaddr)}, s[20:23], s39 offen offset:16 sc1')

def flags_spin(A, tag, vdst, vaddr, first_wait):
    A('s_mov_b32 s41, 0x20000')
    A(first_wait)
    A.label(f'L2_fs{tag}')
    A(f'''
    v_and_b32 {vr(vdst)}, {vr(vdst)}, {vr(vdst+1)}
    v_and_b32 {vr(vdst+2)}, {vr(vdst+2)}, {vr(vdst+3)}
    v_and_b32 {vr(vdst)}, {vr(vdst)}, {vr(vdst+4)}
    v_and_b32 {vr(vdst)}, {vr(vdst)}, {vr(vdst+2)}
    v_cmp_ne_u32 vcc, 1, {vr(vdst)}
    s_cbranch_vccz L2_fsok{tag}
    s_sub_u32 s41, s41, 1
    s_cmp_eq_u32 s41, 0
    s_cbranch_scc1 L2_fsok{tag}
    s_sleep 1
    buffer_load_dwordx4 {vr(vdst,4)}, {vr(vaddr)}, s[20:23], s39 offen sc1
    buffer_load_dword {vr(vdst+4)}, {vr(vaddr)}, s[20:23], s39 offen offset:16 sc1
    s_waitcnt vmcnt(0)
    s_branch L2_fs{tag}
    ''')
    A.label(f'L2_fsok{tag}')

def w23_dma_ops():
    res = []
    for b in range(4):
        for k in range(4):
            ops = []
            if k == 0:
                ops.append(op_s('s_mov_b32 m0, s33'))
                ops.append(op_s('s_nop 0'))
            ops.append(Op(f'buffer_load_dwordx4 {vr(T5)}, s[12:15], s33 offen offset:{k*1024} sc1 lds', 'vmem'))
            if k == 3: ops.append(op_s('s_add_u32 s33, s33, 4096'))
            res.append(ops)
    return res

def gen_k2(A, cfg=None, name='attn_kernel', stamp=0, flags=()):
    cfg = cfg or DEFAULT
    def st(i):
        if stamp: A(f's_memrealtime s[{44+2*i}:{45+2*i}]')
    def rec(idx):
        if stamp != 2: return
        A('s_memrealtime s[96:97]')
        A('s_memtime s[98:99]')
        A('s_waitcnt lgkmcnt(0)')
        A(f'v_cmp_eq_u32 vcc, {idx}, {vr(LANE)}')
        for sreg, areg in ((96, 252), (98, 253)):
            A(f'v_mov_b32 {vr(T2)}, s{sreg}')
            A(f'v_accvgpr_read_b32 {vr(T3)}, a{areg}')
            A(f'v_cndmask_b32 {vr(T3)}, {vr(T3)}, {vr(T2)}, vcc')
            A(f'v_accvgpr_write_b32 a{areg}, {vr(T3)}')
    A.raw(f'.globl {name}\n.p2align 8\n.type {name},@function')
    A.label(name)
    L = vr(LANE)
    A(f'''
    s_cmp_ge_u32 s2, 256
    s_cbranch_scc1 L2_done
    s_load_dwordx2 s[4:5], s[0:1], 88
    s_load_dwordx2 s[100:101], s[0:1], 80
    s_cmp_lt_u32 s2, 8
    s_cbranch_scc1 L_helper
    s_sub_u32 s3, s2, 12
    s_cmp_lt_u32 s3, 3
    s_cbranch_scc1 L_helper
    s_load_dwordx2 s[6:7], s[0:1], 0
    s_load_dwordx2 s[84:85], s[0:1], 24
    s_load_dwordx2 s[86:87], s[0:1], 72
    s_load_dwordx4 s[76:79], s[0:1], 40
    ''')
    for i in range(10): st(i)
    A(f'''
    v_lshrrev_b32 v1, 6, v0
    v_and_b32 v0, 63, v0
    v_mov_b32 {L}, v0
    s_mov_b32 s3, 0x33333334
    v_readfirstlane_b32 s26, v1
    s_lshr_b32 s33, s2, 3
    s_lshl_b32 s40, s33, 2
    s_sub_u32 s33, s33, 2
    s_mul_hi_u32 s24, s33, s3
    s_mul_i32 s3, s24, 5
    s_sub_u32 s25, s33, s3
    s_lshl_b32 s24, s24, 3
    s_and_b32 s3, s2, 7
    s_add_u32 s24, s24, s3
    s_min_u32 s3, s3, 4
    s_cmp_lt_u32 s2, 16
    s_cselect_b32 s24, 48, s24
    s_cselect_b32 s25, s3, s25
    v_and_b32 v2, 15, v0
    v_lshrrev_b32 v3, 4, v0
    v_lshlrev_b32 {vr(T5)}, 4, v0
    s_mul_i32 s72, s26, 5
    s_add_u32 s72, s72, 4
    s_sub_u32 s72, s72, s25
    s_lshl_b32 s3, s24, 4
    s_cmp_lt_u32 s72, 16
    s_cselect_b32 s82, 1, 0
    s_add_u32 s72, s72, s3
    s_cmp_eq_u32 s82, 1
    s_cselect_b32 s72, s72, 0x100000
    s_mul_i32 s73, s26, {GSIZE}
    s_add_u32 s73, s73, {GBASE}
    s_add_u32 s74, s73, 8192
    s_add_u32 s75, s73, 16384
    s_add_u32 s40, s40, s26
    s_sub_u32 s40, s40, 4
    ''')
    asmlib.code_prefetch(A, 'k2', name, 'L_code_end', 42, 40, 41, T5, 200)
    A('s_waitcnt lgkmcnt(0)')
    srd(A, 88, 76, 0, 32768)
    srd(A, 92, 78, 0, 32768)
    srd(A, 64, 4, WS_EDGE, NH*CHS)
    srd(A, 20, 4, WS_BND, WS_W23-WS_BND)
    dma_fn = lambda: phase_a.weights_dma(A, 26, 88, 92, lambda ii: ii >> 1)
    A('s_cmp_eq_u32 s82, 0')
    A('s_cbranch_scc1 L_binw')
    srd(A, 68, 6, 0, N*256)
    phase_a.owner_x_loads(A)
    dma_fn()
    srd(A, 8, 4, WS_H1, N*256)
    srd(A, 12, 4, WS_QF, 784*4096)
    phase_a.owner_compute(A, st)
    A('s_branch L_adone')
    A.label('L_binw')
    dma_fn()
    A('s_waitcnt vmcnt(0)')
    A('s_barrier')
    A.label('L_adone')
    st(9)
    srd(A, 96, 100, 0, 256)
    A('v_mov_b32 v10, 0')
    A('buffer_load_dword v11, v10, s[96:99], 0 offen sc1')
    srd(A, 8, 4, WS_H1, N*256)
    srd(A, 12, 4, WS_QF, 784*4096)
    srd(A, 16, 4, WS_OP, 5*784*4096)
    srd(A, 68, 4, WS_TAB, NBIN*64)
    def dma_tile(j):
        pre = [] if j == 0 else sum(next_off(), [])
        ops = pre + [op_s(f's_mov_b32 m0, s{28+slot(j)}'), op_s('s_nop 0')] + [op_dma(k) for k in range(4)]
        return ops
    A(f'''
    s_lshl_b32 s33, s26, 12
    v_add_u32 {vr(VDMA)}, s33, {vr(T5)}
    s_mul_i32 s88, s25, {SPLITB}
    s_cmp_eq_u32 s25, 4
    s_cselect_b32 s89, 37, 39
    s_lshl_b32 s89, s89, 14
    s_add_u32 s89, s89, s88
    s_add_u32 s91, s88, 65535
    s_lshr_b32 s91, s91, 16
    s_sub_u32 s27, s2, s91
    s_and_b32 s27, s27, 7
    s_add_u32 s91, s91, s27
    s_lshl_b32 s27, s91, 16
    s_sub_u32 s27, s27, s88
    s_add_u32 s27, s27, 16383
    s_and_b32 s27, s27, 0xffffc000
    s_add_u32 s27, s27, s88
    s_mov_b32 s90, s27
    s_add_u32 s28, s33, 0
    s_add_u32 s29, s33, 16384
    s_add_u32 s30, s33, 32768
    s_add_u32 s31, s33, 49152
    s_lshl_b32 s34, s24, 4
    s_lshl_b32 s35, s26, 2
    s_add_u32 s34, s34, s35
    s_lshl_b32 s35, s34, 12
    v_and_b32 v4, 7, {L}
    v_lshlrev_b32 v4, 1, v4
    v_lshrrev_b32 v5, 4, {L}
    v_xor_b32 v4, v4, v5
    v_and_b32 v6, 15, {L}
    v_lshlrev_b32 v7, 8, v6
    ''')
    for s in range(4):
        A(f'v_xor_b32 v8, {4*s}, v4')
        A(f'v_lshl_add_u32 {vr(KADDR+s)}, v8, 4, v7')
    A(f'''
    v_lshrrev_b32 v4, 2, {L}
    v_lshlrev_b32 v7, 8, v4
    v_and_b32 v4, 7, v4
    v_and_b32 v8, 3, {L}
    v_lshl_add_u32 v7, v8, 3, v7
    ''')
    for dt in range(8):
        A(f'v_xor_b32 v8, {dt}, v4')
        A(f'v_lshl_add_u32 {vr(VADDR+dt)}, v8, 5, v7')
        A(f'v_add_u32 {vr(VADDR2+dt)}, s74, {vr(VADDR+dt)}')
    A(f'''
    v_lshlrev_b32 v8, 1, v5
    v_xor_b32 v8, v8, v6
    v_lshlrev_b32 {vr(PC0)}, 4, v8
    v_xor_b32 {vr(PC1)}, 0x80, {vr(PC0)}
    v_bfe_u32 v8, {L}, 2, 2
    v_lshlrev_b32 v8, 4, v8
    v_bfe_u32 v9, {L}, 4, 1
    v_lshl_add_u32 v8, v9, 3, v8
    v_and_b32 v9, 3, {L}
    v_lshl_add_u32 v8, v9, 1, v8
    s_add_u32 s83, s73, 5120
    v_add_u32 {vr(SELW)}, s83, v8
    v_lshlrev_b32 v8, 6, v6
    v_lshl_add_u32 v8, v5, 4, v8
    v_add_u32 {vr(SELR)}, s83, v8
    v_mov_b32 {vr(ONE)}, 0x3f80
    ''')
    if GHACK is not None:
        A(f's_mov_b32 s92, {GHACK}')
        A(f'v_lshlrev_b32 v8, 5, v5')
        A(f'v_and_b32 v8, s92, v8')
        A(f'v_lshlrev_b32 v9, 4, v6')
        A(f'v_xor_b32 {vr(PC0)}, v8, v9')
        A(f'v_and_b32 v8, 0x80, s92' if False else f's_and_b32 s93, s92, 0x80')
        A(f'v_xor_b32 {vr(PC1)}, s93, {vr(PC0)}')
    for r in range(32): A(f'v_accvgpr_write_b32 {ar(HS+r)}, 0')
    for r in range(4): A(f'v_accvgpr_write_b32 {ar(ZERO+r)}, 0')
    A('s_waitcnt vmcnt(0)')
    A('s_barrier')
    st(1)
    A('s_cmp_lg_u32 s26, 0')
    A('s_cbranch_scc1 L_depok')
    A('v_cmp_ne_u32 vcc, 1, v11')
    A('s_cbranch_vccz L_rsokm')
    phase_a.ready_spin(A, 'm', 11, 10)
    A(f'''
    s_lshl_b32 s40, s24, 8
    s_lshl_b32 s41, s25, 2
    s_add_u32 s41, s41, s40
    s_add_u32 s41, s41, {WS_FLAG-WS_BND+32}
    v_mov_b32 v11, 1
    s_mov_b64 exec, 1
    buffer_store_dword v11, v10, s[20:23], s41 offen sc1
    s_mov_b64 exec, -1
    s_lshl_b32 s41, s91, 8
    v_mov_b32 v12, s40
    v_mov_b32 v13, s41
    v_cmp_eq_u32 vcc, 1, {L}
    s_nop 1
    v_cndmask_b32 v12, v12, v13, vcc
    s_mov_b32 s39, {WS_FLAG-WS_BND+32}
    buffer_load_dwordx4 v[16:19], v12, s[20:23], s39 offen sc1
    buffer_load_dword v20, v12, s[20:23], s39 offen offset:16 sc1
    ''')
    flags_spin(A, 'a', 16, 12, 's_waitcnt vmcnt(0)')
    A.label('L_depok')
    A('s_barrier')
    st(2)
    emit(A, dma_tile(0))
    A(f'''
    s_add_u32 s36, s35, 4096
    s_add_u32 s37, s35, 8192
    s_add_u32 s38, s35, 12288
    s_lshl_b32 s39, s24, 10
    ''')
    for q in range(4):
        for s in range(4):
            A(f'buffer_load_dwordx4 {ar(QF+4*(q*4+s),4)}, {vr(T5)}, s[12:15], s{35+q} offen offset:{s*1024}{LDSC}')
    A(f'buffer_load_dwordx4 v[0:3], {vr(T5)}, s[20:23], s39 offen sc1')
    emit(A, dma_tile(1))
    A('s_waitcnt vmcnt(0)')
    A('s_barrier')
    emit(A, [op_kread(0, 0, s) for s in range(4)])
    A(f'''
    v_max3_f32 v0, v0, v1, v2
    v_max_f32 v0, v0, v3
    v_cmp_lt_f32 vcc, {hex(f32bits(THRESH))}, v0
    s_cbranch_vccnz L2_slow
    ''')
    pro = []
    dq = dma_tile(2)
    for n in range(16):
        kt = n // 4
        fill = []
        if n >= 2:
            fill = [[op_exp(n-2, 0)], [op_exp(n-2, 1)], [op_exp(n-2, 2)], [op_exp(n-2, 3), op_cvt(0, n-2, 0), op_cvt(0, n-2, 1)]]
        else:
            fill = [[], [], [], []]
        for s in range(4):
            pro.append(op_qk(n, s))
            pro += fill[s]
        ktn = kt + 1
        pro.append(op_kread(0 if ktn < 4 else 1, ktn % 4, n % 4))
        if n >= 12:
            pro += [op_vread(0, (n - 12) // 2, n % 2, x) for x in range(2)]
        if n < 8:
            while dq and dq[0].kind != 'vmem': pro.append(dq.pop(0))
            if dq: pro.append(dq.pop(0))
    pro += [op_exp(14, r) for r in range(4)] + [op_cvt(0, 14, 0), op_cvt(0, 14, 1)]
    pend0 = [(frozenset(regs('a', KF+4*s, 4)), -1) for s in range(4)]
    pro, pend = finalize(pro, pend0, 4)
    pend = [(w, -1) for w, _ in pend]
    it0, pend = finalize(build_iter(0, cfg, first_pv=True, dma=False), pend, 2)
    emit(A, fix_hazards(pro))
    st(3)
    rec(15)
    full_check_issue(A, E8, E8+6)
    A('s_nop 3')
    emit(A, fix_hazards(it0))
    rec(14)
    flags_spin(A, 'b', E8, E8+6, 's_waitcnt vmcnt(0)')
    emit(A, dma_tile(3) + dma_tile(4))
    rec(13)
    A('s_waitcnt lgkmcnt(0)')
    _, pend_ss = finalize(build_iter(3, cfg), [], 4)
    pend_ss = [(w, -1) for w, _ in pend_ss]
    US = cfg['use_soft']
    del SPINS[:]
    def sync_regs():
        A(f's_lshl_b32 s33, s26, 2')
        A(f's_add_u32 s33, s33, {SYNCB}')
        A(f'v_mov_b32 {vr(SWA)}, s33')
        A(f'v_mov_b32 {vr(SCNT)}, 0')
        A(f'v_and_b32 {vr(SRA)}, 3, {L}')
        A(f'v_lshlrev_b32 {vr(SRA)}, 2, {vr(SRA)}')
        A(f'v_add_u32 {vr(SRA)}, {SYNCB}, {vr(SRA)}')
    if US:
        sync_regs()
        A(f'ds_write_b32 {vr(SWA)}, {vr(SCNT)}')
        A('s_waitcnt lgkmcnt(0)')
    it1, _ = finalize(build_iter(1, cfg, dma=not US), [], 4)
    emit(A, fix_hazards(it1))
    rec(12)
    emit(A, sum(next_off(), []))
    A('s_mov_b32 s3, 0')
    A('s_mov_b32 s78, 0')
    A('s_mov_b32 s32, 9')
    A('s_cmp_eq_u32 s25, 4')
    A('s_cselect_b32 s83, 1, 0')
    A('s_branch L2_head')
    A.label('L2_hk0')
    hflag_load(A)
    A('s_branch L2_body1')
    A.label('L2_hk1')
    hflag_check(A, 'a'); table_load(A)
    A('s_branch L2_body2')
    A.label('L2_hk2')
    rec(11)
    list_build(A, 'a')
    rec(10)
    A(f'''
    s_sub_u32 s92, s8, 3072
    s_subb_u32 s93, s9, 0
    s_mov_b32 s94, {N*256+3072}
    s_mov_b32 s95, 0x20000
    s_mov_b32 s36, 3072
    s_mov_b32 s37, 2048
    s_mov_b32 s38, 1024
    s_sub_u32 s32, s32, 1
    s_waitcnt lgkmcnt(0)
    ''')
    ops, pe = finalize(build_iter(5, cfg, soft='x3', g_issue=(0, 0)), pend_ss, 4)
    emit(A, ops)
    A.raw('.p2align 6')
    A.label('L2_head')
    if stamp == 2:
        A('s_memrealtime s[96:97]')
        A('s_memtime s[98:99]')
        A('s_waitcnt lgkmcnt(0)')
        A(f'v_cmp_eq_u32 vcc, s32, {vr(LANE)}')
        for sreg, areg in ((96, 252), (98, 253)):
            A(f'v_mov_b32 {vr(T2)}, s{sreg}')
            A(f'v_accvgpr_read_b32 {vr(T3)}, a{areg}')
            A(f'v_cndmask_b32 {vr(T3)}, {vr(T3)}, {vr(T2)}, vcc')
            A(f'v_accvgpr_write_b32 a{areg}, {vr(T3)}')
    A('s_cmp_eq_u32 s32, 1')
    A('s_cbranch_scc1 L2_body0')
    A('s_cmp_lt_u32 s78, s3')
    if 'nog' not in flags: A('s_cbranch_scc1 L2_gbody')
    body = []
    for p in range(4):
        ops, pe = finalize(build_iter(p + 2, cfg, soft=(f'p{p}' if US else None), hookcmp=(p < 3)), pend_ss, 4)
        while pe and not pe[0][0]: pe = pe[1:]
        assert XF or [w for w, _ in pe] == [w for w, _ in pend_ss], (pe, pend_ss)
        body += ops
        if p == 2:
            A('s_cmp_eq_u32 s32, s83')
            A('s_cbranch_scc1 L2_post2')
        A.label(f'L2_body{p}')
        emit(A, ops)
        if p < 3: A(f's_cbranch_scc1 L2_hk{p}')
    if not XF: fix_hazards(body + body, fix=False)
    A('s_sub_u32 s32, s32, 1')
    A('s_cmp_lg_u32 s32, 0')
    A('s_cbranch_scc1 L2_head')
    A('s_branch L2_post')
    A.raw('.p2align 6')
    A.label('L2_gbody')
    gbody = []
    for p in range(4):
        ops, pe = finalize(build_iter(p + 2, cfg, g_issue=(128 * (p + 1), (p + 1) % 2), g_cons=(128 * p, p % 2, 12), soft=(f'g{p}' if US else None)), pend_ss, 12)
        while pe and not pe[0][0]: pe = pe[1:]
        assert XF or [w for w, _ in pe] == [w for w, _ in pend_ss], (pe, pend_ss)
        gbody += ops
        emit(A, ops)
        A('s_add_u32 s78, s78, 1')
        if p < 3:
            A('s_cmp_ge_u32 s78, s3')
            A(f's_cbranch_scc1 L2_body{p+1}')
    if not XF: fix_hazards(gbody + gbody, fix=False); fix_hazards(gbody + body, fix=False); fix_hazards(it1 + gbody, fix=False)
    A(f'v_add_u32 {vr(LPI)}, 512, {vr(LPI)}')
    A(f'v_add_u32 {vr(LPC)}, 512, {vr(LPC)}')
    A('s_sub_u32 s32, s32, 1')
    A('s_cmp_lg_u32 s32, 0')
    A('s_cbranch_scc1 L2_head')
    A.label('L2_post')
    if stamp == 2:
        A('s_memrealtime s[96:97]')
        A('s_memtime s[98:99]')
        A('s_waitcnt lgkmcnt(0)')
        A(f'v_cmp_eq_u32 vcc, s32, {vr(LANE)}')
        for sreg, areg in ((96, 252), (98, 253)):
            A(f'v_mov_b32 {vr(T2)}, s{sreg}')
            A(f'v_accvgpr_read_b32 {vr(T3)}, a{areg}')
            A(f'v_cndmask_b32 {vr(T3)}, {vr(T3)}, {vr(T2)}, vcc')
            A(f'v_accvgpr_write_b32 a{areg}, {vr(T3)}')
    def store_setup():
        srd(A, 12, 4, WS_W23, 65536)
        A('s_lshl_b32 s33, s26, 14')
        A(f'v_lshlrev_b32 {vr(T5)}, 4, {L}')
        A(f'''
        s_mul_i32 s40, s25, {784*4096}
        s_add_u32 s40, s40, s35
        s_add_u32 s41, s40, 4096
        s_add_u32 s42, s40, 8192
        s_add_u32 s43, s40, 12288
        ''')
    def store_ops(w, q):
        d = 128 + 4 * (w * 4 + q) if False else SBUF + 4 * ((w * 4 + q) % 8)
        ops = []
        for h in range(2):
            b = O(2 * w + h, q)
            ops.append(Op(f'v_cvt_pk_bf16_f32 {vr(d+2*h)}, {vr(b)}, {vr(b+1)}', 'valu', rd=regs('v', b, 2), wr=[('v', d+2*h)]))
            ops.append(Op(f'v_cvt_pk_bf16_f32 {vr(d+2*h+1)}, {vr(b+2)}, {vr(b+3)}', 'valu', rd=regs('v', b+2, 2), wr=[('v', d+2*h+1)]))
        ops.append(Op(f'buffer_store_dwordx4 {vr(d,4)}, {vr(T5)}, s[16:19], s{40+q} offen offset:{w*1024}{TSC}', 'vmem'))
        return ops
    def lm_stores():
        A(f'''
        v_and_b32 {vr(T4)}, 15, {L}
        v_lshlrev_b32 {vr(T4)}, 3, {vr(T4)}
        s_mul_i32 s36, s25, {NPAD*8}
        s_lshl_b32 s37, s34, 7
        s_add_u32 s36, s36, s37
        s_add_u32 s36, s36, {WS_L-WS_BND}
        ''')
        for q in range(4):
            A(f'v_mov_b32 {vr(O(7,q)+2)}, {vr(O(7,q)+3)}')
            A(f'v_mov_b32 {vr(O(7,q)+3)}, {vr(T0+q)}')
        A('s_mov_b32 exec_lo, 0')
        A('s_mov_b32 exec_hi, 0xffff0000')
        for q in range(4):
            A(f'buffer_store_dwordx2 {vr(O(7,q)+2,2)}, {vr(T4)}, s[20:23], s36 offen offset:{128*q}{TSC}')
        A('s_mov_b64 exec, -1')
    def issue_ops(off, buf):
        ops = g_issue_reads(off)
        for k in range(8): ops += g_issue_dma(k, buf)
        return ops
    def consume_ops(off, buf, vm):
        ops = g_sel1(off) + g_sel2() + g_sel3()
        if vm is not None: ops.append(op_s(f's_waitcnt vmcnt({vm})'))
        ops += [g_tr(dt, x, buf) for dt in range(8) for x in range(2)] + [g_mfma(dt) for dt in range(8)]
        return ops
    def emit_g(ops):
        ops, pe = finalize(ops, [], 0)
        emit(A, fix_hazards(ops))
    def set_ptrs():
        A(f'''
        s_lshl_b32 s33, s78, 7
        s_add_u32 s33, s33, s73
        v_lshrrev_b32 {vr(LPI)}, 4, {L}
        v_lshl_add_u32 {vr(LPI)}, {vr(LPI)}, 2, s33
        v_and_b32 {vr(LPC)}, 31, {L}
        v_lshl_add_u32 {vr(LPC)}, {vr(LPC)}, 2, s33
        ''')
    def post(i0):
        set_ptrs()
        store_setup()
        it38, pe = finalize(build_iter(i0, cfg, nqk=8, next_k=False, next_v_us=(0,), bar=False, dma=False, g_issue=(128, 1)), pend_ss, 4)
        last, _ = finalize(build_iter(i0 + 1, cfg, nqk=0, pv_us=(0,), next_k=False, next_v_us=(), bar=False, dma=False, prev_tile=None), pe, 4)
        lastb = []
        nm = 0
        pendst = [(w, q) for w in range(3) for q in range(4)]
        for o in last:
            lastb.append(o)
            if o.kind == 'mfma':
                nm += 1
                if pendst and nm >= 8 * (pendst[0][0] + 1) + 2 and nm % 2 == 0:
                    lastb += store_ops(*pendst.pop(0))
        rest = []
        for wq in pendst + [(3, q) for q in range(4)]:
            rest += store_ops(*wq)
        emit(A, fix_hazards(body[-40:] + it38 + lastb + rest)[40:])
        st(4)
        A(f'v_mov_b32 {vr(T0)}, 0\nv_mov_b32 {vr(T1)}, 0\nv_mov_b32 {vr(T2)}, 0\nv_mov_b32 {vr(T3)}, 0')
    post(38)
    A('s_branch L2_lm')
    A.label('L2_post2')
    post(36)
    A('s_branch L2_lm')
    def generic_loop(tag, bound_sreg):
        A.label(f'L2_left{tag}')
        A(f's_cmp_ge_u32 s78, s{bound_sreg}')
        A(f's_cbranch_scc1 L2_leftdone{tag}')
        emit_g(issue_ops(0, 0) + consume_ops(0, 0, 0))
        A(f'v_add_u32 {vr(LPI)}, 128, {vr(LPI)}')
        A(f'v_add_u32 {vr(LPC)}, 128, {vr(LPC)}')
        A('s_add_u32 s78, s78, 1')
        A(f's_branch L2_left{tag}')
        A.label(f'L2_leftdone{tag}')
    A.label('L2_store')
    generic_loop('s', 3)
    emit_g(issue_ops(0, 0) + issue_ops(128, 1))
    store_setup()
    allst = []
    for w in range(4):
        for q in range(4): allst += store_ops(w, q)
    emit(A, allst)
    A.label('L2_lm')
    lm_stores()
    hflag_load(A, 4, 49, TB)
    emit_g(consume_ops(0, 0, 21) + consume_ops(128, 1, None))
    A('s_waitcnt vmcnt(0)')
    A('s_barrier')
    st(5)
    A(f'''
    s_lshl_b32 s40, s24, 8
    s_add_u32 s40, s40, {WS_FLAG-WS_BND+FOFF}
    s_cmp_lg_u32 s26, 0
    s_cbranch_scc1 L2_noflag
    s_lshl_b32 s41, s25, 2
    v_mov_b32 {vr(T0)}, s41
    v_mov_b32 {vr(T1)}, 1
    s_mov_b64 exec, 1
    buffer_store_dword {vr(T1)}, {vr(T0)}, s[20:23], s40 offen{FSC}
    s_mov_b64 exec, -1
    ''')
    A.label('L2_noflag')
    hflag_check(A, 'w', TB)
    A('s_cmp_eq_u32 s82, 1')
    A('s_cbranch_scc1 L2_owner')
    for ops in w23_dma_ops(): emit(A, ops)
    A('s_waitcnt vmcnt(0)')
    A('s_barrier')
    A('s_branch L2_exit')
    A.label('L2_owner')
    if RT == 4: emit_g(issue_ops(256, 0) + issue_ops(384, 1))
    A(f'''
    v_min_u32 v8, 4, {L}
    v_lshlrev_b32 v8, 2, v8
    buffer_load_dword v9, v8, s[20:23], s40 offen sc1
    ''')
    X, DI = 106, 122
    srd(A, 68, 6, 0, N*256)
    srd(A, 88, 84, 0, N*2)
    srd(A, 92, 86, 0, N*256)
    A(f'''
    s_lshl_b32 s36, s72, 12
    v_and_b32 v1, 15, {L}
    v_lshrrev_b32 v2, 4, {L}
    v_lshlrev_b32 v6, 8, v1
    v_lshl_add_u32 v6, v2, 4, v6
    v_lshlrev_b32 v7, 1, v1
    s_lshl_b32 s37, s72, 5
    ''')
    A(f'buffer_load_ushort {vr(DI)}, v7, s[88:91], s37 offen')
    for ops in w23_dma_ops(): emit(A, ops)
    for w in range(4):
        A(f'buffer_load_dwordx4 {vr(X+4*w,4)}, v6, s[68:71], s36 offen offset:{w*64}')
    BF = 128
    HV = 176
    OPR, LM = 16, 96
    YR = [160, 164, 168, 172, 208, 212, 216, 124]
    WB = [0, 32]
    def part_loads():
        st(6)
        A(f's_lshl_b32 s38, s72, 7')
        A('s_lshl_b32 s36, s72, 12')
        for s in range(5):
            A(f's_add_u32 s39, s38, {s*NPAD*8+WS_L-WS_BND}')
            A(f'buffer_load_dwordx2 {vr(LM+2*s,2)}, v5, s[20:23], s39 offen sc1')
        for s in range(5):
            if s > 0: A(f's_add_u32 s39, s36, {s*784*4096}')
            for w in range(4):
                A(f'buffer_load_dwordx4 {vr(OPR+16*s+4*w,4)}, {vr(T5)}, s[16:19], s{36 if s == 0 else 39} offen offset:{w*1024} sc1')
        A('s_mov_b32 s83, 1')
    def poll(): A('buffer_load_dword v9, v8, s[20:23], s40 offen sc1')
    def check(tag):
        if tag == 1:
            A('s_waitcnt vmcnt(25)')
            A('s_cmp_eq_u32 s83, 1')
            A(f's_cbranch_scc1 L2_ck{tag}')
        A('s_waitcnt vmcnt(0)' if tag == 1 else 's_waitcnt vmcnt(20)')
        A('v_cmp_ne_u32 vcc, 1, v9')
        A(f's_cbranch_vccz L2_ckgo{tag}')
        poll()
        A(f's_branch L2_ck{tag}')
        A.label(f'L2_ckgo{tag}')
        part_loads()
        A.label(f'L2_ck{tag}')
    def gemm_half(k0, first):
        def wreads(p):
            for e in range(2):
                for ks in range(4):
                    A(f'ds_read_b128 {ar(WB[p%2]+16*e+4*ks,4)}, {vr(T5)} offset:{((2*p+e)*8+k0+ks)*1024}')
        if first: wreads(0)
        for p in range(4):
            if p < 3: wreads(p + 1)
            A(f's_waitcnt lgkmcnt({8 if p < 3 else 0})')
            for e in range(2):
                y = YR[2*p+e]
                for ks in range(4):
                    c = '0' if (first and ks == 0) else vr(y, 4)
                    A(f'v_mfma_f32_16x16x32_bf16 {vr(y,4)}, {ar(WB[p%2]+16*e+4*ks,4)}, {vr(BF+4*(k0+ks),4)}, {c}')
        return wreads
    A(f'''
    v_lshlrev_b32 v5, 3, v1
    s_mov_b32 s83, 0
    ''')
    if RT == 4:
        check(0)
        emit_g(consume_ops(256, 0, None) + consume_ops(384, 1, None))
    else:
        A('s_waitcnt vmcnt(20)')
    A.label('L2_more')
    A(f'''
    v_lshrrev_b32 {vr(T0)}, 16, {vr(TW)}
    v_cmp_ne_u32 vcc, 0, {vr(T0)}
    s_cbranch_vccz L2_nomore
    ''')
    list_build(A, 'b')
    A('s_waitcnt vmcnt(0) lgkmcnt(0)')
    generic_loop('b', 77)
    A('s_branch L2_more')
    A.label('L2_nomore')
    A(f'v_lshlrev_b32 {vr(DI)}, 16, {vr(DI)}')
    A('s_nop 3')
    for k in range(32):
        A(f'v_accvgpr_read_b32 {vr(HV+k)}, {ar(HS+k)}')
    for k in range(32):
        A(f'v_mul_f32 {vr(HV+k)}, {vr(HV+k)}, {vr(DI)}')
    for k in range(16):
        A(f'v_cvt_pk_bf16_f32 {vr(BF+16+k)}, {vr(HV+2*k)}, {vr(HV+2*k+1)}')
    check(1)
    A('s_barrier')
    gemm_half(4, True)
    A('s_cmp_eq_u32 s83, 1')
    A('s_cbranch_scc1 L2_comb')
    A(f's_mov_b32 s42, {SPINB}')
    A.label('L2_spin')
    A(f'''
    s_waitcnt vmcnt(0)
    v_cmp_ne_u32 vcc, 1, v9
    s_cbranch_vccz L2_go
    s_sub_u32 s42, s42, 1
    s_cmp_eq_u32 s42, 0
    s_cbranch_scc1 L2_go
    s_sleep 1
    ''')
    poll()
    A('s_branch L2_spin')
    A.label('L2_go')
    part_loads()
    A.label('L2_comb')
    for e in range(2):
        for ks in range(4):
            A(f'ds_read_b128 {ar(WB[0]+16*e+4*ks,4)}, {vr(T5)} offset:{(e*8+ks)*1024}')
    A('s_lshl_b32 s36, s72, 12')
    LL = [LM + 2 * s for s in range(5)]
    MM = [LM + 2 * s + 1 for s in range(5)]
    A('s_waitcnt vmcnt(20)')
    A(f'v_max3_f32 v7, {vr(MM[0])}, {vr(MM[1])}, {vr(MM[2])}')
    A(f'v_max3_f32 v7, v7, {vr(MM[3])}, {vr(MM[4])}')
    for s in range(5): A(f'v_sub_f32 {vr(MM[s])}, {vr(MM[s])}, v7')
    for s in range(5): A(f'v_exp_f32 {vr(MM[s])}, {vr(MM[s])}')
    A('s_nop 0')
    A(f'v_mul_f32 v7, {vr(MM[0])}, {vr(LL[0])}')
    for s in range(1, 5): A(f'v_fmac_f32 v7, {vr(MM[s])}, {vr(LL[s])}')
    A('v_rcp_f32 v7, v7')
    for s in range(5):
        A(f'v_lshrrev_b32 {vr(LL[s])}, 16, {vr(MM[s])}')
        A(f'v_and_b32 {vr(MM[s])}, 0xffff0000, {vr(MM[s])}')
    G = 176
    for s in range(5):
        A(f's_waitcnt vmcnt({16-4*s})')
        for k in range(16):
            src = OPR + 16 * s + k
            c0 = '0' if s == 0 else vr(G + 2 * k)
            c1 = '0' if s == 0 else vr(G + 2 * k + 1)
            A(f'v_dot2_f32_bf16 {vr(G+2*k)}, {vr(src)}, {vr(LL[s])}, {c0}')
            A(f'v_dot2_f32_bf16 {vr(G+2*k+1)}, {vr(src)}, {vr(MM[s])}, {c1}')
    st(7)
    A('s_nop 2')
    for k in range(32): A(f'v_mul_f32 {vr(G+k)}, {vr(G+k)}, v7')
    for k in range(16): A(f'v_cvt_pk_bf16_f32 {vr(BF+k)}, {vr(G+2*k)}, {vr(G+2*k+1)}')
    gemm_half(0, False)
    A('s_nop 7')
    for w in range(4):
        for i in range(4):
            xr = X + 4 * w + i
            y = YR[2 * w + i // 2] + 2 * (i % 2)
            A(f'v_lshlrev_b32 v7, 16, {vr(xr)}')
            A(f'v_and_b32 v8, 0xffff0000, {vr(xr)}')
            A(f'v_add_f32 v7, v7, {vr(y)}')
            A(f'v_add_f32 v8, v8, {vr(y+1)}')
            A(f'v_cvt_pk_bf16_f32 {vr(xr)}, v7, v8')
        A(f'buffer_store_dwordx4 {vr(X+4*w,4)}, v6, s[92:95], s36 offen offset:{w*64}{OUTSC}')
    A.label('L2_exit')
    if stamp:
        A('s_waitcnt vmcnt(0)')
        st(8)
        A('s_waitcnt lgkmcnt(0)')
        for i in range(10): A(f'v_mov_b32 {vr(i)}, s{44+2*i}')
        A(f's_lshl_b32 s40, s2, 2')
        A(f's_add_u32 s40, s40, s26')
        A(f's_lshl_b32 s40, s40, 6')
        A(f's_add_u32 s40, s40, {WS_STAMP-WS_BND}')
        A(f's_mov_b32 s22, 0x7fffffff')
        if stamp == 2:
            A(f's_lshl_b32 s41, s2, 2')
            A(f's_add_u32 s41, s41, s26')
            A(f's_lshl_b32 s41, s41, 7')
            A(f's_add_u32 s41, s41, {WS_STAMP-WS_BND+0x80000}')
            A(f'v_lshlrev_b32 v20, 2, {vr(LANE)}')
            A(f's_mov_b64 exec, 0xffff')
            A(f'buffer_store_dword a252, v20, s[20:23], s41 offen')
            A(f'buffer_store_dword a253, v20, s[20:23], s41 offen offset:64')
            A(f's_mov_b64 exec, -1')
        A(f'v_mov_b32 v20, 0')
        A(f'v_mov_b32 v10, s82')
        A(f'v_mov_b32 v11, s77')
        A(f's_mov_b64 exec, 1')
        for i in range(3):
            A(f'buffer_store_dwordx4 v[{4*i}:{4*i+3}], v20, s[20:23], s40 offen offset:{16*i}')
    if stamp == 3:
        A('s_mov_b64 exec, -1')
        srd(A, 96, 100, 0, 256)
        A('s_cmp_lg_u32 s26, 0')
        A('s_cbranch_scc1 L2_done')
        A('s_mov_b32 s40, 0x1000')
        for i, w in enumerate((16, 20, 23)):
            A(f's_cmp_eq_u32 s2, {w}')
            A(f's_cselect_b32 s40, {16+16*i}, s40')
        A('v_mov_b32 v0, s44\nv_mov_b32 v1, s50\nv_mov_b32 v2, s52\nv_mov_b32 v3, s60\nv_mov_b32 v20, 0')
        A('s_mov_b64 exec, 1')
        A('buffer_store_dwordx4 v[0:3], v20, s[96:99], s40 offen')
    A.label('L2_done')
    A('s_endpgm')
    for nm in SPINS:
        A.label(f'L2_sp{nm}')
        A('s_mov_b32 s41, 0x40000')
        A.label(f'L2_spl{nm}')
        A(f'''
        {SPSLEEP}
        ds_read_b32 {vr(SRD_)}, {vr(SRA)}
        s_sub_u32 s41, s41, 1
        s_cmp_eq_u32 s41, 0
        s_cbranch_scc1 L2_spr{nm}
        s_waitcnt lgkmcnt(0)
        v_cmp_lt_u32 vcc, {vr(SRD_)}, {vr(SCNT)}
        s_cbranch_vccnz L2_spl{nm}
        s_branch L2_spr{nm}
        ''')
    gen_slow(A)
    phase_a.helpers(A)

def gen_slow(A):
    L = vr(LANE)
    A.label('L2_slow')
    full_check_issue(A, E8, E8+6)
    flags_spin(A, 's', E8, E8+6, 's_waitcnt vmcnt(0) lgkmcnt(0)')
    hflag_load(A)
    A('s_waitcnt vmcnt(0)')
    hflag_check(A, 's')
    table_load(A)
    A('s_waitcnt vmcnt(0)')
    list_build(A, 's')
    A('s_waitcnt vmcnt(0) lgkmcnt(0)')
    MX = [T0, T1, T2, T3]
    for q in range(4): A(f'v_mov_b32 {vr(MX[q])}, 0xf149f2ca')
    for r in range(128): A(f'v_mov_b32 {vr(r)}, 0')
    A(f'''
    s_mul_i32 s27, s25, {SPLITB}
    s_mul_i32 s40, s25, {79*32}
    s_add_u32 s41, s40, {79*32}
    s_min_u32 s41, s41, {N}
    v_lshrrev_b32 {vr(T4)}, 4, {L}
    v_lshlrev_b32 {vr(T4)}, 2, {vr(T4)}
    v_add_u32 {vr(T4)}, s40, {vr(T4)}
    s_mov_b32 s32, 40
    v_mov_b32 {vr(T5)}, 0xff800000
    ''')
    def S(kt, q): return 128 + 8 * ((kt // 2) * 4 + q) + 4 * (kt % 2)
    A.label('L2_sloop')
    A('s_barrier')
    A('s_mov_b32 m0, s28')
    A('s_nop 0')
    for k in range(4): A(op_dma(k).text)
    A('s_add_u32 s27, s27, 16384')
    A('s_waitcnt vmcnt(0)')
    A('s_barrier')
    for kt in range(4):
        for s in range(4):
            A(f'ds_read_b128 {ar(KF+4*s,4)}, {vr(KADDR+s)} offset:{kt*4096}')
        A('s_waitcnt lgkmcnt(0)')
        for q in range(4):
            for s in range(4):
                d = S(kt, q)
                A(f'v_mfma_f32_16x16x32_bf16 {vr(d,4)}, {ar(KF+4*s,4)}, {ar(QF+4*(q*4+s),4)}, {"0" if s == 0 else vr(d,4)}')
    A('s_nop 7')
    for kt in range(4):
        for r in range(4):
            A(f'v_add_u32 {vr(192)}, {16*kt+r}, {vr(T4)}')
            A(f'v_cmp_gt_u32 vcc, s41, {vr(192)}')
            A('s_nop 1')
            for q in range(4):
                A(f'v_cndmask_b32 {vr(S(kt,q)+r)}, {vr(T5)}, {vr(S(kt,q)+r)}, vcc')
    A(f'v_add_u32 {vr(T4)}, 64, {vr(T4)}')
    a, b, al = 192, 193, 194
    for q in range(4):
        vals = [S(kt, q) + r for kt in range(4) for r in range(4)]
        A(f'v_max_f32 {vr(a)}, {vr(vals[0])}, {vr(vals[1])}')
        for k in range(2, 16, 2):
            A(f'v_max3_f32 {vr(a)}, {vr(a)}, {vr(vals[k])}, {vr(vals[k+1])}')
        A(f'''
        v_mov_b32 {vr(b)}, {vr(a)}
        s_nop 1
        v_permlane16_swap_b32 {vr(a)}, {vr(b)}
        v_max_f32 {vr(a)}, {vr(a)}, {vr(b)}
        v_mov_b32 {vr(b)}, {vr(a)}
        s_nop 1
        v_permlane32_swap_b32 {vr(a)}, {vr(b)}
        v_max_f32 {vr(a)}, {vr(a)}, {vr(b)}
        v_ceil_f32 {vr(a)}, {vr(a)}
        v_max_f32 {vr(a)}, {vr(a)}, {vr(MX[q])}
        v_sub_f32 {vr(al)}, {vr(MX[q])}, {vr(a)}
        v_exp_f32 {vr(al)}, {vr(al)}
        v_mov_b32 {vr(MX[q])}, {vr(a)}
        ''')
        for v in vals:
            A(f'v_sub_f32 {vr(v)}, {vr(v)}, {vr(a)}')
        for v in vals:
            A(f'v_exp_f32 {vr(v)}, {vr(v)}')
        for dt in range(8):
            for r in range(4):
                A(f'v_mul_f32 {vr(O(dt,q)+r)}, {vr(O(dt,q)+r)}, {vr(al)}')
        for u in range(2):
            base = S(2 * u, q)
            for i in range(4):
                A(f'v_cvt_pk_bf16_f32 {vr(base+i)}, {vr(base+2*i)}, {vr(base+2*i+1)}')
    for dt in range(8):
        for u in range(2):
            for x in range(2):
                A(f'ds_read_b64_tr_b16 {ar(VF+4*u+2*x,2)}, {vr(VADDR+dt)} offset:{u*8192+x*4096}')
        A('s_waitcnt lgkmcnt(0)')
        for q in range(4):
            for u in range(2):
                A(f'v_mfma_f32_16x16x32_bf16 {vr(O(dt,q),4)}, {ar(VF+4*u,4)}, {vr(S(2*u,q),4)}, {vr(O(dt,q),4)}')
    A('s_nop 7')
    A('s_sub_u32 s32, s32, 1')
    A('s_cmp_lg_u32 s32, 0')
    A('s_cbranch_scc1 L2_sloop')
    A('s_branch L2_store')
```

```python
from asmlib import *
from layout import *
from k1 import srd, red_g, bcast_g3, wave_scan_incl, f32bits, BETA, CSC
import math
HSTAMP = False

def weights_dma(A, swave, srd0, srd1, par1):
    A(f'''
    v_lshlrev_b32 v5, 1, v3
    v_xor_b32 v5, v5, v2
    v_lshlrev_b32 v5, 4, v5
    v_lshl_add_u32 v5, v3, 8, v5
    v_xor_b32 v6, 0x80, v5
    s_lshl_b32 s36, s{swave}, 13
    s_add_u32 s37, s36, 4096
    ''')
    for mat, sd in enumerate((srd0, srd1)):
        for half in range(2):
            A(f's_add_u32 m0, s{36+half}, {mat*32768}')
            A('s_nop 0')
            for ii in range(4):
                sel = (ii >> 1) if mat == 0 else par1(ii)
                A(f'buffer_load_dwordx4 {"v6" if sel else "v5"}, s[{sd}:{sd+3}], s{36+half} offen offset:{ii*1024} lds')

def owner_x_loads(A):
    A('s_lshl_b32 s38, s72, 12')
    A('v_lshlrev_b32 v4, 8, v2')
    A('v_lshl_add_u32 v4, v3, 4, v4')
    for s in range(4):
        A(f'buffer_load_dwordx4 {vr(8+4*s,4)}, v4, s[68:71], s38 offen offset:{64*s}')

def owner_compute(A, st):
    X = 8; F = 32; S, T = 24, 25
    A('s_waitcnt vmcnt(16)')
    for k in range(16):
        A(f'v_lshlrev_b32 {vr(F+2*k)}, 16, {vr(X+k)}')
        A(f'v_and_b32 {vr(F+2*k+1)}, 0xffff0000, {vr(X+k)}')
    def sum32(base, sq=False):
        if sq:
            A(f'v_mul_f32 {vr(S)}, {vr(base)}, {vr(base)}')
            A(f'v_mul_f32 {vr(26)}, {vr(base+1)}, {vr(base+1)}')
            for k in range(2, 32, 2):
                A(f'v_fmac_f32 {vr(S)}, {vr(base+k)}, {vr(base+k)}')
                A(f'v_fmac_f32 {vr(26)}, {vr(base+k+1)}, {vr(base+k+1)}')
        else:
            A(f'v_add_f32 {vr(S)}, {vr(base)}, {vr(base+1)}')
            A(f'v_add_f32 {vr(26)}, {vr(base+2)}, {vr(base+3)}')
            for k in range(4, 32, 2):
                A(f'v_add_f32 {vr(S)}, {vr(S)}, {vr(base+k)}')
                A(f'v_add_f32 {vr(26)}, {vr(26)}, {vr(base+k+1)}')
        A(f'v_add_f32 {vr(S)}, {vr(S)}, {vr(26)}')
        red_g(A, S, T)
    sum32(F)
    A(f'v_mul_f32 {vr(S)}, {hex(f32bits(1/128))}, {vr(S)}')
    for k in range(32): A(f'v_sub_f32 {vr(F+k)}, {vr(F+k)}, {vr(S)}')
    sum32(F, True)
    A(f'v_mov_b32 {vr(T)}, {hex(f32bits(1e-5))}')
    A(f'v_fmac_f32 {vr(T)}, {hex(f32bits(1/128))}, {vr(S)}')
    A(f'v_rsq_f32 {vr(S)}, {vr(T)}')
    A('s_nop 0')
    for k in range(32): A(f'v_mul_f32 {vr(F+k)}, {vr(F+k)}, {vr(S)}')
    HB = 8
    for k in range(16): A(f'v_cvt_pk_bf16_f32 {vr(HB+k)}, {vr(F+2*k)}, {vr(F+2*k+1)}')
    bcast_g3(A, S, F+31, T)
    A(f'v_mul_f32 {vr(S)}, {hex(f32bits(BETA))}, {vr(S)}')
    for k in range(32): A(f'v_add_f32 {vr(F+k)}, {vr(F+k)}, {vr(S)}')
    A(f'v_cmp_eq_u32 vcc, 3, v3')
    A('s_nop 1')
    A(f'v_cndmask_b32 {vr(F+31)}, {vr(F+31)}, 1.0, vcc')
    H = 64
    for k in range(16): A(f'v_cvt_pk_bf16_f32 {vr(H+k)}, {vr(F+2*k)}, {vr(F+2*k+1)}')
    A('''
    v_and_b32 v26, 7, v2
    v_lshlrev_b32 v26, 1, v26
    v_xor_b32 v26, v26, v3
    v_lshlrev_b32 v27, 8, v2
    ''')
    for s in range(4):
        A(f'v_xor_b32 v28, {4*s}, v26')
        A(f'v_lshl_add_u32 {vr(80+s)}, v28, 4, v27')
        A(f'buffer_store_dwordx4 {vr(H+4*s,4)}, {vr(80+s)}, s[8:11], s38 offen sc1')
    A('''
    v_bfe_u32 v26, v0, 2, 2
    v_and_b32 v27, 1, v3
    v_lshl_add_u32 v27, v27, 2, v26
    v_lshlrev_b32 v27, 1, v27
    v_and_b32 v28, 3, v0
    v_xor_b32 v27, v27, v28
    v_lshl_add_u32 v26, v3, 3, v26
    v_lshlrev_b32 v26, 8, v26
    ''')
    TA_ = 84
    for w in range(4):
        A(f'v_xor_b32 v28, {4*w}, v27')
        A(f'v_lshl_add_u32 {vr(TA_+w)}, v28, 4, v26')
    A('''
    v_lshrrev_b32 v26, 2, v2
    v_lshlrev_b32 v26, 3, v26
    v_and_b32 v28, 3, v2
    v_add_u32 v26, v26, v28
    v_lshlrev_b32 v26, 8, v26
    v_and_b32 v27, 7, v2
    v_lshlrev_b32 v27, 1, v27
    v_xor_b32 v27, v27, v3
    ''')
    TB_ = 88
    for w in range(4):
        A(f'v_xor_b32 v28, {4*w}, v27')
        A(f'v_lshl_add_u32 {vr(TB_+w)}, v28, 4, v26')
    A('s_waitcnt vmcnt(4)')
    A('s_barrier')
    AC = 96; AF = 0
    def g1_reads(et):
        for s in range(4):
            for x in range(2):
                A(f'ds_read_b64_tr_b16 {ar(AF+16*et+4*s+2*x,2)}, {vr(TA_+et//2)} offset:{s*8192+x*1024+8*(et%2)}')
    g1_reads(0); g1_reads(1)
    for et in range(8):
        A(f's_waitcnt lgkmcnt({8 if et < 7 else 0})')
        for s in range(4):
            c = '0' if s == 0 else vr(AC+4*et, 4)
            A(f'v_mfma_f32_16x16x32_bf16 {vr(AC+4*et,4)}, {ar(AF+16*et+4*s,4)}, {vr(HB+4*s,4)}, {c}')
        if et + 2 < 8: g1_reads(et + 2)
    def g2_reads(dt):
        for w in range(4):
            A(f'ds_read_b128 {ar(AF+16*dt+4*w,4)}, {vr(TB_+w)} offset:{32768+(dt//2)*8192+(dt%2)*1024}')
    g2_reads(0); g2_reads(1); g2_reads(2)
    QB = 8
    for w in range(4):
        for h in range(2):
            b = AC + 4 * (2 * w + h)
            A(f'v_cvt_pk_bf16_f32 {vr(QB+4*w+2*h)}, {vr(b)}, {vr(b+1)}')
            A(f'v_cvt_pk_bf16_f32 {vr(QB+4*w+2*h+1)}, {vr(b+2)}, {vr(b+3)}')
    TC = 32
    A('s_nop 1')
    for dt in range(8):
        rem = min(2, 7 - dt)
        A(f's_waitcnt lgkmcnt({4*rem})')
        for w in range(4):
            c = '0' if w == 0 else vr(TC+4*dt, 4)
            A(f'v_mfma_f32_16x16x32_bf16 {vr(TC+4*dt,4)}, {ar(AF+16*dt+4*w,4)}, {vr(QB+4*w,4)}, {c}')
        if dt + 3 < 8: g2_reads(dt + 3)
    A('s_nop 7')
    sum32(TC)
    bcast_g3(A, 26, TC+31, T)
    A(f'v_mul_f32 {vr(S)}, {hex(f32bits(1/math.sqrt(128)))}, {vr(S)}')
    A(f'v_sub_f32 {vr(S)}, {vr(26)}, {vr(S)}')
    A(f'v_mul_f32 {vr(S)}, {hex(f32bits(BETA*CSC))}, {vr(S)}')
    A(f's_mov_b32 s33, {hex(f32bits(CSC))}')
    for k in range(32): A(f'v_fma_f32 {vr(TC+k)}, {vr(TC+k)}, s33, {vr(S)}')
    A(f'v_cndmask_b32 {vr(TC+31)}, {vr(TC+31)}, 0, vcc')
    A(f'v_lshlrev_b32 v27, 4, v0')
    for w in range(4):
        for i in range(4):
            A(f'v_cvt_pk_bf16_f32 {vr(8+4*w+i)}, {vr(TC+8*w+2*i)}, {vr(TC+8*w+2*i+1)}')
        A(f'buffer_store_dwordx4 {vr(8+4*w,4)}, v27, s[12:15], s38 offen offset:{w*1024} sc1')
    sum32(TC, True)
    A('''
    s_lshl_b32 s33, s72, 6
    v_lshlrev_b32 v27, 2, v2
    s_mov_b64 exec, 0xffff
    ''')
    A(f'buffer_store_dword {vr(S)}, v27, s[20:23], s33 offen sc1')
    A('s_mov_b64 exec, -1')

def helper_bin(A):
    A.label('L_hbin')
    D = 16
    A(f'''
    s_load_dwordx4 s[24:27], s[0:1], 8
    s_mul_i32 s36, s34, {CHB*4}
    v_lshlrev_b32 v1, 4, v30
    v_mov_b32 v200, v30
    v_mov_b32 v4, 0
    v_mov_b32 v5, 0
    v_mov_b32 v6, 0
    v_mov_b32 v7, 0
    v_mov_b32 v8, 0x7ffffff0
    v_mov_b32 v9, 0x7ffffff0
    v_mov_b32 v10, 0x7ffffff0
    v_mov_b32 v11, 0x7ffffff0
    s_waitcnt lgkmcnt(0)
    ''')
    srd(A, 8, 24, 0, E*4)
    srd(A, 12, 26, 0, E*4)
    srd(A, 16, 4, WS_TAB, NBIN*64)
    srd(A, 28, 4, WS_EDGE, NH*CHS)
    A('s_mov_b32 s37, s36')
    for k in range(36):
        A(f'buffer_load_dwordx4 {vr(D+4*k,4)}, v1, s[12:15], s37 offen')
        A('s_add_u32 s37, s37, 4096')
    A('s_barrier')
    A('ds_write_b128 v1, v[4:7]')
    A('v_add_u32 v2, 65536, v1')
    A('v_add_u32 v3, 131072, v1')
    for k in range(39):
        off = 4096 + 4096 * k
        A(f'ds_write_b128 {["v1","v2","v3"][off // 65536]}, v[8:11] offset:{off % 65536}')
    A('v_add_u32 v12, s36, v1')
    A('v_lshlrev_b32 v13, 4, v0')
    A('v_add_u32 v13, 12800, v13')
    A('v_mov_b32 v14, 1')
    A('s_waitcnt lgkmcnt(0)')
    A('s_barrier')
    A('s_mov_b32 s37, s36')
    for k in range(36):
        A(f's_waitcnt vmcnt(35)')
        A(f'buffer_load_dwordx4 {ar(4*k,4)}, v1, s[8:11], s37 offen')
        A('s_add_u32 s37, s37, 4096')
        A(f'v_cmp_gt_u32 vcc, {E*4 - k*4096}, v12')
        A('s_nop 1')
        for j in range(4):
            n = 4 * k + j
            A(f'v_cndmask_b32 {vr(D+n)}, v13, {vr(D+n)}, vcc')
            A(f'v_lshrrev_b32 {vr(160+j)}, 4, {vr(D+n)}')
            A(f'v_lshlrev_b32 {vr(160+j)}, 2, {vr(160+j)}')
            A(f'ds_add_u32 {vr(160+j)}, v14')
    A('s_waitcnt lgkmcnt(0)')
    A('s_barrier')
    A('''
    ds_read_b128 v[160:163], v1
    s_waitcnt lgkmcnt(0)
    ''')
    for j in range(4):
        A(f'v_add_u32 {vr(160+j)}, 3, {vr(160+j)}')
        A(f'v_and_b32 {vr(160+j)}, -4, {vr(160+j)}')
    A('''
    v_add_u32 v164, v160, v161
    v_add_u32 v165, v164, v162
    v_add_u32 v166, v165, v163
    v_mov_b32 v167, v166
    ''')
    wave_scan_incl(A, 167)
    A('''
    s_barrier
    s_lshl_b32 s33, s3, 2
    v_mov_b32 v168, s33
    v_cmp_eq_u32 vcc, 63, v0
    s_and_saveexec_b64 s[38:39], vcc
    ds_write_b32 v168, v167 offset:4080
    s_mov_b64 exec, s[38:39]
    s_waitcnt lgkmcnt(0)
    s_barrier
    v_mov_b32 v168, 0
    ds_read_b128 v[172:175], v168 offset:4080
    v_sub_u32 v167, v167, v166
    s_waitcnt lgkmcnt(0)
    v_readfirstlane_b32 s38, v172
    v_readfirstlane_b32 s39, v173
    v_readfirstlane_b32 s40, v174
    s_cmp_gt_u32 s3, 0
    s_cselect_b32 s38, s38, 0
    s_cmp_gt_u32 s3, 1
    s_cselect_b32 s39, s39, 0
    s_cmp_gt_u32 s3, 2
    s_cselect_b32 s40, s40, 0
    s_add_u32 s38, s38, s39
    s_add_u32 s38, s38, s40
    v_add_u32 v176, s38, v167
    v_add_u32 v177, v176, v160
    v_add_u32 v178, v176, v164
    v_add_u32 v179, v176, v165
    v_cmp_gt_u32 vcc, 252, v200
    s_and_saveexec_b64 s[38:39], vcc
    ds_write_b128 v1, v[176:179]
    s_mov_b64 exec, s[38:39]
    v_lshlrev_b32 v168, 8, v200
    s_lshl_b32 s33, s34, 2
    ''')
    for j in range(4):
        A(f'v_lshrrev_b32 {vr(180+j)}, 2, {vr(176+j)}')
        A(f'v_lshl_or_b32 {vr(180+j)}, {vr(160+j)}, 14, {vr(180+j)}')
        A(f'buffer_store_dword {vr(180+j)}, v168, s[16:19], s33 offen offset:{64*j} sc1')
    A('s_waitcnt vmcnt(4) lgkmcnt(0)')
    A('s_barrier')
    for bt in range(18):
        R, EN = 160, 168
        for j in range(8):
            n = 8 * bt + j
            A(f'v_lshrrev_b32 {vr(R+j)}, 4, {vr(D+n)}')
            A(f'v_lshlrev_b32 {vr(R+j)}, 2, {vr(R+j)}')
            A(f'ds_add_rtn_u32 {vr(R+j)}, {vr(R+j)}, v14')
        for j in range(8):
            n = 8 * bt + j
            A(f'v_accvgpr_read_b32 {vr(EN+j)}, {ar(n)}')
            A(f'v_and_b32 v15, 7, {vr(EN+j)}')
            A(f'v_lshlrev_b32 {vr(EN+j)}, 8, {vr(EN+j)}')
            A(f'v_lshl_or_b32 {vr(EN+j)}, v15, 5, {vr(EN+j)}')
            A(f'v_and_or_b32 {vr(EN+j)}, {vr(D+n)}, 15, {vr(EN+j)}')
        A('s_waitcnt lgkmcnt(0)')
        for j in range(8):
            A(f'v_lshlrev_b32 {vr(R+j)}, 2, {vr(R+j)}')
            A(f'ds_write_b32 {vr(R+j)}, {vr(EN+j)} offset:4096')
    A('s_waitcnt lgkmcnt(0)')
    A('s_barrier')
    A(f's_mul_i32 s37, s34, {CHS}')
    for k0 in range(0, 39, 13):
        for k in range(k0, k0 + 13):
            off = 4096 + 4096 * k
            A(f'ds_read_b128 {vr(D+4*(k-k0)+52*((k0//13)%2),4)}, {["v1","v2","v3"][off // 65536]} offset:{off % 65536}')
        for k in range(k0, k0 + 13):
            A(f's_waitcnt lgkmcnt({k0+12-k})')
            A(f'buffer_store_dwordx4 {vr(D+4*(k-k0)+52*((k0//13)%2),4)}, v1, s[28:31], s37 offen sc1')
            A('s_add_u32 s37, s37, 4096')
    A('s_waitcnt vmcnt(0)')
    A('s_barrier')
    A('s_cmp_lg_u32 s3, 0')
    A('s_cbranch_scc1 L_w23')
    A('v_mov_b32 v8, 0')
    ready_spin(A, 'b', 9, 8)
    A(f'''
    s_lshl_b32 s33, s34, 2
    s_add_u32 s33, s33, {50*256}
    v_mov_b32 v9, 1
    s_mov_b64 exec, 1
    buffer_store_dword v9, v8, s[20:23], s33 offen sc1
    ''')
    if HSTAMP:
        A('s_memrealtime s[44:45]')
        A('s_waitcnt lgkmcnt(0)')
        A('v_mov_b32 v9, s44')
        A(f's_add_u32 s33, s33, 256')
        A('buffer_store_dword v9, v8, s[20:23], s33 offen sc1')
    A('s_mov_b64 exec, -1')

def ready_spin(A, tag, vd, vz):
    A('s_mov_b32 s41, 0x20000')
    A.label(f'L_rs{tag}')
    A(f'''
    buffer_load_dword {vr(vd)}, {vr(vz)}, s[96:99], 0 offen sc1
    s_waitcnt vmcnt(0)
    v_cmp_ne_u32 vcc, 1, {vr(vd)}
    s_cbranch_vccz L_rsok{tag}
    s_sub_u32 s41, s41, 1
    s_cmp_lg_u32 s41, 0
    s_cbranch_scc1 L_rs{tag}
    ''')
    A.label(f'L_rsok{tag}')

def helpers(A):
    A.label('L_helper')
    A(f'''
    s_sub_u32 s34, s2, 4
    s_cmp_lt_u32 s2, 8
    s_cselect_b32 s34, s2, s34
    v_lshrrev_b32 v1, 6, v0
    v_mov_b32 v30, v0
    v_and_b32 v0, 63, v0
    v_readfirstlane_b32 s3, v1
    v_mov_b32 v8, 0
    s_waitcnt lgkmcnt(0)
    ''')
    srd(A, 96, 100, 0, 256)
    srd(A, 20, 4, WS_FLAG, 16384)
    A('s_cmp_lg_u32 s2, 0')
    A('s_cbranch_scc1 L_hbin')
    A(f'''
    v_lshrrev_b32 v9, 2, v30
    v_lshlrev_b32 v9, 8, v9
    v_and_b32 v10, 3, v30
    v_lshl_add_u32 v9, v10, 4, v9
    v_mov_b32 v12, 0
    v_mov_b32 v13, 0
    v_mov_b32 v14, 0
    v_mov_b32 v15, 0
    buffer_store_dwordx4 v[12:15], v9, s[20:23], 0 offen sc1
    s_waitcnt vmcnt(0)
    s_barrier
    s_cmp_lg_u32 s3, 0
    s_cbranch_scc1 L_hbin
    v_mov_b32 v9, 1
    s_mov_b64 exec, 1
    buffer_store_dword v9, v8, s[96:99], 0 offen sc1
    s_mov_b64 exec, -1
    ''')
    helper_bin(A)
    A.label('L_w23')
    A('''
    s_sub_u32 s35, s34, 1
    s_cmp_ge_u32 s35, 4
    s_cbranch_scc1 L2_done
    s_load_dwordx2 s[6:7], s[0:1], 64
    s_load_dwordx2 s[24:25], s[0:1], 56
    s_load_dwordx2 s[26:27], s[0:1], 32
    v_and_b32 v2, 15, v0
    v_lshrrev_b32 v3, 4, v0
    s_and_b32 s28, s35, 1
    s_lshr_b32 s29, s35, 1
    v_mov_b32 v8, 0
    s_waitcnt lgkmcnt(0)
    s_cmp_eq_u32 s28, 0
    s_cselect_b32 s24, s24, s26
    s_cselect_b32 s25, s25, s27
    ''')
    srd(A, 8, 6, 0, 32768)
    srd(A, 12, 24, 0, 32768)
    srd(A, 16, 4, WS_W23, 65536)
    weights_dma(A, 3, 8, 12, lambda ii: ii & 1)
    A('''
    v_bfe_u32 v26, v0, 2, 2
    v_and_b32 v27, 1, v3
    v_lshl_add_u32 v27, v27, 2, v26
    v_lshlrev_b32 v27, 1, v27
    v_and_b32 v28, 3, v0
    v_xor_b32 v27, v27, v28
    v_lshl_add_u32 v26, v3, 3, v26
    v_lshlrev_b32 v26, 8, v26
    s_lshl_b32 s33, s3, 2
    v_xor_b32 v28, s33, v27
    v_lshl_add_u32 v7, v28, 4, v26
    s_lshl_b32 s33, s29, 3
    v_add_u32 v7, s33, v7
    v_and_b32 v26, 7, v2
    v_lshlrev_b32 v26, 1, v26
    v_xor_b32 v26, v26, v3
    v_lshlrev_b32 v27, 8, v2
    ''')
    for s in range(4):
        A(f'v_xor_b32 v28, {4*s}, v26')
        A(f'v_lshl_add_u32 {vr(12+s)}, v28, 4, v27')
    A('s_waitcnt vmcnt(0)')
    A('s_barrier')
    AF = 128; BFR = 32; C = 64
    for s in range(4):
        for x in range(2):
            A(f'ds_read_b64_tr_b16 {vr(BFR+4*s+2*x,2)}, v7 offset:{s*8192+x*1024}')
    def areads(dt):
        for s in range(4):
            A(f'ds_read_b128 {vr(AF+16*dt+4*s,4)}, {vr(12+s)} offset:{32768+dt*4096}')
    areads(0); areads(1)
    for dt in range(8):
        if dt + 2 < 8: areads(dt + 2)
        A(f's_waitcnt lgkmcnt({4*min(2, 7-dt)})')
        for s in range(4):
            d = C + 4 * dt
            c = '0' if s == 0 else vr(d, 4)
            A(f'v_mfma_f32_16x16x32_bf16 {vr(d,4)}, {vr(AF+16*dt+4*s,4)}, {vr(BFR+4*s,4)}, {c}')
    A('s_nop 7')
    A('''
    v_cmp_eq_u32 vcc, 3, v3
    v_lshlrev_b32 v27, 4, v0
    s_lshl_b32 s33, s3, 14
    s_lshl_b32 s32, s28, 12
    s_add_u32 s33, s33, s32
    s_lshl_b32 s32, s29, 13
    s_add_u32 s33, s33, s32
    ''')
    b = C
    A(f'v_add_f32 v24, {vr(b)}, {vr(b+1)}')
    A(f'v_add_f32 v29, {vr(b+2)}, {vr(b+3)}')
    for k in range(4, 32, 2):
        A(f'v_add_f32 v24, v24, {vr(b+k)}')
        A(f'v_add_f32 v29, v29, {vr(b+k+1)}')
    A('v_add_f32 v24, v24, v29')
    red_g(A, 24, 25)
    bcast_g3(A, 26, b + 31, 25)
    A(f'v_mul_f32 v24, {hex(f32bits(1/math.sqrt(128)))}, v24')
    A(f'v_sub_f32 v24, v26, v24')
    A(f'v_mul_f32 v24, {hex(f32bits(BETA))}, v24')
    for k in range(32): A(f'v_add_f32 {vr(b+k)}, {vr(b+k)}, v24')
    A(f'v_cndmask_b32 {vr(b+31)}, {vr(b+31)}, 0, vcc')
    for w in range(4):
        o = 128 + 4 * w
        for i in range(4):
            A(f'v_cvt_pk_bf16_f32 {vr(o+i)}, {vr(b+8*w+2*i)}, {vr(b+8*w+2*i+1)}')
        A(f'buffer_store_dwordx4 {vr(o,4)}, v27, s[16:19], s33 offen offset:{w*1024} sc1')
    A('s_waitcnt vmcnt(0)')
    A('s_barrier')
    A('s_cmp_lg_u32 s3, 0')
    A('s_cbranch_scc1 L2_done')
    A(f'''
    s_lshl_b32 s33, s35, 2
    s_add_u32 s33, s33, {49*256}
    v_mov_b32 v9, 1
    s_mov_b64 exec, 1
    buffer_store_dword v9, v8, s[20:23], s33 offen sc1
    s_endpgm
    ''')
```

```python
from asmlib import *
import asmlib
from layout import *
from k1 import srd, wave_scan_incl, f32bits
import re
import phase_a

PB = [128, 160]
SB = 192
KADDR = 208
VADDR = 212
VDMA = 220
LANE = 221
E8 = 222
VADDR2 = 230
PC0, PC1 = 238, 239
LPI, LPC, SELW, SELR, ONE, ETMP = 240, 241, 242, 243, 244, 245
TA, TB, ADA, ADB = 246, 247, 248, 249
T0, T1, T2, T3, T4, T5 = 250, 251, 252, 253, 254, 255
QF, KF, VF = 0, 64, 96
HS, GF, SEL, ZERO, ENT = 128, 160, 192, 196, 200
OFFS = 2
SBUF = 128
CAP = 1024
SPLITB = 79 * 8192
GBASE = 65536
GSIZE = 24576
THRESH = 72.0

XF = ()
HMASK = 0x70FF
HOOKP = 7
SPSLEEP = 's_sleep 1'
SCNT, SWA, SRA, SRD_ = 250, 251, 254, 255
SPINS = []
SYNCB = 65536 + 4992
GMASK = '-16'
GHACK = None
TSC = ' sc1'
FSC = ' sc1'
FOFF = 0
SPINB = 0x20000
LDSC = ' sc1'
OUTSC = ''
def slot(j): return (j + OFFS) % 4
def O(dt, q): return 4 * (dt * 4 + q)

class Op:
    def __init__(self, text, kind, rd=(), wr=(), tag=None):
        self.text, self.kind, self.rd, self.wr, self.tag = text, kind, set(rd), set(wr), tag
def regs(kind, b, n): return [(kind, b + i) for i in range(n)]

def op_qk(n, s):
    kt, q = n // 4, n % 4
    d = SB + 4 * (n % 4)
    a = KF + 16 * (kt % 2) + 4 * s
    b = QF + 4 * (q * 4 + s)
    c = '0' if s == 0 else vr(d, 4)
    return Op(f'v_mfma_f32_16x16x32_bf16 {vr(d,4)}, {ar(a,4)}, {ar(b,4)}, {c}', 'mfma',
              rd=regs('a', a, 4) + regs('a', b, 4), wr=regs('v', d, 4))
def op_pv(pb, dt, q, u, first=False):
    o = O(dt, q)
    a = VF + 8 * (dt % 4) + 4 * u
    p = PB[pb] + 4 * (u * 4 + q)
    return Op(f'v_mfma_f32_16x16x32_bf16 {vr(o,4)}, {ar(a,4)}, {vr(p,4)}, {"0" if first else vr(o,4)}', 'mfma',
              rd=regs('a', a, 4) + regs('v', p, 4), wr=regs('v', o, 4))
def op_kread(j, kt, s):
    a = KF + 16 * (kt % 2) + 4 * s
    return Op(f'ds_read_b128 {ar(a,4)}, {vr(KADDR+s)} offset:{slot(j)*16384+kt*4096}', 'lds', wr=regs('a', a, 4), tag=slot(j))
def op_vread(j, dt, u, x):
    a = VF + 8 * (dt % 4) + 4 * u + 2 * x
    return Op(f'ds_read_b64_tr_b16 {ar(a,2)}, {vr(VADDR+dt)} offset:{slot(j)*16384+u*8192+x*4096}', 'lds', wr=regs('a', a, 2), tag=slot(j))
def op_exp(n, r):
    d = SB + 4 * (n % 4) + r
    return Op(f'v_exp_f32 {vr(d)}, {vr(d)}', 'trans', rd=[('v', d)], wr=[('v', d)])
def op_cvt(pb, n, half):
    kt, q = n // 4, n % 4
    s = SB + 4 * (n % 4) + 2 * half
    d = PB[pb] + 4 * ((kt // 2) * 4 + q) + 2 * (kt % 2) + half
    return Op(f'v_cvt_pk_bf16_f32 {vr(d)}, {vr(s)}, {vr(s+1)}', 'valu', rd=[('v', s), ('v', s + 1)], wr=[('v', d)])
def op_dma(k):
    return Op(f'buffer_load_dwordx4 {vr(VDMA)}, s[8:11], s27 offen offset:{k*1024}{LDSC} lds', 'vmem')
def op_s(text): return Op(text, 'salu')
def next_off():
    return [[op_s('s_add_u32 s27, s27, 16384')], [op_s('s_cmp_eq_u32 s27, s89'), op_s('s_cselect_b32 s27, s88, s27')],
            [op_s('s_cmp_eq_u32 s27, s90'), op_s('s_cselect_b32 s27, s89, s27')]]

def g_issue_reads(loff):
    return [Op(f'ds_read2_b32 {vr(E8+2*i,2)}, {vr(LPI)} offset0:{loff//4+8*i} offset1:{loff//4+8*i+4}', 'lds', wr=regs('v', E8+2*i, 2), tag=-2) for i in range(4)]
def g_issue_dma(i, buf):
    ops = []
    ops.append(op_s(f's_mov_b32 m0, s{74+buf}') if i == 0 else op_s(f's_add_u32 m0, s{74+buf}, {i*1024}'))
    ops.append(Op(f'v_bitop3_b32 {vr(E8+i)}, {vr(E8+i)}, {GMASK}, {vr(PC0 if i%2==0 else PC1)} bitop3:0x6a', 'valu', rd=[('v', E8+i)], wr=[('v', E8+i)]))
    if 'nogdma' not in XF: ops.append(Op(f'buffer_load_dwordx4 {vr(E8+i) if "gsame" not in XF else vr(VDMA)}, s[8:11], 0 offen{LDSC} lds', 'vmem'))
    return ops
def g_issue_dma2(i):
    j = i % 4
    so = ['s36', 's37', 's38', '0'][j]
    return [Op(f'v_bitop3_b32 {vr(E8+i)}, {vr(E8+i)}, -16, {vr(PC0 if i%2==0 else PC1)} bitop3:0x6a', 'valu', rd=[('v', E8+i)], wr=[('v', E8+i)]),
            Op(f'buffer_load_dwordx4 {vr(E8+i)}, s[92:95], {so} offen offset:{j*1024}{LDSC} lds', 'vmem')]
def g_sel1(loff):
    return [Op(f'ds_read_b32 {vr(ETMP)}, {vr(LPC)} offset:{loff}', 'lds', wr=[('v', ETMP)], tag=-2),
            Op(f'ds_write_b128 {vr(SELR)}, {ar(ZERO,4)}', 'lds', tag=-2)]
def g_sel2():
    return [Op(f'v_and_b32 {vr(ETMP)}, 31, {vr(ETMP)}', 'valu', rd=[('v', ETMP)], wr=[('v', ETMP)]),
            Op(f'v_lshl_add_u32 {vr(ETMP)}, {vr(ETMP)}, 6, {vr(SELW)}', 'valu', rd=[('v', ETMP)], wr=[('v', ETMP)])]
def g_sel3():
    return [Op(f'ds_write_b16 {vr(ETMP)}, {vr(ONE)}', 'lds', tag=-2),
            Op(f'ds_read_b128 {ar(SEL,4)}, {vr(SELR)}', 'lds', wr=regs('a', SEL, 4), tag=-2)]
def g_tr(dt, x, buf):
    a = GF + 4 * dt + 2 * x
    return Op(f'ds_read_b64_tr_b16 {ar(a,2)}, {vr(VADDR2+dt)} offset:{buf*8192+x*4096}', 'lds', wr=regs('a', a, 2), tag=-2)
def g_mfma(dt):
    return Op(f'v_mfma_f32_16x16x32_bf16 {ar(HS+4*dt,4)}, {ar(GF+4*dt,4)}, {ar(SEL,4)}, {ar(HS+4*dt,4)}', 'mfma',
              rd=regs('a', GF+4*dt, 4) + regs('a', SEL, 4), wr=regs('a', HS+4*dt, 4))

EE = [['e0'], ['e1'], ['e2'], ['e3']]
GP_OLD = {(0,6):['r0'], (0,7):['r1','r2'], (1,6):['r3'], (2,3):['D0'], (2,7):['D1'], (3,3):['D2'], (3,7):['D3'], (4,3):['D4'], (4,7):['D5'], (5,3):['D6'], (5,7):['D7'],
          (5,6):['sa'], (6,6):['sb'], (6,7):['s2'], (7,7):['s3'], (7,3):['vw','t0'], (7,6):['t1'], (8,3):['t2'], (8,6):['t3'], (9,3):['t4','M0'], (9,6):['t5'], (9,7):['M1'],
          (10,3):['t6','M2'], (10,6):['t7'], (10,7):['M3'], (11,3):['M4'], (11,7):['M5'], (12,3):['M6'], (12,7):['M7']}
GP1 = {(0,7):['r0','r1'], (1,7):['r2'], (2,6):['r3','sa'], (2,7):['D0'], (3,6):['D1'], (3,7):['sb'], (4,7):['D2'], (5,3):['D3'], (6,3):['s2'], (6,7):['D4'],
      (7,3):['D5'], (7,7):['s3'], (8,3):['vw','t0'], (8,5):['t1'], (8,7):['D6'], (9,3):['M0','t2'], (9,7):['M1','t3'], (10,3):['M2','t4'], (10,7):['D7'],
      (11,3):['M3','t5'], (11,7):['M4','t6'], (12,3):['M5','t7'], (13,3):['M6'], (13,7):['M7']}
SOFT = dict(Frd=(0,7), m0=(1,7), Fck=(2,7), Fbr=(3,6), dma=[(4,7),(6,6),(6,7),(7,6)], a1=(5,7), vm=(7,7), wr1=(8,7), Lrd=(10,6), Lck=(11,6), Lbr=(11,7),
            a2=(12,7), wr2=(13,7), sadd3=[(10,7),(14,6),(14,7)])
SOFT['dma_g'] = [(4,7),(5,7),(6,7),(7,6)]
GPS = {(1,7):['km0'], (0,7):['sa'], (2,6):['sb','r0'], (3,3):['s2'], (3,6):['r1'], (3,7):['r2'], (4,3):['s3'], (5,3):['vw','t0'], (5,5):['t1'], (6,3):['M0','t2'], (6,5):['M1','t3'],
     (7,3):['M2','t4'], (7,5):['M3','t5'], (8,3):['M4','t6','gm0a'], (8,5):['M5','t7'], (8,7):['r3'], (9,3):['M6','D0'], (9,7):['M7','D1'], (10,3):['D2'], (11,3):['D3','gm0b'], (12,3):['D4'], (13,3):['D5'], (14,3):['D6'], (15,6):['D7']}
GPX = {(1,7):['km0'], (8,3):['r0','r1'], (8,7):['gm0a'], (9,3):['r2','r3'], (9,7):['D0'], (10,3):['D1'], (11,3):['D2'], (12,3):['D3','gm0b'], (13,3):['D4'], (14,3):['D5'], (15,3):['D6'], (15,6):['D7']}
DEFAULT = dict(gplan=GP1, gplan_x=GPX, soft=SOFT, gplan_soft=GPS, use_soft=True,
    slots4=[EE + [['c0','c1'], ['v','v'], ['k','k'], []], EE + [['c0','c1'], ['v','v'], ['k','k'], ['w']],
            EE + [['c0','c1'], ['v','v'], [], []], EE + [['c0','c1'], ['v','v'], [], ['w']]],
    bar_group=12, bar_slot=5,
    dma=[(12,7),(14,6),(14,7),(15,6)], m0=(11,6), sadd3=[(6,6),(7,6),(10,6)], pvrev=True,
)

def build_iter(i, cfg, nqk=16, pv_us=(0, 1), first_pv=False, next_k=True, next_v_us=(0, 1), bar=True, dma=True,
               prev_tile=15, g_issue=None, g_cons=None, soft=None, hookcmp=False):
    ops = []
    pbN, pbC = (i + 1) % 2, i % 2
    extra = {}
    def add(g, s, o): extra.setdefault((g, s), []).extend(o)
    gp = cfg['gplan']
    items = {}
    if soft is not None:
        bar = False; dma = False
        isg = g_issue is not None
        sp = cfg['soft']
        gp = cfg['gplan_soft'] if g_cons is not None or not isg else cfg['gplan_x']
        kpos = sp.get('dma_g', sp['dma']) if isg else sp['dma']
        dpos = sorted(pos for pos in gp for it in gp[pos] if it[0] == 'D') if isg else []
        nL = sum(1 for p_ in kpos if p_ < sp['vm']) + sum(1 for p_ in dpos if p_ > kpos[3]) + sum(1 for p_ in dpos if p_ < sp['vm'])
        if isg and g_cons is None: nL = sum(1 for p_ in kpos if p_ < sp['vm'])
        if hookcmp: add(15, 6, [op_s(f's_cmp_eq_u32 s32, {HOOKP}')])
        def ck(nm):
            SPINS.append(f'{soft}{nm}')
            return [Op(f'v_cmp_lt_u32 vcc, {vr(SRD_)}, {vr(SCNT)}', 'valu', rd=[('v', SRD_)]), op_s(f's_cbranch_vccnz L2_sp{soft}{nm}'), Op(f'L2_spr{soft}{nm}:', 'label')]
        rdop = lambda: [Op(f'ds_read_b32 {vr(SRD_)}, {vr(SRA)}', 'lds', wr=[('v', SRD_)], tag=-2)]
        addop = lambda: [Op(f'v_add_u32 {vr(SCNT)}, 1, {vr(SCNT)}', 'valu')]
        wrop = lambda: [Op(f'ds_write_b32 {vr(SWA)}, {vr(SCNT)}', 'lds', tag=-2)]
        c_ = ck('F'); add(*sp['Frd'], rdop()); add(*sp['Fck'], c_[:1]); add(*sp.get('Fbr', sp['Fck']), c_[1:])
        m0op = op_s(f's_mov_b32 m0, s{28 + slot(i+3)}')
        if not isg: add(*sp['m0'], [m0op])
        else: items['km0'] = [m0op]
        for k in range(4):
            add(*kpos[k], [op_dma(k)])
        add(*sp['a1'], addop()); add(*sp['vm'], [op_s(f's_waitcnt vmcnt({nL})')]); add(*sp.get('wr1', sp['vm']), wrop())
        c_ = ck('L'); add(*sp['Lrd'], rdop()); add(*sp['Lck'], c_[:1]); add(*sp.get('Lbr', sp['Lck']), c_[1:])
        add(*sp['a2'], addop()); add(*sp['wr2'], wrop())
        for k, pos in enumerate(sp['sadd3']): add(*pos, next_off()[k])
    if g_issue is not None:
        loff, buf = g_issue
        rd = g_issue_reads(loff)
        for k in range(4): items[f'r{k}'] = [rd[k]]
        for k in range(8): items[f'D{k}'] = g_issue_dma(k, buf) if soft is None else g_issue_dma2(k)
        items['gm0a'] = [op_s(f's_mov_b32 m0, s{74+buf}')]
        items['gm0b'] = [op_s(f's_add_u32 m0, s{74+buf}, 4096')]
    if g_cons is not None:
        loff, buf, vm = g_cons
        items['sa'] = g_sel1(loff)[:1]; items['sb'] = g_sel1(loff)[1:]
        items['s2'] = g_sel2(); items['s3'] = g_sel3()
        order = [it for pos in sorted(gp) for it in gp[pos]]
        nd = sum(1 for it in order[:order.index('vw')] if it[0] == 'D')
        nk = 4
        if soft is not None:
            vwpos = [pos for pos in gp if 'vw' in gp[pos]][0]
            nk = sum(1 for p_ in kpos if p_ <= vwpos) + sum(1 for p_ in kpos if p_ > dpos[-1])
        items['vw'] = [op_s(f's_waitcnt vmcnt({nk + nd})')]
        for dt in range(8):
            items[f't{dt}'] = [g_tr(dt, 0, buf), g_tr(dt, 1, buf)]
            items[f'M{dt}'] = [g_mfma(dt)]
    for pos in sorted(gp):
        for it in gp[pos]:
            if it in items: add(pos[0], pos[1], items[it])
    kq = []
    for n in range(16):
        dt = n // 2
        q0 = 2 * (n % 2)
        slots = cfg['slots4'][n % 4] if 'slots4' in cfg else cfg['slots']
        mf = [op_qk(n, s) if n < nqk else None for s in range(4)]
        for q in (q0, q0 + 1):
            us = (1, 0) if (cfg.get('pvrev') and q == q0 + 1 and len(pv_us) == 2) else (0, 1)
            for u in us:
                mf.append(op_pv(pbC, dt, q, u, first=(first_pv and u == us[0])) if u in pv_us else None)
        dtn = dt + 2
        jv = i if dtn < 8 else i + 1
        uu = n % 2
        v_ok = (uu in pv_us) if dtn < 8 else (uu in next_v_us)
        vq = [op_vread(jv, dtn % 8, uu, x) for x in range(2)]
        kt = n // 4
        ktn = kt + 1
        jk = i + 1 if ktn < 4 else i + 2
        k_ok = (4 * ktn < nqk) if ktn < 4 else next_k
        if n % 4 == 0:
            assert not kq
            kq = [op_kread(jk, ktn % 4, s) for s in range(4)]
        for m in range(8):
            if mf[m] is not None: ops.append(mf[m])
            for f in slots[m]:
                if ('no' + f[0]) in XF and 2 <= i <= 5:
                    if f == 'k': kq.pop(0)
                    continue
                if f[0] == 'e' or f[0] == 'c':
                    if n == 0:
                        if prev_tile is not None:
                            ops.append(op_exp(prev_tile, int(f[1])) if f[0] == 'e' else op_cvt(pbC, prev_tile, int(f[1])))
                    elif n - 1 < nqk:
                        ops.append(op_exp(n - 1, int(f[1])) if f[0] == 'e' else op_cvt(pbN, n - 1, int(f[1])))
                elif f == 'v':
                    o = vq.pop(0)
                    if v_ok: ops.append(o)
                elif f == 'k':
                    o = kq.pop(0)
                    if k_ok: ops.append(o)
                elif f == 'w':
                    need = set()
                    for nn in (n + 1, n + 2):
                        n2 = nn % 16
                        need |= set(regs('a', KF + 16 * ((n2 // 4) % 2), 16)) if n2 // 4 != kt or nn >= 16 else set()
                        if n2 // 2 != dt: need |= set(regs('a', VF + 8 * ((n2 // 2) % 4), 8))
                    ops.append(Op('WAIT', 'wait', rd=need))
            ops.extend(extra.get((n, m), []))
            if m == 7 and cfg.get('stall'):
                ops.append(op_s(f's_nop {cfg["stall"]-1}'))
            if bar and 'nobar' not in XF and n == cfg['bar_group'] and m == cfg['bar_slot']:
                ops.append(Op('BARRIER', 'bar', tag=slot(i)))
            if dma and 'nokv' not in XF:
                for k, (g, sl) in enumerate(cfg['dma']):
                    if g == n and sl == m:
                        ops.append(op_dma(k))
                if cfg['m0'] == (n, m): ops.append(op_s(f's_mov_b32 m0, s{28 + slot(i+4)}'))
                for k, pos in enumerate(cfg['sadd3']):
                    if pos == (n, m): ops.extend(next_off()[k])
    return ops

def finalize(ops, pending_in, vm_wait):
    pend = list(pending_in)
    out = []
    for o in ops:
        if o.kind == 'bar':
            need = -1
            for idx, (w, tg) in enumerate(pend):
                if tg == o.tag: need = idx
            if need >= 0:
                cnt = len(pend) - 1 - need
                out.append(Op(f's_waitcnt vmcnt({vm_wait}) lgkmcnt({min(cnt,15)})', 'salu'))
                pend = pend[need + 1:]
            else:
                out.append(Op(f's_waitcnt vmcnt({vm_wait})', 'salu'))
            out.append(Op('s_barrier', 'salu'))
            if 'bar2' in XF: out.append(Op('s_barrier', 'salu'))
            continue
        if o.kind in ('mfma', 'valu', 'trans', 'wait'):
            need = -1
            for idx, (w, tg) in enumerate(pend):
                if w & o.rd: need = idx
            if need >= 0:
                cnt = len(pend) - 1 - need
                out.append(Op(f's_waitcnt lgkmcnt({min(cnt,15)})', 'salu'))
                pend = pend[need + 1:]
        if o.kind == 'lds':
            pend.append((frozenset(o.wr), o.tag))
        if o.kind != 'wait': out.append(o)
    return out, pend

def fix_hazards(ops, fix=True):
    pos = 0
    lm = {}; lv = {}; lt = {}
    out = []
    for o in ops:
        need = 0
        if o.kind in ('valu', 'trans'):
            for r in o.rd | o.wr:
                if r in lm: need = max(need, 8 - (pos - lm[r] - 1))
            if o.kind == 'valu':
                for r in o.rd:
                    if r in lt: need = max(need, 1 - (pos - lt[r] - 1))
        if o.kind == 'mfma':
            for r in o.rd | o.wr:
                if r in lv: need = max(need, 2 - (pos - lv[r] - 1))
            for r in o.rd:
                if r in lm: need = max(need, 8 - (pos - lm[r] - 1))
        if need > 0:
            if not fix: raise Exception(f'hazard at {o.text} need {need}')
            out.append(op_s(f's_nop {need-1}')); pos += need
        if o.kind == 'mfma':
            for r in o.wr: lm[r] = pos
        if o.kind in ('valu', 'trans'):
            for r in o.wr:
                lv[r] = pos
                if o.kind == 'trans': lt[r] = pos
                else: lt.pop(r, None)
        m = re.match(r's_nop (\d+)', o.text)
        pos += (int(m.group(1)) + 1) if m else (0 if o.kind == 'label' else 1)
        out.append(o)
    return out

def emit(A, ops):
    for o in ops:
        if o.kind == 'label': A.raw(o.text)
        else: A(o.text)

TW = TA
RT = 4
CAPQ = 192
def hflag_load(A, n=NH, line=50, E8=E8):
    A(f'v_min_u32 {vr(E8+1)}, {n-1}, {vr(LANE)}')
    A(f'v_lshlrev_b32 {vr(E8+1)}, 2, {vr(E8+1)}')
    A(f's_mov_b32 s39, {WS_FLAG-WS_BND+line*256}')
    A(f'buffer_load_dword {vr(E8)}, {vr(E8+1)}, s[20:23], s39 offen sc1')
def hflag_check(A, tag, E8=E8):
    A('s_mov_b32 s41, 0x20000')
    A.label(f'L2_hf{tag}')
    A(f'''
    v_cmp_ne_u32 vcc, 1, {vr(E8)}
    s_cbranch_vccz L2_hfok{tag}
    s_sub_u32 s41, s41, 1
    s_cmp_eq_u32 s41, 0
    s_cbranch_scc1 L2_hfok{tag}
    s_sleep 2
    buffer_load_dword {vr(E8)}, {vr(E8+1)}, s[20:23], s39 offen sc1
    s_waitcnt vmcnt(0)
    s_branch L2_hf{tag}
    ''')
    A.label(f'L2_hfok{tag}')
def table_load(A):
    A(f'''
    v_lshlrev_b32 {vr(E8+1)}, 2, {vr(LANE)}
    v_mov_b32 {vr(E8+2)}, 0x7ffffff0
    v_cmp_gt_u32 vcc, {NH}, {vr(LANE)}
    s_lshl_b32 s80, s72, 6
    s_nop 0
    v_cndmask_b32 {vr(E8+1)}, {vr(E8+2)}, {vr(E8+1)}, vcc
    buffer_load_dword {vr(TW)}, {vr(E8+1)}, s[68:71], s80 offen sc1
    ''')
def list_build(A, tag):
    C, I, PK, L16 = E8, E8+1, E8+2, E8+3
    A('s_mov_b32 s79, 63')
    A.label(f'L2_retry{tag}')
    A(f'''
    v_lshrrev_b32 {vr(C)}, 16, {vr(TW)}
    v_min_u32 {vr(C)}, s79, {vr(C)}
    v_mov_b32 {vr(I)}, {vr(C)}
    ''')
    for sh in (1, 2, 4, 8):
        A('s_nop 1')
        A(f'v_add_u32_dpp {vr(I)}, {vr(I)}, {vr(I)} row_shr:{sh} row_mask:0xf bank_mask:0xf')
    A(f'''
    s_nop 0
    v_readlane_b32 s76, {vr(I)}, 15
    s_cmp_le_u32 s76, {CAPQ}
    s_cbranch_scc1 L2_ok{tag}
    s_mov_b32 s79, 16
    s_branch L2_retry{tag}
    ''')
    A.label(f'L2_ok{tag}')
    A(f'''
    v_sub_u32 {vr(I)}, {vr(I)}, {vr(C)}
    v_lshl_add_u32 {vr(I)}, {vr(I)}, 4, s73
    v_mov_b32 {vr(PK)}, {CHS}
    v_mul_u32_u24 {vr(PK)}, {vr(PK)}, {vr(LANE)}
    v_and_b32 {vr(L16)}, 0xffff, {vr(TW)}
    v_lshl_add_u32 {vr(PK)}, {vr(L16)}, 4, {vr(PK)}
    v_lshlrev_b32 {vr(L16)}, 4, {vr(LANE)}
    s_lshl_b32 s76, s76, 2
    s_cbranch_scc0 L2_lb{tag}
    ''')
    SG = [36, 37, 38, 39, 33, 42, 43, 79, 80, 81, 91, 77]
    for c0 in range(0, NH, 4):
        cs = list(range(c0, min(c0 + 4, NH)))
        for k, c in enumerate(cs): A(f'v_readlane_b32 s{SG[k]}, {vr(PK)}, {c}')
        for k, c in enumerate(cs): A(f'v_readlane_b32 s{SG[4+k]}, {vr(I)}, {c}')
        for k, c in enumerate(cs): A(f'v_readlane_b32 s{SG[8+k]}, {vr(C)}, {c}')
        for k, c in enumerate(cs):
            A(f's_mov_b32 m0, s{SG[4+k]}')
            A(f's_bfm_b64 exec, s{SG[8+k]}, 0')
            A(f'buffer_load_dwordx4 {vr(L16)}, s[64:67], s{SG[k]} offen sc1 lds')
    A.label(f'L2_lb{tag}')
    A(f'''
    s_mov_b64 exec, -1
    v_add_u32 {vr(I)}, s76, {vr(LANE)}
    v_lshl_add_u32 {vr(I)}, {vr(I)}, 2, s73
    v_mov_b32 {vr(PK)}, 0x7ffffff0
    ds_write_b32 {vr(I)}, {vr(PK)}
    ds_write_b32 {vr(I)}, {vr(PK)} offset:256
    ds_write_b32 {vr(I)}, {vr(PK)} offset:512
    v_add_u32 {vr(TW)}, {vr(TW)}, {vr(C)}
    v_lshlrev_b32 {vr(C)}, 16, {vr(C)}
    v_sub_u32 {vr(TW)}, {vr(TW)}, {vr(C)}
    s_add_u32 s77, s76, 31
    s_lshr_b32 s77, s77, 5
    s_mov_b32 s78, 0
    s_max_u32 s3, s77, {RT-1}
    s_sub_u32 s3, s3, {RT-1}
    s_and_b32 s3, s3, -2
    v_lshrrev_b32 {vr(LPI)}, 4, {vr(LANE)}
    v_lshl_add_u32 {vr(LPI)}, {vr(LPI)}, 2, s73
    v_and_b32 {vr(LPC)}, 31, {vr(LANE)}
    v_lshl_add_u32 {vr(LPC)}, {vr(LPC)}, 2, s73
    ''')

def full_check_issue(A, vdst, vaddr):
    A(f'v_min_u32 {vr(vaddr)}, 48, {vr(LANE)}')
    A(f'v_lshlrev_b32 {vr(vaddr)}, 8, {vr(vaddr)}')
    A(f's_mov_b32 s39, {WS_FLAG-WS_BND+32}')
    A(f'buffer_load_dwordx4 {vr(vdst,4)}, {vr(vaddr)}, s[20:23], s39 offen sc1')
    A(f'buffer_load_dword {vr(vdst+4)}, {vr(vaddr)}, s[20:23], s39 offen offset:16 sc1')

def flags_spin(A, tag, vdst, vaddr, first_wait):
    A('s_mov_b32 s41, 0x20000')
    A(first_wait)
    A.label(f'L2_fs{tag}')
    A(f'''
    v_and_b32 {vr(vdst)}, {vr(vdst)}, {vr(vdst+1)}
    v_and_b32 {vr(vdst+2)}, {vr(vdst+2)}, {vr(vdst+3)}
    v_and_b32 {vr(vdst)}, {vr(vdst)}, {vr(vdst+4)}
    v_and_b32 {vr(vdst)}, {vr(vdst)}, {vr(vdst+2)}
    v_cmp_ne_u32 vcc, 1, {vr(vdst)}
    s_cbranch_vccz L2_fsok{tag}
    s_sub_u32 s41, s41, 1
    s_cmp_eq_u32 s41, 0
    s_cbranch_scc1 L2_fsok{tag}
    s_sleep 1
    buffer_load_dwordx4 {vr(vdst,4)}, {vr(vaddr)}, s[20:23], s39 offen sc1
    buffer_load_dword {vr(vdst+4)}, {vr(vaddr)}, s[20:23], s39 offen offset:16 sc1
    s_waitcnt vmcnt(0)
    s_branch L2_fs{tag}
    ''')
    A.label(f'L2_fsok{tag}')

def w23_dma_ops():
    res = []
    for b in range(4):
        for k in range(4):
            ops = []
            if k == 0:
                ops.append(op_s('s_mov_b32 m0, s33'))
                ops.append(op_s('s_nop 0'))
            ops.append(Op(f'buffer_load_dwordx4 {vr(T5)}, s[12:15], s33 offen offset:{k*1024} sc1 lds', 'vmem'))
            if k == 3: ops.append(op_s('s_add_u32 s33, s33, 4096'))
            res.append(ops)
    return res

def gen_k2(A, cfg=None, name='attn_kernel', stamp=0, flags=()):
    cfg = cfg or DEFAULT
    def st(i):
        if stamp: A(f's_memrealtime s[{44+2*i}:{45+2*i}]')
    def rec(idx):
        if stamp != 2: return
        A('s_memrealtime s[96:97]')
        A('s_memtime s[98:99]')
        A('s_waitcnt lgkmcnt(0)')
        A(f'v_cmp_eq_u32 vcc, {idx}, {vr(LANE)}')
        for sreg, areg in ((96, 252), (98, 253)):
            A(f'v_mov_b32 {vr(T2)}, s{sreg}')
            A(f'v_accvgpr_read_b32 {vr(T3)}, a{areg}')
            A(f'v_cndmask_b32 {vr(T3)}, {vr(T3)}, {vr(T2)}, vcc')
            A(f'v_accvgpr_write_b32 a{areg}, {vr(T3)}')
    A.raw(f'.globl {name}\n.p2align 8\n.type {name},@function')
    A.label(name)
    L = vr(LANE)
    A(f'''
    s_cmp_ge_u32 s2, 256
    s_cbranch_scc1 L2_done
    s_load_dwordx2 s[4:5], s[0:1], 88
    s_load_dwordx2 s[100:101], s[0:1], 80
    s_min_u32 s3, s2, 31
    s_bitcmp1_b32 {HMASK}, s3
    s_cbranch_scc1 L_helper
    s_load_dwordx2 s[6:7], s[0:1], 0
    s_load_dwordx2 s[84:85], s[0:1], 24
    s_load_dwordx2 s[86:87], s[0:1], 72
    s_load_dwordx4 s[76:79], s[0:1], 40
    ''')
    for i in range(10): st(i)
    A(f'''
    v_lshrrev_b32 v1, 6, v0
    v_and_b32 v0, 63, v0
    v_mov_b32 {L}, v0
    s_mov_b32 s3, 0x33333334
    v_readfirstlane_b32 s26, v1
    s_lshr_b32 s33, s2, 3
    s_lshl_b32 s40, s33, 2
    s_sub_u32 s33, s33, 2
    s_mul_hi_u32 s24, s33, s3
    s_mul_i32 s3, s24, 5
    s_sub_u32 s25, s33, s3
    s_lshl_b32 s24, s24, 3
    s_and_b32 s3, s2, 7
    s_add_u32 s24, s24, s3
    s_bfm_b32 s3, s3, 8
    s_andn2_b32 s3, s3, {HMASK}
    s_bcnt1_i32_b32 s3, s3
    s_cmp_lt_u32 s2, 16
    s_cselect_b32 s24, 48, s24
    s_cselect_b32 s25, s3, s25
    v_and_b32 v2, 15, v0
    v_lshrrev_b32 v3, 4, v0
    v_lshlrev_b32 {vr(T5)}, 4, v0
    s_cmp_gt_u32 s25, s26
    s_cselect_b32 s41, 1, 0
    s_sub_u32 s41, s25, s41
    s_cmp_lg_u32 s25, s26
    s_cselect_b32 s82, 1, 0
    s_cselect_b32 s41, s41, 0
    s_lshl_b32 s3, s24, 4
    s_lshl2_add_u32 s72, s26, s3
    s_add_u32 s72, s72, s41
    s_cmp_eq_u32 s82, 1
    s_cselect_b32 s72, s72, 0x100000
    s_mov_b32 s81, s41
    s_mul_i32 s73, s26, {GSIZE}
    s_add_u32 s73, s73, {GBASE}
    s_add_u32 s74, s73, 8192
    s_add_u32 s75, s73, 16384
    s_add_u32 s40, s40, s26
    s_sub_u32 s40, s40, 4
    ''')
    asmlib.code_prefetch(A, 'k2', name, 'L_code_end', 42, 40, 41, T5, 200)
    A('s_waitcnt lgkmcnt(0)')
    A('s_mov_b32 s0, s81')
    srd(A, 88, 76, 0, 32768)
    srd(A, 92, 78, 0, 32768)
    srd(A, 64, 4, WS_EDGE, NH*CHS)
    srd(A, 20, 4, WS_BND, WS_W23-WS_BND)
    dma_fn = lambda d=None: phase_a.weights_dma(A, 26, 88, 92, lambda ii: ii >> 1, d)
    A('s_cmp_eq_u32 s82, 0')
    A('s_cbranch_scc1 L_binw')
    srd(A, 68, 6, 0, N*256)
    phase_a.owner_x_loads(A)
    dfr = []
    dma_fn(dfr)
    srd(A, 8, 4, WS_H1, N*256)
    srd(A, 12, 4, WS_QF, 784*4096)
    phase_a.owner_compute(A, st, dfr)
    A('s_branch L_adone')
    A.label('L_binw')
    dma_fn()
    A('s_waitcnt vmcnt(8)')
    A('s_barrier')
    A('s_waitcnt vmcnt(0)')
    A('s_barrier')
    A.label('L_adone')
    st(9)
    srd(A, 96, 100, 0, 256)
    A('v_mov_b32 v10, 0')
    A('buffer_load_dword v11, v10, s[96:99], 0 offen sc1')
    srd(A, 8, 4, WS_H1, N*256)
    srd(A, 12, 4, WS_QF, 784*4096)
    srd(A, 16, 4, WS_OP, 5*784*4096)
    srd(A, 68, 4, WS_TAB, NBIN*64)
    def dma_tile(j):
        pre = [] if j == 0 else sum(next_off(), [])
        ops = pre + [op_s(f's_mov_b32 m0, s{28+slot(j)}'), op_s('s_nop 0')] + [op_dma(k) for k in range(4)]
        return ops
    A(f'''
    s_lshl_b32 s33, s26, 12
    v_add_u32 {vr(VDMA)}, s33, {vr(T5)}
    s_mul_i32 s88, s25, {SPLITB}
    s_cmp_eq_u32 s25, 4
    s_cselect_b32 s89, 37, 39
    s_lshl_b32 s89, s89, 14
    s_add_u32 s89, s89, s88
    s_add_u32 s91, s88, 65535
    s_lshr_b32 s91, s91, 16
    s_sub_u32 s27, s2, s91
    s_and_b32 s27, s27, 7
    s_add_u32 s91, s91, s27
    s_lshl_b32 s27, s91, 16
    s_sub_u32 s27, s27, s88
    s_add_u32 s27, s27, 16383
    s_and_b32 s27, s27, 0xffffc000
    s_add_u32 s27, s27, s88
    s_mov_b32 s90, s27
    s_add_u32 s28, s33, 0
    s_add_u32 s29, s33, 16384
    s_add_u32 s30, s33, 32768
    s_add_u32 s31, s33, 49152
    s_lshl_b32 s34, s24, 4
    s_lshl_b32 s35, s26, 2
    s_add_u32 s34, s34, s35
    v_and_b32 v4, 7, {L}
    v_lshlrev_b32 v4, 1, v4
    v_lshrrev_b32 v5, 4, {L}
    v_xor_b32 v4, v4, v5
    v_and_b32 v6, 15, {L}
    v_lshlrev_b32 v7, 8, v6
    ''')
    for s in range(4):
        A(f'v_xor_b32 v8, {4*s}, v4')
        A(f'v_lshl_add_u32 {vr(KADDR+s)}, v8, 4, v7')
    A(f'''
    v_lshrrev_b32 v4, 2, {L}
    v_lshlrev_b32 v7, 8, v4
    v_and_b32 v4, 7, v4
    v_and_b32 v8, 3, {L}
    v_lshl_add_u32 v7, v8, 3, v7
    ''')
    for dt in range(8):
        A(f'v_xor_b32 v8, {dt}, v4')
        A(f'v_lshl_add_u32 {vr(VADDR+dt)}, v8, 5, v7')
        A(f'v_add_u32 {vr(VADDR2+dt)}, s74, {vr(VADDR+dt)}')
    A(f'''
    v_lshlrev_b32 v8, 1, v5
    v_xor_b32 v8, v8, v6
    v_lshlrev_b32 {vr(PC0)}, 4, v8
    v_xor_b32 {vr(PC1)}, 0x80, {vr(PC0)}
    v_bfe_u32 v8, {L}, 2, 2
    v_lshlrev_b32 v8, 4, v8
    v_bfe_u32 v9, {L}, 4, 1
    v_lshl_add_u32 v8, v9, 3, v8
    v_and_b32 v9, 3, {L}
    v_lshl_add_u32 v8, v9, 1, v8
    s_add_u32 s83, s73, 5120
    v_add_u32 {vr(SELW)}, s83, v8
    v_lshlrev_b32 v8, 6, v6
    v_lshl_add_u32 v8, v5, 4, v8
    v_add_u32 {vr(SELR)}, s83, v8
    v_mov_b32 {vr(ONE)}, 0x3f80
    ''')
    if GHACK is not None:
        A(f's_mov_b32 s92, {GHACK}')
        A(f'v_lshlrev_b32 v8, 5, v5')
        A(f'v_and_b32 v8, s92, v8')
        A(f'v_lshlrev_b32 v9, 4, v6')
        A(f'v_xor_b32 {vr(PC0)}, v8, v9')
        A(f'v_and_b32 v8, 0x80, s92' if False else f's_and_b32 s93, s92, 0x80')
        A(f'v_xor_b32 {vr(PC1)}, s93, {vr(PC0)}')
    for r in range(32): A(f'v_accvgpr_write_b32 {ar(HS+r)}, 0')
    for r in range(4): A(f'v_accvgpr_write_b32 {ar(ZERO+r)}, 0')
    A('s_waitcnt vmcnt(0)')
    A('s_barrier')
    st(1)
    A('s_cmp_lg_u32 s26, 0')
    A('s_cbranch_scc1 L_depok')
    A('v_cmp_ne_u32 vcc, 1, v11')
    A('s_cbranch_vccz L_rsokm')
    phase_a.ready_spin(A, 'm', 11, 10)
    A(f'''
    s_lshl_b32 s40, s24, 8
    s_lshl_b32 s41, s25, 2
    s_add_u32 s41, s41, s40
    s_add_u32 s41, s41, {WS_FLAG-WS_BND+32}
    v_mov_b32 v11, 1
    s_mov_b64 exec, 1
    buffer_store_dword v11, v10, s[20:23], s41 offen sc1
    s_mov_b64 exec, -1
    s_lshl_b32 s41, s91, 8
    v_mov_b32 v12, s40
    v_mov_b32 v13, s41
    v_cmp_eq_u32 vcc, 1, {L}
    s_nop 1
    v_cndmask_b32 v12, v12, v13, vcc
    s_mov_b32 s39, {WS_FLAG-WS_BND+32}
    buffer_load_dwordx4 v[16:19], v12, s[20:23], s39 offen sc1
    buffer_load_dword v20, v12, s[20:23], s39 offen offset:16 sc1
    ''')
    flags_spin(A, 'a', 16, 12, 's_waitcnt vmcnt(0)')
    A.label('L_depok')
    A('s_barrier')
    st(2)
    emit(A, dma_tile(0))
    A(f'''
    s_add_u32 s35, s34, s0
    s_lshl_b32 s35, s35, 12
    s_xor_b32 s36, s35, 4096
    s_xor_b32 s37, s35, 8192
    s_xor_b32 s38, s35, 12288
    s_lshl_b32 s39, s24, 10
    ''')
    def qload(q, s):
        return Op(f'buffer_load_dwordx4 {ar(QF+4*(q*4+s),4)}, {vr(T5)}, s[12:15], s{35+q} offen offset:{s*1024}{LDSC}', 'vmem')
    A(f'buffer_load_dwordx4 v[0:3], {vr(T5)}, s[20:23], s39 offen sc1')
    emit(A, [qload(q, s) for q in range(2) for s in range(4)])
    A('s_waitcnt vmcnt(8)')
    A('s_barrier')
    KP = [160, 176, 200, 216]
    def kp_read(kt, s):
        return Op(f'ds_read_b128 {ar(KP[kt]+4*s,4)}, {vr(KADDR+s)} offset:{slot(0)*16384+kt*4096}', 'lds', wr=regs('a', KP[kt]+4*s, 4), tag=-1)
    first = [kp_read(kt, s) for kt in range(3) for s in range(4)]
    emit(A, first)
    A(f'''
    v_max3_f32 v0, v0, v1, v2
    v_max_f32 v0, v0, v3
    v_cmp_lt_f32 vcc, {hex(f32bits(THRESH))}, v0
    s_cbranch_vccnz L2_slow
    ''')
    def p_qk(i, s):
        q, kt = i // 4, i % 4
        d = SB + 4 * kt
        return Op(f'v_mfma_f32_16x16x32_bf16 {vr(d,4)}, {ar(KP[kt]+4*s,4)}, {ar(QF+4*(q*4+s),4)}, {"0" if s == 0 else vr(d,4)}', 'mfma',
                  rd=regs('a', KP[kt]+4*s, 4), wr=regs('v', d, 4))
    def p_exp(i, r): return op_exp(i % 4, r)
    def p_cvt(i, half):
        q, kt = i // 4, i % 4
        sreg = SB + 4 * kt + 2 * half
        d = PB[0] + 4 * ((kt // 2) * 4 + q) + 2 * (kt % 2) + half
        return Op(f'v_cvt_pk_bf16_f32 {vr(d)}, {vr(sreg)}, {vr(sreg+1)}', 'valu', rd=[('v', sreg), ('v', sreg + 1)], wr=[('v', d)])
    pro = [qload(2, s) for s in range(4)] + [kp_read(3, s) for s in range(4)]
    t1, t2 = dma_tile(1), dma_tile(2)
    def take(dq):
        o = []
        while dq and dq[0].kind != 'vmem': o.append(dq.pop(0))
        if dq: o.append(dq.pop(0))
        return o
    for i in range(16):
        if i == 0: pro.append(op_s('s_waitcnt vmcnt(8)'))
        if i in (4, 8): pro.append(op_s('s_waitcnt vmcnt(12)'))
        if i == 12: pro += [op_s('s_waitcnt vmcnt(4)'), op_s('s_barrier')]
        fill = [[p_exp(i-2, 0)], [p_exp(i-2, 1)], [p_exp(i-2, 2)], [p_exp(i-2, 3), p_cvt(i-2, 0), p_cvt(i-2, 1)]] if i >= 2 else [[], [], [], []]
        for s in range(4):
            pro.append(p_qk(i, s))
            pro += fill[s]
            if i < 4 and s == 1: pro.append(qload(3, i))
        if i < 4: pro += take(t1)
        elif i < 8: pro += take(t2)
        if i >= 12:
            pro.append(op_kread(1, 0, i % 4))
            pro += [op_vread(0, (i - 12) // 2, i % 2, x) for x in range(2)]
    pro += [p_exp(14, r) for r in range(4)] + [p_cvt(14, 0), p_cvt(14, 1)]
    pend0 = [(frozenset(o.wr), -1) for o in first]
    pro, pend = finalize(pro, pend0, 4)
    pend = [(w, -1) for w, _ in pend]
    it0, pend = finalize(build_iter(0, cfg, first_pv=True, dma=False), pend, 2)
    emit(A, fix_hazards(pro))
    st(3)
    rec(15)
    full_check_issue(A, E8, E8+6)
    A('s_nop 3')
    emit(A, fix_hazards(it0))
    rec(14)
    flags_spin(A, 'b', E8, E8+6, 's_waitcnt vmcnt(0)')
    emit(A, dma_tile(3) + dma_tile(4))
    rec(13)
    A('s_waitcnt lgkmcnt(0)')
    _, pend_ss = finalize(build_iter(3, cfg), [], 4)
    pend_ss = [(w, -1) for w, _ in pend_ss]
    US = cfg['use_soft']
    del SPINS[:]
    def sync_regs():
        A(f's_lshl_b32 s33, s26, 2')
        A(f's_add_u32 s33, s33, {SYNCB}')
        A(f'v_mov_b32 {vr(SWA)}, s33')
        A(f'v_mov_b32 {vr(SCNT)}, 0')
        A(f'v_and_b32 {vr(SRA)}, 3, {L}')
        A(f'v_lshlrev_b32 {vr(SRA)}, 2, {vr(SRA)}')
        A(f'v_add_u32 {vr(SRA)}, {SYNCB}, {vr(SRA)}')
    if US:
        sync_regs()
        A(f'ds_write_b32 {vr(SWA)}, {vr(SCNT)}')
        A('s_waitcnt lgkmcnt(0)')
    it1, _ = finalize(build_iter(1, cfg, dma=not US), [], 4)
    emit(A, fix_hazards(it1))
    rec(12)
    emit(A, sum(next_off(), []))
    A('s_mov_b32 s3, 0')
    A('s_mov_b32 s78, 0')
    A('s_mov_b32 s32, 9')
    A('s_cmp_eq_u32 s25, 4')
    A('s_cselect_b32 s83, 1, 0')
    A('s_branch L2_head')
    A.label('L2_hk0')
    hflag_load(A)
    A('s_branch L2_body1')
    A.label('L2_hk1')
    hflag_check(A, 'a'); table_load(A)
    A('s_branch L2_body2')
    A.label('L2_hk2')
    rec(11)
    list_build(A, 'a')
    rec(10)
    A(f'''
    s_sub_u32 s92, s8, 3072
    s_subb_u32 s93, s9, 0
    s_mov_b32 s94, {N*256+3072}
    s_mov_b32 s95, 0x20000
    s_mov_b32 s36, 3072
    s_mov_b32 s37, 2048
    s_mov_b32 s38, 1024
    s_sub_u32 s32, s32, 1
    s_waitcnt lgkmcnt(0)
    ''')
    ops, pe = finalize(build_iter(5, cfg, soft='x3', g_issue=(0, 0)), pend_ss, 4)
    emit(A, ops)
    A.raw('.p2align 6')
    A.label('L2_head')
    if stamp == 2:
        A('s_memrealtime s[96:97]')
        A('s_memtime s[98:99]')
        A('s_waitcnt lgkmcnt(0)')
        A(f'v_cmp_eq_u32 vcc, s32, {vr(LANE)}')
        for sreg, areg in ((96, 252), (98, 253)):
            A(f'v_mov_b32 {vr(T2)}, s{sreg}')
            A(f'v_accvgpr_read_b32 {vr(T3)}, a{areg}')
            A(f'v_cndmask_b32 {vr(T3)}, {vr(T3)}, {vr(T2)}, vcc')
            A(f'v_accvgpr_write_b32 a{areg}, {vr(T3)}')
    A('s_cmp_eq_u32 s32, 1')
    A('s_cbranch_scc1 L2_body0')
    A('s_cmp_lt_u32 s78, s3')
    if 'nog' not in flags: A('s_cbranch_scc1 L2_gbody')
    body = []
    for p in range(4):
        ops, pe = finalize(build_iter(p + 2, cfg, soft=(f'p{p}' if US else None), hookcmp=(p < 3)), pend_ss, 4)
        while pe and not pe[0][0]: pe = pe[1:]
        assert XF or [w for w, _ in pe] == [w for w, _ in pend_ss], (pe, pend_ss)
        body += ops
        if p == 2:
            A('s_cmp_eq_u32 s32, s83')
            A('s_cbranch_scc1 L2_post2')
        A.label(f'L2_body{p}')
        emit(A, ops)
        if p < 3: A(f's_cbranch_scc1 L2_hk{p}')
    if not XF: fix_hazards(body + body, fix=False)
    A('s_sub_u32 s32, s32, 1')
    A('s_cmp_lg_u32 s32, 0')
    A('s_cbranch_scc1 L2_head')
    A('s_branch L2_post')
    A.raw('.p2align 6')
    A.label('L2_gbody')
    gbody = []
    for p in range(4):
        ops, pe = finalize(build_iter(p + 2, cfg, g_issue=(128 * (p + 1), (p + 1) % 2), g_cons=(128 * p, p % 2, 12), soft=(f'g{p}' if US else None)), pend_ss, 12)
        while pe and not pe[0][0]: pe = pe[1:]
        assert XF or [w for w, _ in pe] == [w for w, _ in pend_ss], (pe, pend_ss)
        gbody += ops
        emit(A, ops)
        A('s_add_u32 s78, s78, 1')
        if p < 3:
            A('s_cmp_ge_u32 s78, s3')
            A(f's_cbranch_scc1 L2_body{p+1}')
    if not XF: fix_hazards(gbody + gbody, fix=False); fix_hazards(gbody + body, fix=False); fix_hazards(it1 + gbody, fix=False)
    A(f'v_add_u32 {vr(LPI)}, 512, {vr(LPI)}')
    A(f'v_add_u32 {vr(LPC)}, 512, {vr(LPC)}')
    A('s_sub_u32 s32, s32, 1')
    A('s_cmp_lg_u32 s32, 0')
    A('s_cbranch_scc1 L2_head')
    A.label('L2_post')
    if stamp == 2:
        A('s_memrealtime s[96:97]')
        A('s_memtime s[98:99]')
        A('s_waitcnt lgkmcnt(0)')
        A(f'v_cmp_eq_u32 vcc, s32, {vr(LANE)}')
        for sreg, areg in ((96, 252), (98, 253)):
            A(f'v_mov_b32 {vr(T2)}, s{sreg}')
            A(f'v_accvgpr_read_b32 {vr(T3)}, a{areg}')
            A(f'v_cndmask_b32 {vr(T3)}, {vr(T3)}, {vr(T2)}, vcc')
            A(f'v_accvgpr_write_b32 a{areg}, {vr(T3)}')
    def store_setup():
        srd(A, 12, 4, WS_W23, 65536)
        A('s_lshl_b32 s33, s26, 14')
        A(f'v_lshlrev_b32 {vr(T5)}, 4, {L}')
        A(f'''
        s_mul_i32 s40, s25, {784*4096}
        s_add_u32 s40, s40, s35
        s_xor_b32 s41, s40, 4096
        s_xor_b32 s42, s40, 8192
        s_xor_b32 s43, s40, 12288
        s_cmp_eq_u32 s82, 1
        s_cselect_b32 s40, 0x7ff00000, s40
        ''')
    def store_ops(w, q):
        d = 128 + 4 * (w * 4 + q) if False else SBUF + 4 * ((w * 4 + q) % 8)
        ops = []
        for h in range(2):
            b = O(2 * w + h, q)
            ops.append(Op(f'v_cvt_pk_bf16_f32 {vr(d+2*h)}, {vr(b)}, {vr(b+1)}', 'valu', rd=regs('v', b, 2), wr=[('v', d+2*h)]))
            ops.append(Op(f'v_cvt_pk_bf16_f32 {vr(d+2*h+1)}, {vr(b+2)}, {vr(b+3)}', 'valu', rd=regs('v', b+2, 2), wr=[('v', d+2*h+1)]))
        ops.append(Op(f'buffer_store_dwordx4 {vr(d,4)}, {vr(T5)}, s[16:19], s{40+q} offen offset:{w*1024}{TSC}', 'vmem'))
        return ops
    def lm_stores():
        for dt in range(8):
            for r in range(4):
                A(f'v_mov_b32 {vr(176+4*dt+r)}, {vr(O(dt,0)+r)}')
        A(f'''
        v_and_b32 {vr(T4)}, 15, {L}
        v_lshlrev_b32 {vr(T4)}, 3, {vr(T4)}
        s_mul_i32 s36, s25, {NPAD*8}
        s_lshr_b32 s37, s35, 5
        s_add_u32 s36, s36, s37
        s_add_u32 s36, s36, {WS_L-WS_BND}
        s_xor_b32 s37, s36, 128
        s_xor_b32 s38, s36, 256
        s_xor_b32 s39, s36, 384
        ''')
        for q in range(4):
            A(f'v_mov_b32 {vr(O(7,q)+2)}, {vr(O(7,q)+3)}')
            A(f'v_mov_b32 {vr(O(7,q)+3)}, {vr(T0+q)}')
        A('s_mov_b32 exec_lo, 0')
        A('s_mov_b32 exec_hi, 0xffff0000')
        for q in range(4):
            A(f'buffer_store_dwordx2 {vr(O(7,q)+2,2)}, {vr(T4)}, s[20:23], s{36+q} offen{TSC}')
        A('s_mov_b64 exec, -1')
    def issue_ops(off, buf):
        ops = g_issue_reads(off)
        for k in range(8): ops += g_issue_dma(k, buf)
        return ops
    def consume_ops(off, buf, vm):
        ops = g_sel1(off) + g_sel2() + g_sel3()
        if vm is not None: ops.append(op_s(f's_waitcnt vmcnt({vm})'))
        ops += [g_tr(dt, x, buf) for dt in range(8) for x in range(2)] + [g_mfma(dt) for dt in range(8)]
        return ops
    def emit_g(ops):
        ops, pe = finalize(ops, [], 0)
        emit(A, fix_hazards(ops))
    def set_ptrs():
        A(f'''
        s_lshl_b32 s33, s78, 7
        s_add_u32 s33, s33, s73
        v_lshrrev_b32 {vr(LPI)}, 4, {L}
        v_lshl_add_u32 {vr(LPI)}, {vr(LPI)}, 2, s33
        v_and_b32 {vr(LPC)}, 31, {L}
        v_lshl_add_u32 {vr(LPC)}, {vr(LPC)}, 2, s33
        ''')
    def post(i0):
        set_ptrs()
        store_setup()
        it38, pe = finalize(build_iter(i0, cfg, nqk=8, next_k=False, next_v_us=(0,), bar=False, dma=False, g_issue=(128, 1)), pend_ss, 4)
        last, _ = finalize(build_iter(i0 + 1, cfg, nqk=0, pv_us=(0,), next_k=False, next_v_us=(), bar=False, dma=False, prev_tile=None), pe, 4)
        lastb = []
        nm = 0
        pendst = [(w, q) for w in range(3) for q in range(4)]
        for o in last:
            lastb.append(o)
            if o.kind == 'mfma':
                nm += 1
                if pendst and nm >= 8 * (pendst[0][0] + 1) + 2 and nm % 2 == 0:
                    lastb += store_ops(*pendst.pop(0))
        rest = []
        for wq in pendst + [(3, q) for q in range(4)]:
            rest += store_ops(*wq)
        emit(A, fix_hazards(body[-40:] + it38 + lastb + rest)[40:])
        st(4)
        A(f'v_mov_b32 {vr(T0)}, 0\nv_mov_b32 {vr(T1)}, 0\nv_mov_b32 {vr(T2)}, 0\nv_mov_b32 {vr(T3)}, 0')
    post(38)
    A('s_branch L2_lm')
    A.label('L2_post2')
    post(36)
    A('s_branch L2_lm')
    def generic_loop(tag, bound_sreg):
        A.label(f'L2_left{tag}')
        A(f's_cmp_ge_u32 s78, s{bound_sreg}')
        A(f's_cbranch_scc1 L2_leftdone{tag}')
        emit_g(issue_ops(0, 0) + consume_ops(0, 0, 0))
        A(f'v_add_u32 {vr(LPI)}, 128, {vr(LPI)}')
        A(f'v_add_u32 {vr(LPC)}, 128, {vr(LPC)}')
        A('s_add_u32 s78, s78, 1')
        A(f's_branch L2_left{tag}')
        A.label(f'L2_leftdone{tag}')
    A.label('L2_store')
    generic_loop('s', 3)
    emit_g(issue_ops(0, 0) + issue_ops(128, 1))
    store_setup()
    allst = []
    for w in range(4):
        for q in range(4): allst += store_ops(w, q)
    emit(A, allst)
    A.label('L2_lm')
    lm_stores()
    hflag_load(A, 4, 49, TB)
    emit_g(consume_ops(0, 0, 21) + consume_ops(128, 1, None))
    A('s_waitcnt vmcnt(0)')
    A('s_barrier')
    st(5)
    A(f'''
    s_lshl_b32 s40, s24, 8
    s_add_u32 s40, s40, {WS_FLAG-WS_BND+FOFF}
    s_cmp_lg_u32 s26, 0
    s_cbranch_scc1 L2_noflag
    s_lshl_b32 s41, s25, 2
    v_mov_b32 {vr(T0)}, s41
    v_mov_b32 {vr(T1)}, 1
    s_mov_b64 exec, 1
    buffer_store_dword {vr(T1)}, {vr(T0)}, s[20:23], s40 offen{FSC}
    s_mov_b64 exec, -1
    ''')
    A.label('L2_noflag')
    hflag_check(A, 'w', TB)
    A('s_cmp_eq_u32 s82, 1')
    A('s_cbranch_scc1 L2_owner')
    for ops in w23_dma_ops(): emit(A, ops)
    A('s_waitcnt vmcnt(0)')
    A('s_barrier')
    A('s_branch L2_exit')
    A.label('L2_owner')
    if RT == 4: emit_g(issue_ops(256, 0) + issue_ops(384, 1))
    A(f'''
    v_min_u32 v8, 4, {L}
    v_lshlrev_b32 v8, 2, v8
    buffer_load_dword v9, v8, s[20:23], s40 offen sc1
    ''')
    X, DI = 106, 122
    srd(A, 68, 6, 0, N*256)
    srd(A, 88, 84, 0, N*2)
    srd(A, 92, 86, 0, N*256)
    A(f'''
    s_lshl_b32 s36, s72, 12
    v_and_b32 v1, 15, {L}
    v_lshrrev_b32 v2, 4, {L}
    v_lshlrev_b32 v6, 8, v1
    v_lshl_add_u32 v6, v2, 4, v6
    v_lshlrev_b32 v7, 1, v1
    s_lshl_b32 s37, s72, 5
    ''')
    A(f'buffer_load_ushort {vr(DI)}, v7, s[88:91], s37 offen')
    for ops in w23_dma_ops(): emit(A, ops)
    for w in range(4):
        A(f'buffer_load_dwordx4 {vr(X+4*w,4)}, v6, s[68:71], s36 offen offset:{w*64}')
    BF = 128
    HV = 80
    OPR, LM = 16, 96
    YR = [160, 164, 168, 172, 208, 212, 216, 124]
    WB = [0, 32]
    def part_loads():
        st(6)
        A(f's_lshl_b32 s38, s72, 7')
        A(f's_add_u32 s38, s38, {WS_L-WS_BND}')
        A('s_lshl_b32 s36, s72, 12')
        SP = [25, 76, 77, 79, 80]
        for k in range(1, 5):
            A(f's_add_u32 s{SP[k]}, s{SP[k-1]}, 1')
            A(f's_cmp_eq_u32 s{SP[k]}, 5')
            A(f's_cselect_b32 s{SP[k]}, 0, s{SP[k]}')
        for k in range(5):
            A(f's_mul_i32 s39, s{SP[k]}, {NPAD*8}')
            A('s_add_u32 s39, s39, s38')
            A(f'buffer_load_dwordx2 {vr(LM+2*k,2)}, v5, s[20:23], s39 offen sc1')
        for k in range(1, 5):
            A(f's_mul_i32 s39, s{SP[k]}, {784*4096}')
            A('s_add_u32 s39, s39, s36')
            for w in range(4):
                A(f'buffer_load_dwordx4 {vr(OPR+16*(k-1)+4*w,4)}, {vr(T5)}, s[16:19], s39 offen offset:{w*1024} sc1')
        A('s_mov_b32 s83, 1')
    def poll(): A('buffer_load_dword v9, v8, s[20:23], s40 offen sc1')
    def check(tag):
        if tag == 1:
            A('s_waitcnt vmcnt(21)')
            A('s_cmp_eq_u32 s83, 1')
            A(f's_cbranch_scc1 L2_ck{tag}')
        A('s_waitcnt vmcnt(0)' if tag == 1 else 's_waitcnt vmcnt(20)')
        A('v_cmp_ne_u32 vcc, 1, v9')
        A(f's_cbranch_vccz L2_ckgo{tag}')
        poll()
        A(f's_branch L2_ck{tag}')
        A.label(f'L2_ckgo{tag}')
        part_loads()
        A.label(f'L2_ck{tag}')
    def gemm_half(k0, first):
        def wreads(p):
            for e in range(2):
                for ks in range(4):
                    A(f'ds_read_b128 {ar(WB[p%2]+16*e+4*ks,4)}, {vr(T5)} offset:{((2*p+e)*8+k0+ks)*1024}')
        if first: wreads(0)
        for p in range(4):
            if p < 3: wreads(p + 1)
            A(f's_waitcnt lgkmcnt({8 if p < 3 else 0})')
            for e in range(2):
                y = YR[2*p+e]
                for ks in range(4):
                    c = '0' if (first and ks == 0) else vr(y, 4)
                    A(f'v_mfma_f32_16x16x32_bf16 {vr(y,4)}, {ar(WB[p%2]+16*e+4*ks,4)}, {vr(BF+4*(k0+ks),4)}, {c}')
        return wreads
    A(f'''
    v_lshlrev_b32 v5, 3, v1
    s_mov_b32 s83, 0
    ''')
    if RT == 4:
        check(0)
        emit_g(consume_ops(256, 0, None) + consume_ops(384, 1, None))
    else:
        A('s_waitcnt vmcnt(20)')
    A.label('L2_more')
    A(f'''
    v_lshrrev_b32 {vr(T0)}, 16, {vr(TW)}
    v_cmp_ne_u32 vcc, 0, {vr(T0)}
    s_cbranch_vccz L2_nomore
    ''')
    list_build(A, 'b')
    A('s_waitcnt vmcnt(0) lgkmcnt(0)')
    generic_loop('b', 77)
    A('s_branch L2_more')
    A.label('L2_nomore')
    A(f'v_lshlrev_b32 {vr(DI)}, 16, {vr(DI)}')
    A('s_nop 3')
    for hf in range(2):
        for k in range(16):
            A(f'v_accvgpr_read_b32 {vr(HV+k)}, {ar(HS+16*hf+k)}')
        for k in range(16):
            A(f'v_mul_f32 {vr(HV+k)}, {vr(HV+k)}, {vr(DI)}')
        for k in range(8):
            A(f'v_cvt_pk_bf16_f32 {vr(BF+16+8*hf+k)}, {vr(HV+2*k)}, {vr(HV+2*k+1)}')
    check(1)
    A('s_barrier')
    gemm_half(4, True)
    A('s_cmp_eq_u32 s83, 1')
    A('s_cbranch_scc1 L2_comb')
    A(f's_mov_b32 s42, {SPINB}')
    A.label('L2_spin')
    A(f'''
    s_waitcnt vmcnt(0)
    v_cmp_ne_u32 vcc, 1, v9
    s_cbranch_vccz L2_go
    s_sub_u32 s42, s42, 1
    s_cmp_eq_u32 s42, 0
    s_cbranch_scc1 L2_go
    s_sleep 1
    ''')
    poll()
    A('s_branch L2_spin')
    A.label('L2_go')
    part_loads()
    A.label('L2_comb')
    for e in range(2):
        for ks in range(4):
            A(f'ds_read_b128 {ar(WB[0]+16*e+4*ks,4)}, {vr(T5)} offset:{(e*8+ks)*1024}')
    A('s_lshl_b32 s36, s72, 12')
    LL = [LM + 2 * s for s in range(5)]
    MM = [LM + 2 * s + 1 for s in range(5)]
    A('s_waitcnt vmcnt(16)')
    A(f'v_max3_f32 v7, {vr(MM[0])}, {vr(MM[1])}, {vr(MM[2])}')
    A(f'v_max3_f32 v7, v7, {vr(MM[3])}, {vr(MM[4])}')
    for s in range(5): A(f'v_sub_f32 {vr(MM[s])}, {vr(MM[s])}, v7')
    for s in range(5): A(f'v_exp_f32 {vr(MM[s])}, {vr(MM[s])}')
    A('s_nop 0')
    A(f'v_mul_f32 v7, {vr(MM[0])}, {vr(LL[0])}')
    for s in range(1, 5): A(f'v_fmac_f32 v7, {vr(MM[s])}, {vr(LL[s])}')
    A('v_rcp_f32 v7, v7')
    G = 176
    for k in range(32): A(f'v_mul_f32 {vr(G+k)}, {vr(G+k)}, {vr(MM[0])}')
    for s in range(1, 5):
        A(f'v_lshrrev_b32 {vr(LL[s])}, 16, {vr(MM[s])}')
        A(f'v_and_b32 {vr(MM[s])}, 0xffff0000, {vr(MM[s])}')
    for s in range(1, 5):
        A(f's_waitcnt vmcnt({16-4*s})')
        for k in range(16):
            src = OPR + 16 * (s - 1) + k
            A(f'v_dot2_f32_bf16 {vr(G+2*k)}, {vr(src)}, {vr(LL[s])}, {vr(G+2*k)}')
            A(f'v_dot2_f32_bf16 {vr(G+2*k+1)}, {vr(src)}, {vr(MM[s])}, {vr(G+2*k+1)}')
    st(7)
    A('s_nop 2')
    for k in range(32): A(f'v_mul_f32 {vr(G+k)}, {vr(G+k)}, v7')
    for k in range(16): A(f'v_cvt_pk_bf16_f32 {vr(BF+k)}, {vr(G+2*k)}, {vr(G+2*k+1)}')
    gemm_half(0, False)
    A('s_nop 7')
    for w in range(4):
        for i in range(4):
            xr = X + 4 * w + i
            y = YR[2 * w + i // 2] + 2 * (i % 2)
            A(f'v_lshlrev_b32 v7, 16, {vr(xr)}')
            A(f'v_and_b32 v8, 0xffff0000, {vr(xr)}')
            A(f'v_add_f32 v7, v7, {vr(y)}')
            A(f'v_add_f32 v8, v8, {vr(y+1)}')
            A(f'v_cvt_pk_bf16_f32 {vr(xr)}, v7, v8')
        A(f'buffer_store_dwordx4 {vr(X+4*w,4)}, v6, s[92:95], s36 offen offset:{w*64}{OUTSC}')
    A.label('L2_exit')
    if stamp:
        A('s_waitcnt vmcnt(0)')
        st(8)
        A('s_waitcnt lgkmcnt(0)')
        for i in range(10): A(f'v_mov_b32 {vr(i)}, s{44+2*i}')
        A(f's_lshl_b32 s40, s2, 2')
        A(f's_add_u32 s40, s40, s26')
        A(f's_lshl_b32 s40, s40, 6')
        A(f's_add_u32 s40, s40, {WS_STAMP-WS_BND}')
        A(f's_mov_b32 s22, 0x7fffffff')
        if stamp == 2:
            A(f's_lshl_b32 s41, s2, 2')
            A(f's_add_u32 s41, s41, s26')
            A(f's_lshl_b32 s41, s41, 7')
            A(f's_add_u32 s41, s41, {WS_STAMP-WS_BND+0x80000}')
            A(f'v_lshlrev_b32 v20, 2, {vr(LANE)}')
            A(f's_mov_b64 exec, 0xffff')
            A(f'buffer_store_dword a252, v20, s[20:23], s41 offen')
            A(f'buffer_store_dword a253, v20, s[20:23], s41 offen offset:64')
            A(f's_mov_b64 exec, -1')
        A(f'v_mov_b32 v20, 0')
        A(f'v_mov_b32 v10, s82')
        A(f'v_mov_b32 v11, s77')
        A(f's_mov_b64 exec, 1')
        for i in range(3):
            A(f'buffer_store_dwordx4 v[{4*i}:{4*i+3}], v20, s[20:23], s40 offen offset:{16*i}')
    if stamp == 3:
        A('s_mov_b64 exec, -1')
        srd(A, 96, 100, 0, 256)
        A('s_cmp_lg_u32 s26, 0')
        A('s_cbranch_scc1 L2_done')
        A('s_mov_b32 s40, 0x1000')
        for i, w in enumerate((16, 20, 23)):
            A(f's_cmp_eq_u32 s2, {w}')
            A(f's_cselect_b32 s40, {16+16*i}, s40')
        A('v_mov_b32 v0, s44\nv_mov_b32 v1, s50\nv_mov_b32 v2, s52\nv_mov_b32 v3, s60\nv_mov_b32 v20, 0')
        A('s_mov_b64 exec, 1')
        A('buffer_store_dwordx4 v[0:3], v20, s[96:99], s40 offen')
    A.label('L2_done')
    A('s_endpgm')
    for nm in SPINS:
        A.label(f'L2_sp{nm}')
        A('s_mov_b32 s41, 0x40000')
        A.label(f'L2_spl{nm}')
        A(f'''
        {SPSLEEP}
        ds_read_b32 {vr(SRD_)}, {vr(SRA)}
        s_sub_u32 s41, s41, 1
        s_cmp_eq_u32 s41, 0
        s_cbranch_scc1 L2_spr{nm}
        s_waitcnt lgkmcnt(0)
        v_cmp_lt_u32 vcc, {vr(SRD_)}, {vr(SCNT)}
        s_cbranch_vccnz L2_spl{nm}
        s_branch L2_spr{nm}
        ''')
    gen_slow(A)
    phase_a.helpers(A, HMASK)

def gen_slow(A):
    L = vr(LANE)
    A.label('L2_slow')
    for q in range(2, 4):
        for s in range(4):
            A(f'buffer_load_dwordx4 {ar(QF+4*(q*4+s),4)}, {vr(T5)}, s[12:15], s{35+q} offen offset:{s*1024}{LDSC}')
    full_check_issue(A, E8, E8+6)
    flags_spin(A, 's', E8, E8+6, 's_waitcnt vmcnt(0) lgkmcnt(0)')
    hflag_load(A)
    A('s_waitcnt vmcnt(0)')
    hflag_check(A, 's')
    table_load(A)
    A('s_waitcnt vmcnt(0)')
    list_build(A, 's')
    A('s_waitcnt vmcnt(0) lgkmcnt(0)')
    MX = [T0, T1, T2, T3]
    for q in range(4): A(f'v_mov_b32 {vr(MX[q])}, 0xf149f2ca')
    for r in range(128): A(f'v_mov_b32 {vr(r)}, 0')
    A(f'''
    s_mul_i32 s27, s25, {SPLITB}
    s_mul_i32 s40, s25, {79*32}
    s_add_u32 s41, s40, {79*32}
    s_min_u32 s41, s41, {N}
    v_lshrrev_b32 {vr(T4)}, 4, {L}
    v_lshlrev_b32 {vr(T4)}, 2, {vr(T4)}
    v_add_u32 {vr(T4)}, s40, {vr(T4)}
    s_mov_b32 s32, 40
    v_mov_b32 {vr(T5)}, 0xff800000
    ''')
    def S(kt, q): return 128 + 8 * ((kt // 2) * 4 + q) + 4 * (kt % 2)
    A.label('L2_sloop')
    A('s_barrier')
    A('s_mov_b32 m0, s28')
    A('s_nop 0')
    for k in range(4): A(op_dma(k).text)
    A('s_add_u32 s27, s27, 16384')
    A('s_waitcnt vmcnt(0)')
    A('s_barrier')
    for kt in range(4):
        for s in range(4):
            A(f'ds_read_b128 {ar(KF+4*s,4)}, {vr(KADDR+s)} offset:{kt*4096}')
        A('s_waitcnt lgkmcnt(0)')
        for q in range(4):
            for s in range(4):
                d = S(kt, q)
                A(f'v_mfma_f32_16x16x32_bf16 {vr(d,4)}, {ar(KF+4*s,4)}, {ar(QF+4*(q*4+s),4)}, {"0" if s == 0 else vr(d,4)}')
    A('s_nop 7')
    for kt in range(4):
        for r in range(4):
            A(f'v_add_u32 {vr(192)}, {16*kt+r}, {vr(T4)}')
            A(f'v_cmp_gt_u32 vcc, s41, {vr(192)}')
            A('s_nop 1')
            for q in range(4):
                A(f'v_cndmask_b32 {vr(S(kt,q)+r)}, {vr(T5)}, {vr(S(kt,q)+r)}, vcc')
    A(f'v_add_u32 {vr(T4)}, 64, {vr(T4)}')
    a, b, al = 192, 193, 194
    for q in range(4):
        vals = [S(kt, q) + r for kt in range(4) for r in range(4)]
        A(f'v_max_f32 {vr(a)}, {vr(vals[0])}, {vr(vals[1])}')
        for k in range(2, 16, 2):
            A(f'v_max3_f32 {vr(a)}, {vr(a)}, {vr(vals[k])}, {vr(vals[k+1])}')
        A(f'''
        v_mov_b32 {vr(b)}, {vr(a)}
        s_nop 1
        v_permlane16_swap_b32 {vr(a)}, {vr(b)}
        v_max_f32 {vr(a)}, {vr(a)}, {vr(b)}
        v_mov_b32 {vr(b)}, {vr(a)}
        s_nop 1
        v_permlane32_swap_b32 {vr(a)}, {vr(b)}
        v_max_f32 {vr(a)}, {vr(a)}, {vr(b)}
        v_ceil_f32 {vr(a)}, {vr(a)}
        v_max_f32 {vr(a)}, {vr(a)}, {vr(MX[q])}
        v_sub_f32 {vr(al)}, {vr(MX[q])}, {vr(a)}
        v_exp_f32 {vr(al)}, {vr(al)}
        v_mov_b32 {vr(MX[q])}, {vr(a)}
        ''')
        for v in vals:
            A(f'v_sub_f32 {vr(v)}, {vr(v)}, {vr(a)}')
        for v in vals:
            A(f'v_exp_f32 {vr(v)}, {vr(v)}')
        for dt in range(8):
            for r in range(4):
                A(f'v_mul_f32 {vr(O(dt,q)+r)}, {vr(O(dt,q)+r)}, {vr(al)}')
        for u in range(2):
            base = S(2 * u, q)
            for i in range(4):
                A(f'v_cvt_pk_bf16_f32 {vr(base+i)}, {vr(base+2*i)}, {vr(base+2*i+1)}')
    for dt in range(8):
        for u in range(2):
            for x in range(2):
                A(f'ds_read_b64_tr_b16 {ar(VF+4*u+2*x,2)}, {vr(VADDR+dt)} offset:{u*8192+x*4096}')
        A('s_waitcnt lgkmcnt(0)')
        for q in range(4):
            for u in range(2):
                A(f'v_mfma_f32_16x16x32_bf16 {vr(O(dt,q),4)}, {ar(VF+4*u,4)}, {vr(S(2*u,q),4)}, {vr(O(dt,q),4)}')
    A('s_nop 7')
    A('s_sub_u32 s32, s32, 1')
    A('s_cmp_lg_u32 s32, 0')
    A('s_cbranch_scc1 L2_sloop')
    A('s_branch L2_store')
```

```python
from asmlib import *
from layout import *
from k1 import srd, red_g, bcast_g3, wave_scan_incl, f32bits, BETA, CSC
import math
HSTAMP = False

def weights_dma(A, swave, srd0, srd1, par1, defer=None):
    A(f'''
    v_lshlrev_b32 v5, 1, v3
    v_xor_b32 v5, v5, v2
    v_lshlrev_b32 v5, 4, v5
    v_lshl_add_u32 v5, v3, 8, v5
    v_xor_b32 v6, 0x80, v5
    s_lshl_b32 s36, s{swave}, 13
    s_add_u32 s37, s36, 4096
    ''')
    for mat, sd in enumerate((srd0, srd1)):
        for half in range(2):
            for ii in range(4):
                sel = (ii >> 1) if mat == 0 else par1(ii)
                t = (f's_add_u32 m0, s{36+half}, {mat*32768}\ns_nop 0\n' if ii == 0 else '') + f'buffer_load_dwordx4 {"v6" if sel else "v5"}, s[{sd}:{sd+3}], s{36+half} offen offset:{ii*1024} lds'
                if mat == 1 and defer is not None: defer.append(t)
                else: A(t)

def owner_x_loads(A):
    A('s_lshl_b32 s38, s72, 12')
    A('v_lshlrev_b32 v4, 8, v2')
    A('v_lshl_add_u32 v4, v3, 4, v4')
    for s in range(4):
        A(f'buffer_load_dwordx4 {vr(8+4*s,4)}, v4, s[68:71], s38 offen offset:{64*s}')

def owner_compute(A0, st, deferred):
    class Spr:
        def __init__(s): s.n = 0; s.on = False
        def __call__(s, t):
            for l in t.strip().split('\n'):
                A0(l)
                s.n += 1
                if s.on and deferred and s.n % 14 == 0 and not l.strip().startswith('s_nop'): A0(deferred.pop(0))
    A = Spr()
    X = 8; F = 32; S, T = 24, 25
    P2 = 26
    TA_, TB_ = 84, 88
    A('''
    v_and_b32 v26, 7, v2
    v_lshlrev_b32 v26, 1, v26
    v_xor_b32 v26, v26, v3
    v_lshlrev_b32 v27, 8, v2
    v_lshrrev_b32 v29, 2, v2
    v_lshlrev_b32 v29, 3, v29
    v_and_b32 v28, 3, v2
    v_add_u32 v29, v29, v28
    v_lshlrev_b32 v29, 8, v29
    ''')
    for s in range(4):
        A(f'v_xor_b32 v28, {4*s}, v26')
        A(f'v_lshl_add_u32 {vr(80+s)}, v28, 4, v27')
        A(f'v_lshl_add_u32 {vr(TB_+s)}, v28, 4, v29')
    A('''
    v_bfe_u32 v26, v0, 2, 2
    v_and_b32 v27, 1, v3
    v_lshl_add_u32 v27, v27, 2, v26
    v_lshlrev_b32 v27, 1, v27
    v_and_b32 v28, 3, v0
    v_xor_b32 v27, v27, v28
    v_lshl_add_u32 v26, v3, 3, v26
    v_lshlrev_b32 v26, 8, v26
    ''')
    for w in range(4):
        A(f'v_xor_b32 v28, {4*w}, v27')
        A(f'v_lshl_add_u32 {vr(TA_+w)}, v28, 4, v26')
    A(f'v_cmp_eq_u32 vcc, 3, v3')
    A(f'v_lshlrev_b32 v30, 4, v0')
    A('s_waitcnt vmcnt(8)')
    A.on = True
    for k in range(16):
        A(f'v_lshlrev_b32 {vr(F+2*k)}, 16, {vr(X+k)}')
        A(f'v_and_b32 {vr(F+2*k+1)}, 0xffff0000, {vr(X+k)}')
    def sum32(base, sq=False):
        if sq:
            A(f'v_pk_mul_f32 v[26:27], {vr(base,2)}, {vr(base,2)}')
            A(f'v_pk_mul_f32 v[28:29], {vr(base+2,2)}, {vr(base+2,2)}')
            for k in range(4, 32, 4):
                A(f'v_pk_fma_f32 v[26:27], {vr(base+k,2)}, {vr(base+k,2)}, v[26:27]')
                A(f'v_pk_fma_f32 v[28:29], {vr(base+k+2,2)}, {vr(base+k+2,2)}, v[28:29]')
        else:
            A(f'v_pk_add_f32 v[26:27], {vr(base,2)}, {vr(base+2,2)}')
            A(f'v_pk_add_f32 v[28:29], {vr(base+4,2)}, {vr(base+6,2)}')
            for k in range(8, 32, 4):
                A(f'v_pk_add_f32 v[26:27], v[26:27], {vr(base+k,2)}')
                A(f'v_pk_add_f32 v[28:29], v[28:29], {vr(base+k+2,2)}')
        A('v_pk_add_f32 v[26:27], v[26:27], v[28:29]')
        A(f'v_add_f32 {vr(S)}, v26, v27')
        red_g(A, S, T)
    def bc(op, base, extra=''):
        for k in range(0, 32, 2):
            A(f'{op} {vr(base+k,2)}, {vr(base+k,2)}, v[24:25] op_sel_hi:[1,0]{extra}')
    sum32(F)
    A(f'v_mul_f32 {vr(S)}, {hex(f32bits(-1/128))}, {vr(S)}')
    bc('v_pk_add_f32', F)
    sum32(F, True)
    A(f'v_mov_b32 {vr(T)}, {hex(f32bits(1e-5))}')
    A(f'v_fmac_f32 {vr(T)}, {hex(f32bits(1/128))}, {vr(S)}')
    A(f'v_rsq_f32 {vr(S)}, {vr(T)}')
    A('s_nop 0')
    bc('v_pk_mul_f32', F)
    HB = 8
    for k in range(16): A(f'v_cvt_pk_bf16_f32 {vr(HB+k)}, {vr(F+2*k)}, {vr(F+2*k+1)}')
    assert not deferred
    A('s_waitcnt vmcnt(8)')
    A('s_barrier')
    AC = 96; AF = 0
    def g1_reads(et):
        for s in range(4):
            for x in range(2):
                A(f'ds_read_b64_tr_b16 {ar(AF+16*et+4*s+2*x,2)}, {vr(TA_+et//2)} offset:{s*8192+x*1024+8*(et%2)}')
    g1_reads(0); g1_reads(1)
    H = 64
    class B:
        def __init__(s): s.l = []
        def __call__(s, t): s.l += [x.strip() for x in t.strip().split('\n')]
    hb = B()
    bcast_g3(hb, S, F+31, T)
    hb(f'v_mul_f32 {vr(S)}, {hex(f32bits(BETA))}, {vr(S)}')
    for k in range(0, 32, 2): hb(f'v_pk_add_f32 {vr(F+k,2)}, {vr(F+k,2)}, v[24:25] op_sel_hi:[1,0]')
    hb(f'v_cndmask_b32 {vr(F+31)}, {vr(F+31)}, 1.0, vcc')
    for s in range(4):
        for k in range(4 * s, 4 * s + 4): hb(f'v_cvt_pk_bf16_f32 {vr(H+k)}, {vr(F+2*k)}, {vr(F+2*k+1)}')
        hb(f'buffer_store_dwordx4 {vr(H+4*s,4)}, {vr(80+s)}, s[8:11], s38 offen sc1')
    hl = hb.l
    per = (len(hl) + 6) // 7
    for et in range(8):
        for t in hl[et*per:(et+1)*per]: A(t)
        A(f's_waitcnt lgkmcnt({8 if et < 7 else 0})')
        for s in range(4):
            c = '0' if s == 0 else vr(AC+4*et, 4)
            A(f'v_mfma_f32_16x16x32_bf16 {vr(AC+4*et,4)}, {ar(AF+16*et+4*s,4)}, {vr(HB+4*s,4)}, {c}')
        if et + 2 < 8: g1_reads(et + 2)
    def g2_reads(dt):
        for w in range(4):
            A(f'ds_read_b128 {ar(AF+16*dt+4*w,4)}, {vr(TB_+w)} offset:{32768+(dt//2)*8192+(dt%2)*1024}')
    A('s_waitcnt vmcnt(4)')
    A('s_barrier')
    g2_reads(0); g2_reads(1); g2_reads(2)
    QB = 8
    for w in range(4):
        for h in range(2):
            b = AC + 4 * (2 * w + h)
            A(f'v_cvt_pk_bf16_f32 {vr(QB+4*w+2*h)}, {vr(b)}, {vr(b+1)}')
            A(f'v_cvt_pk_bf16_f32 {vr(QB+4*w+2*h+1)}, {vr(b+2)}, {vr(b+3)}')
    TC = 32
    A('s_nop 1')
    for dt in range(8):
        rem = min(2, 7 - dt)
        A(f's_waitcnt lgkmcnt({4*rem})')
        for w in range(4):
            c = '0' if w == 0 else vr(TC+4*dt, 4)
            A(f'v_mfma_f32_16x16x32_bf16 {vr(TC+4*dt,4)}, {ar(AF+16*dt+4*w,4)}, {vr(QB+4*w,4)}, {c}')
        if dt + 3 < 8: g2_reads(dt + 3)
    A(f'v_mov_b32 v92, {hex(f32bits(CSC))}')
    A('s_nop 6')
    sum32(TC)
    bcast_g3(A, 26, TC+31, T)
    A(f'v_mul_f32 {vr(S)}, {hex(f32bits(1/math.sqrt(128)))}, {vr(S)}')
    A(f'v_sub_f32 {vr(S)}, {vr(26)}, {vr(S)}')
    A(f'v_mul_f32 {vr(S)}, {hex(f32bits(BETA*CSC))}, {vr(S)}')
    for k in range(0, 32, 2):
        A(f'v_pk_fma_f32 {vr(TC+k,2)}, {vr(TC+k,2)}, v[92:93], v[24:25] op_sel_hi:[1,0,0]')
    A(f'v_cndmask_b32 {vr(TC+31)}, {vr(TC+31)}, 0, vcc')
    for w in range(4):
        for i in range(4):
            A(f'v_cvt_pk_bf16_f32 {vr(8+4*w+i)}, {vr(TC+8*w+2*i)}, {vr(TC+8*w+2*i+1)}')
        A(f'buffer_store_dwordx4 {vr(8+4*w,4)}, v30, s[12:15], s38 offen offset:{w*1024} sc1')
    sum32(TC, True)
    A('''
    s_lshl_b32 s33, s72, 6
    v_lshlrev_b32 v27, 2, v2
    s_mov_b64 exec, 0xffff
    ''')
    A(f'buffer_store_dword {vr(S)}, v27, s[20:23], s33 offen sc1')
    A('s_mov_b64 exec, -1')

def helper_bin(A):
    A.label('L_hbin')
    D = 16
    A(f'''
    s_load_dwordx4 s[24:27], s[0:1], 8
    s_mul_i32 s36, s34, {CHB*4}
    v_lshlrev_b32 v1, 4, v30
    v_mov_b32 v200, v30
    v_mov_b32 v4, 0
    v_mov_b32 v5, 0
    v_mov_b32 v6, 0
    v_mov_b32 v7, 0
    v_mov_b32 v8, 0x7ffffff0
    v_mov_b32 v9, 0x7ffffff0
    v_mov_b32 v10, 0x7ffffff0
    v_mov_b32 v11, 0x7ffffff0
    s_waitcnt lgkmcnt(0)
    ''')
    srd(A, 8, 24, 0, E*4)
    srd(A, 12, 26, 0, E*4)
    srd(A, 16, 4, WS_TAB, NBIN*64)
    srd(A, 28, 4, WS_EDGE, NH*CHS)
    A('s_mov_b32 s37, s36')
    for k in range(36):
        A(f'buffer_load_dwordx4 {vr(D+4*k,4)}, v1, s[12:15], s37 offen')
        A('s_add_u32 s37, s37, 4096')
    A('s_barrier')
    A('ds_write_b128 v1, v[4:7]')
    A('v_add_u32 v2, 65536, v1')
    A('v_add_u32 v3, 131072, v1')
    for k in range(39):
        off = 4096 + 4096 * k
        A(f'ds_write_b128 {["v1","v2","v3"][off // 65536]}, v[8:11] offset:{off % 65536}')
    A('v_add_u32 v12, s36, v1')
    A('v_lshlrev_b32 v13, 4, v0')
    A('v_add_u32 v13, 12800, v13')
    A('v_mov_b32 v14, 1')
    A('s_waitcnt lgkmcnt(0)')
    A('s_barrier')
    A('s_mov_b32 s37, s36')
    for k in range(36):
        A(f's_waitcnt vmcnt(35)')
        A(f'buffer_load_dwordx4 {ar(4*k,4)}, v1, s[8:11], s37 offen')
        A('s_add_u32 s37, s37, 4096')
        A(f'v_cmp_gt_u32 vcc, {E*4 - k*4096}, v12')
        A('s_nop 1')
        for j in range(4):
            n = 4 * k + j
            A(f'v_cndmask_b32 {vr(D+n)}, v13, {vr(D+n)}, vcc')
            A(f'v_lshrrev_b32 {vr(160+j)}, 4, {vr(D+n)}')
            A(f'v_lshlrev_b32 {vr(160+j)}, 2, {vr(160+j)}')
            A(f'ds_add_u32 {vr(160+j)}, v14')
    A('s_waitcnt lgkmcnt(0)')
    A('s_barrier')
    A('''
    ds_read_b128 v[160:163], v1
    s_waitcnt lgkmcnt(0)
    ''')
    for j in range(4):
        A(f'v_add_u32 {vr(160+j)}, 3, {vr(160+j)}')
        A(f'v_and_b32 {vr(160+j)}, -4, {vr(160+j)}')
    A('''
    v_add_u32 v164, v160, v161
    v_add_u32 v165, v164, v162
    v_add_u32 v166, v165, v163
    v_mov_b32 v167, v166
    ''')
    wave_scan_incl(A, 167)
    A('''
    s_barrier
    s_lshl_b32 s33, s3, 2
    v_mov_b32 v168, s33
    v_cmp_eq_u32 vcc, 63, v0
    s_and_saveexec_b64 s[38:39], vcc
    ds_write_b32 v168, v167 offset:4080
    s_mov_b64 exec, s[38:39]
    s_waitcnt lgkmcnt(0)
    s_barrier
    v_mov_b32 v168, 0
    ds_read_b128 v[172:175], v168 offset:4080
    v_sub_u32 v167, v167, v166
    s_waitcnt lgkmcnt(0)
    v_readfirstlane_b32 s38, v172
    v_readfirstlane_b32 s39, v173
    v_readfirstlane_b32 s40, v174
    s_cmp_gt_u32 s3, 0
    s_cselect_b32 s38, s38, 0
    s_cmp_gt_u32 s3, 1
    s_cselect_b32 s39, s39, 0
    s_cmp_gt_u32 s3, 2
    s_cselect_b32 s40, s40, 0
    s_add_u32 s38, s38, s39
    s_add_u32 s38, s38, s40
    v_add_u32 v176, s38, v167
    v_add_u32 v177, v176, v160
    v_add_u32 v178, v176, v164
    v_add_u32 v179, v176, v165
    v_cmp_gt_u32 vcc, 252, v200
    s_and_saveexec_b64 s[38:39], vcc
    ds_write_b128 v1, v[176:179]
    s_mov_b64 exec, s[38:39]
    v_lshlrev_b32 v168, 8, v200
    s_lshl_b32 s33, s34, 2
    ''')
    for j in range(4):
        A(f'v_lshrrev_b32 {vr(180+j)}, 2, {vr(176+j)}')
        A(f'v_lshl_or_b32 {vr(180+j)}, {vr(160+j)}, 14, {vr(180+j)}')
        A(f'buffer_store_dword {vr(180+j)}, v168, s[16:19], s33 offen offset:{64*j} sc1')
    A('s_waitcnt vmcnt(4) lgkmcnt(0)')
    A('s_barrier')
    for bt in range(18):
        R, EN = 160, 168
        for j in range(8):
            n = 8 * bt + j
            A(f'v_lshrrev_b32 {vr(R+j)}, 4, {vr(D+n)}')
            A(f'v_lshlrev_b32 {vr(R+j)}, 2, {vr(R+j)}')
            A(f'ds_add_rtn_u32 {vr(R+j)}, {vr(R+j)}, v14')
        for j in range(8):
            n = 8 * bt + j
            A(f'v_accvgpr_read_b32 {vr(EN+j)}, {ar(n)}')
            A(f'v_and_b32 v15, 7, {vr(EN+j)}')
            A(f'v_lshlrev_b32 {vr(EN+j)}, 8, {vr(EN+j)}')
            A(f'v_lshl_or_b32 {vr(EN+j)}, v15, 5, {vr(EN+j)}')
            A(f'v_and_or_b32 {vr(EN+j)}, {vr(D+n)}, 15, {vr(EN+j)}')
        A('s_waitcnt lgkmcnt(0)')
        for j in range(8):
            A(f'v_lshlrev_b32 {vr(R+j)}, 2, {vr(R+j)}')
            A(f'ds_write_b32 {vr(R+j)}, {vr(EN+j)} offset:4096')
    A('s_waitcnt lgkmcnt(0)')
    A('s_barrier')
    A(f's_mul_i32 s37, s34, {CHS}')
    for k0 in range(0, 39, 13):
        for k in range(k0, k0 + 13):
            off = 4096 + 4096 * k
            A(f'ds_read_b128 {vr(D+4*(k-k0)+52*((k0//13)%2),4)}, {["v1","v2","v3"][off // 65536]} offset:{off % 65536}')
        for k in range(k0, k0 + 13):
            A(f's_waitcnt lgkmcnt({k0+12-k})')
            A(f'buffer_store_dwordx4 {vr(D+4*(k-k0)+52*((k0//13)%2),4)}, v1, s[28:31], s37 offen sc1')
            A('s_add_u32 s37, s37, 4096')
    A('s_waitcnt vmcnt(0)')
    A('s_barrier')
    A('s_cmp_lg_u32 s3, 0')
    A('s_cbranch_scc1 L_w23')
    A('v_mov_b32 v8, 0')
    ready_spin(A, 'b', 9, 8)
    A(f'''
    s_lshl_b32 s33, s34, 2
    s_add_u32 s33, s33, {50*256}
    v_mov_b32 v9, 1
    s_mov_b64 exec, 1
    buffer_store_dword v9, v8, s[20:23], s33 offen sc1
    ''')
    if HSTAMP:
        A('s_memrealtime s[44:45]')
        A('s_waitcnt lgkmcnt(0)')
        A('v_mov_b32 v9, s44')
        A(f's_add_u32 s33, s33, 256')
        A('buffer_store_dword v9, v8, s[20:23], s33 offen sc1')
    A('s_mov_b64 exec, -1')

def ready_spin(A, tag, vd, vz):
    A('s_mov_b32 s41, 0x20000')
    A.label(f'L_rs{tag}')
    A(f'''
    buffer_load_dword {vr(vd)}, {vr(vz)}, s[96:99], 0 offen sc1
    s_waitcnt vmcnt(0)
    v_cmp_ne_u32 vcc, 1, {vr(vd)}
    s_cbranch_vccz L_rsok{tag}
    s_sub_u32 s41, s41, 1
    s_cmp_lg_u32 s41, 0
    s_cbranch_scc1 L_rs{tag}
    ''')
    A.label(f'L_rsok{tag}')

def helpers(A, HMASK):
    A.label('L_helper')
    A(f'''
    s_bfm_b32 s34, s2, 0
    s_and_b32 s34, s34, {HMASK}
    s_bcnt1_i32_b32 s34, s34
    v_lshrrev_b32 v1, 6, v0
    v_mov_b32 v30, v0
    v_and_b32 v0, 63, v0
    v_readfirstlane_b32 s3, v1
    v_mov_b32 v8, 0
    s_waitcnt lgkmcnt(0)
    ''')
    srd(A, 96, 100, 0, 256)
    srd(A, 20, 4, WS_FLAG, 16384)
    A('s_cmp_lg_u32 s2, 0')
    A('s_cbranch_scc1 L_hbin')
    A(f'''
    v_lshrrev_b32 v9, 2, v30
    v_lshlrev_b32 v9, 8, v9
    v_and_b32 v10, 3, v30
    v_lshl_add_u32 v9, v10, 4, v9
    v_mov_b32 v12, 0
    v_mov_b32 v13, 0
    v_mov_b32 v14, 0
    v_mov_b32 v15, 0
    buffer_store_dwordx4 v[12:15], v9, s[20:23], 0 offen sc1
    s_waitcnt vmcnt(0)
    s_barrier
    s_cmp_lg_u32 s3, 0
    s_cbranch_scc1 L_hbin
    v_mov_b32 v9, 1
    s_mov_b64 exec, 1
    buffer_store_dword v9, v8, s[96:99], 0 offen sc1
    s_mov_b64 exec, -1
    ''')
    helper_bin(A)
    A.label('L_w23')
    A('''
    s_sub_u32 s35, s34, 1
    s_cmp_ge_u32 s35, 4
    s_cbranch_scc1 L2_done
    s_load_dwordx2 s[6:7], s[0:1], 64
    s_load_dwordx2 s[24:25], s[0:1], 56
    s_load_dwordx2 s[26:27], s[0:1], 32
    v_and_b32 v2, 15, v0
    v_lshrrev_b32 v3, 4, v0
    s_and_b32 s28, s35, 1
    s_lshr_b32 s29, s35, 1
    v_mov_b32 v8, 0
    s_waitcnt lgkmcnt(0)
    s_cmp_eq_u32 s28, 0
    s_cselect_b32 s24, s24, s26
    s_cselect_b32 s25, s25, s27
    ''')
    srd(A, 8, 6, 0, 32768)
    srd(A, 12, 24, 0, 32768)
    srd(A, 16, 4, WS_W23, 65536)
    weights_dma(A, 3, 8, 12, lambda ii: ii & 1)
    A('''
    v_bfe_u32 v26, v0, 2, 2
    v_and_b32 v27, 1, v3
    v_lshl_add_u32 v27, v27, 2, v26
    v_lshlrev_b32 v27, 1, v27
    v_and_b32 v28, 3, v0
    v_xor_b32 v27, v27, v28
    v_lshl_add_u32 v26, v3, 3, v26
    v_lshlrev_b32 v26, 8, v26
    s_lshl_b32 s33, s3, 2
    v_xor_b32 v28, s33, v27
    v_lshl_add_u32 v7, v28, 4, v26
    s_lshl_b32 s33, s29, 3
    v_add_u32 v7, s33, v7
    v_and_b32 v26, 7, v2
    v_lshlrev_b32 v26, 1, v26
    v_xor_b32 v26, v26, v3
    v_lshlrev_b32 v27, 8, v2
    ''')
    for s in range(4):
        A(f'v_xor_b32 v28, {4*s}, v26')
        A(f'v_lshl_add_u32 {vr(12+s)}, v28, 4, v27')
    A('s_waitcnt vmcnt(0)')
    A('s_barrier')
    AF = 128; BFR = 32; C = 64
    for s in range(4):
        for x in range(2):
            A(f'ds_read_b64_tr_b16 {vr(BFR+4*s+2*x,2)}, v7 offset:{s*8192+x*1024}')
    def areads(dt):
        for s in range(4):
            A(f'ds_read_b128 {vr(AF+16*dt+4*s,4)}, {vr(12+s)} offset:{32768+dt*4096}')
    areads(0); areads(1)
    for dt in range(8):
        if dt + 2 < 8: areads(dt + 2)
        A(f's_waitcnt lgkmcnt({4*min(2, 7-dt)})')
        for s in range(4):
            d = C + 4 * dt
            c = '0' if s == 0 else vr(d, 4)
            A(f'v_mfma_f32_16x16x32_bf16 {vr(d,4)}, {vr(AF+16*dt+4*s,4)}, {vr(BFR+4*s,4)}, {c}')
    A('s_nop 7')
    A('''
    v_cmp_eq_u32 vcc, 3, v3
    v_lshlrev_b32 v27, 4, v0
    s_lshl_b32 s33, s3, 14
    s_lshl_b32 s32, s28, 12
    s_add_u32 s33, s33, s32
    s_lshl_b32 s32, s29, 13
    s_add_u32 s33, s33, s32
    ''')
    b = C
    A(f'v_add_f32 v24, {vr(b)}, {vr(b+1)}')
    A(f'v_add_f32 v29, {vr(b+2)}, {vr(b+3)}')
    for k in range(4, 32, 2):
        A(f'v_add_f32 v24, v24, {vr(b+k)}')
        A(f'v_add_f32 v29, v29, {vr(b+k+1)}')
    A('v_add_f32 v24, v24, v29')
    red_g(A, 24, 25)
    bcast_g3(A, 26, b + 31, 25)
    A(f'v_mul_f32 v24, {hex(f32bits(1/math.sqrt(128)))}, v24')
    A(f'v_sub_f32 v24, v26, v24')
    A(f'v_mul_f32 v24, {hex(f32bits(BETA))}, v24')
    for k in range(32): A(f'v_add_f32 {vr(b+k)}, {vr(b+k)}, v24')
    A(f'v_cndmask_b32 {vr(b+31)}, {vr(b+31)}, 0, vcc')
    for w in range(4):
        o = 128 + 4 * w
        for i in range(4):
            A(f'v_cvt_pk_bf16_f32 {vr(o+i)}, {vr(b+8*w+2*i)}, {vr(b+8*w+2*i+1)}')
        A(f'buffer_store_dwordx4 {vr(o,4)}, v27, s[16:19], s33 offen offset:{w*1024} sc1')
    A('s_waitcnt vmcnt(0)')
    A('s_barrier')
    A('s_cmp_lg_u32 s3, 0')
    A('s_cbranch_scc1 L2_done')
    A(f'''
    s_lshl_b32 s33, s35, 2
    s_add_u32 s33, s33, {49*256}
    v_mov_b32 v9, 1
    s_mov_b64 exec, 1
    buffer_store_dword v9, v8, s[20:23], s33 offen sc1
    s_endpgm
    ''')
```
